```python
import torch

def _softmax(x, axis=-1):
    return torch.softmax(x, dim=axis)
def _gelu(x):
    return torch.nn.functional.gelu(x, approximate="tanh")
def _silu(x):
    return torch.nn.functional.silu(x)
def _sigmoid(x):
    return torch.sigmoid(x)
def _layernorm(x, axis=-1, eps=1e-5):
    m = x.mean(dim=axis, keepdim=True)
    v = x.var(dim=axis, keepdim=True, unbiased=False)
    return (x - m) / torch.sqrt(v + eps)
def _scatter_add(tgt, idx, src, axis=0):
    return tgt.clone().index_add_(axis, idx, src)
def _segment_sum(src, seg, n):
    out = torch.zeros((n,) + src.shape[1:], dtype=src.dtype)
    return out.index_add_(0, seg, src)
def _pad(x, pw):
    flat = tuple(v for pair in reversed(pw) for v in pair)
    return torch.nn.functional.pad(x, flat)

kernel_name = 'parallel_sum__softmax_full_mha__dense_activation_gelu__prompt'

def setup_inputs():

    _w = (lambda a: (lambda t: t.to(torch.bfloat16) if t.is_floating_point() else t)(torch.as_tensor(a)))
    def _A_setup():
        B, S, D = 1, 2048, 512
        return {
            "x": _w((lambda *s: torch.randn(*s, dtype=torch.bfloat16) * 0.05)(B, S, D)),
            "wqkv": _w((lambda *s: torch.randn(*s, dtype=torch.bfloat16) * 0.05)(D, 3 * D)),
            "wo": _w((lambda *s: torch.randn(*s, dtype=torch.bfloat16) * 0.05)(D, D)),
        }
    _A_in = _A_setup()

    def _B_setup():
        B, S, D, F = 1, 2048, 512, 1376
        return {
            "x": _w((lambda *s: torch.randn(*s, dtype=torch.bfloat16) * 0.05)(B, S, D)),
            "w1": _w((lambda *s: torch.randn(*s, dtype=torch.bfloat16) * 0.8)(D, F) * (D ** -0.5)),
            "b1": _w((lambda *s: torch.randn(*s, dtype=torch.bfloat16) * 12.8)(F) * 0.01),
            "w2": _w((lambda *s: torch.randn(*s, dtype=torch.bfloat16) * 0.8)(F, D) * (F ** -0.5)),
            "b2": _w((lambda *s: torch.randn(*s, dtype=torch.bfloat16) * 12.8)(D) * 0.01),
        }
    _B_in = _B_setup()

    return {
        "A_x": _A_in["x"],
        "A_wqkv": _A_in["wqkv"],
        "A_wo": _A_in["wo"],
        "B_x": _B_in["x"],
        "B_w1": _B_in["w1"],
        "B_b1": _B_in["b1"],
        "B_w2": _B_in["w2"],
        "B_b2": _B_in["b2"],
    }

def reference(A_x, A_wqkv, A_wo, B_x, B_w1, B_b1, B_w2, B_b2):
    def _A_ref(x, wqkv, wo):
        B, S, D = x.shape
        H = 32; Dh = D // H
        qkv = (lambda x, *d: x.permute(*d))((x @ wqkv).reshape(B, S, 3, H, Dh), 2, 0, 3, 1, 4)
        q, k, v = qkv[0], qkv[1], qkv[2]
        scale = Dh ** -0.5
        scores = torch.einsum("bhqd,bhkd->bhqk", q, k) * scale
        p = _softmax(scores, axis=-1)
        o = torch.einsum("bhqk,bhkd->bhqd", p, v)
        return (lambda x, *d: x.permute(*d))(o, 0, 2, 1, 3).reshape(B, S, D) @ wo

    def _B_ref(x, w1, b1, w2, b2):
        h = torch.einsum("bsd,df->bsf", x, w1) + b1
        h = _gelu(h)
        return torch.einsum("bsf,fd->bsd", h, w2) + b2

    x = A_x
    xn = _layernorm(x, axis=-1)
    return x + _A_ref(xn, A_wqkv, A_wo) + _B_ref(xn, B_w1, B_b1, B_w2, B_b2)
```

```python
class Asm:
    def __init__(self):
        self.lines = []
        self.nlabel = 0
    def __call__(self, s):
        for l in s.strip("\n").split("\n"):
            l = l.strip()
            if not l:
                continue
            if l.endswith(":") or l.startswith("."):
                self.lines.append(l)
            else:
                self.lines.append("    " + l)
    def c(self, s):
        self.lines.append("    ; " + s)
    def label(self, base="L"):
        self.nlabel += 1
        return f"{base}_{self.nlabel}"
    def text(self):
        return "\n".join(self.lines) + "\n"

class Regs:
    def __init__(self, prefix, start, limit):
        self.p, self.n, self.limit = prefix, start, limit
        self.hi = start
    def alloc(self, n=1, align=1):
        self.n = (self.n + align - 1) // align * align
        r = self.n
        self.n += n
        assert self.n <= self.limit, f"out of {self.p} regs"
        self.hi = max(self.hi, self.n)
        return r
    def mark(self):
        return self.n
    def release(self, m):
        self.n = m

def v(i, n=1):
    return f"v{i}" if n == 1 else f"v[{i}:{i+n-1}]"
def s(i, n=1):
    return f"s{i}" if n == 1 else f"s[{i}:{i+n-1}]"

def kernel_header(a, name):
    a(f"""
.globl {name}
.p2align 8
.type {name},@function
{name}:
""")

def kernel_desc(name, vgpr, sgpr):
    acc = (vgpr + 3) // 4 * 4
    return f""".amdhsa_kernel {name}
  .amdhsa_next_free_vgpr {vgpr}
  .amdhsa_next_free_sgpr {sgpr}
  .amdhsa_accum_offset {acc}
  .amdhsa_group_segment_fixed_size 0
  .amdhsa_kernarg_size 88
  .amdhsa_user_sgpr_count 2
  .amdhsa_user_sgpr_kernarg_segment_ptr 1
  .amdhsa_system_sgpr_workgroup_id_x 1
.end_amdhsa_kernel
"""
```

```python
import sys, struct
from asmlib import *

NAME = "parallel_sum__softmax_full_mha__dense_activation_gelu__prompt"
WS_Q, WS_K, WS_V, WS_A3 = 0x000000, 0x200000, 0x400000, 0x600000
A3_STEPS = 118
A3_TSTRIDE = A3_STEPS * 1024
WS_A3_BYTES = 64 * A3_TSTRIDE
WS_END = WS_A3 + WS_A3_BYTES
LOG2E = 1.4426950408889634
def f32(x): return "0x%08x" % struct.unpack("<I", struct.pack("<f", x))[0]

def srd(a, d, lo, hi, size):
    a(f"s_mov_b32 {s(d)}, {lo}\ns_mov_b32 {s(d+1)}, {hi}\ns_mov_b32 {s(d+2)}, {size}\ns_mov_b32 {s(d+3)}, 0x00020000")

def gen_k1(a, name):
    S = Regs("s", 14, 100); V = Regs("v", 1, 256)
    kernel_header(a, name)
    END = a.label("K1_END")
    SLOT = 40960
    sW, sMT, sNH, sR, sCP, sFB = [S.alloc() for _ in range(6)]
    sT0, sT1, sT2, sT3 = [S.alloc() for _ in range(4)]
    rX = S.alloc(4, 4); rG = [S.alloc(4, 4) for _ in range(3)]; rB1 = S.alloc(4, 4); rWS = S.alloc(4, 4)
    sOffX = S.alloc(); sOffG = [S.alloc() for _ in range(3)]; sStepG1 = S.alloc()
    sM0X = S.alloc(); sM0G = [S.alloc() for _ in range(3)]
    sSlotI, sSlotC, sIt = S.alloc(), S.alloc(), S.alloc()
    sColF = [None, S.alloc(), S.alloc()]
    sCol0 = S.alloc()
    vL = V.alloc(); vXo = [V.alloc(), V.alloc()]; vWo = [V.alloc() for _ in range(3)]
    vXa = [V.alloc() for _ in range(4)]; vWa = V.alloc()
    cXa = [V.alloc() for _ in range(4)]; cWa = V.alloc()
    vOnes = V.alloc(); vSA = [V.alloc(), V.alloc()]; vCS = [[V.alloc(), V.alloc()] for _ in range(3)]
    vB = [None, V.alloc(), V.alloc()]
    vT = [V.alloc() for _ in range(12)]
    F = [V.alloc(16, 4) for _ in range(4)]
    ACC = [V.alloc(16, 4) for _ in range(3)]
    a(f"""
    s_cmp_ge_u32 s2, 256
    s_cbranch_scc1 {END}
    s_load_dwordx4 s[4:7], s[0:1], 0
    s_load_dwordx4 s[8:11], s[0:1], 32
    s_load_dwordx2 s[12:13], s[0:1], 80
    v_lshrrev_b32 {v(vT[0])}, 6, v0
    v_and_b32 {v(vL)}, 63, v0
    v_readfirstlane_b32 {s(sW)}, {v(vT[0])}
    s_and_b32 {s(sT0)}, s2, 7
    s_lshr_b32 {s(sT1)}, s2, 3
    s_and_b32 {s(sR)}, {s(sT0)}, 1
    s_lshl_b32 {s(sR)}, {s(sR)}, 3
    s_and_b32 {s(sT2)}, {s(sT1)}, 7
    s_add_u32 {s(sR)}, {s(sR)}, {s(sT2)}
    s_lshr_b32 {s(sT1)}, {s(sT1)}, 3
    s_lshr_b32 {s(sFB)}, {s(sT1)}, 1
    s_and_b32 {s(sT1)}, {s(sT1)}, 1
    s_andn2_b32 {s(sCP)}, {s(sT0)}, 1
    s_add_u32 {s(sCP)}, {s(sCP)}, {s(sT1)}
    s_and_b32 {s(sMT)}, {s(sW)}, 3
    s_lshr_b32 {s(sNH)}, {s(sW)}, 2
    """)
    a.c("column bases: A: g0=128cp g1=128cp+64 (Wqkv) g2=64cp (W1); B: g0=1024+64cp (Wqkv), g1=64(8+2cp), g2=64(9+2cp) (W1)")
    a(f"""
    s_lshl_b32 {s(sT0)}, {s(sCP)}, 7
    s_lshl_b32 {s(sT1)}, {s(sCP)}, 6
    s_add_u32 {s(sT2)}, {s(sT1)}, 1024
    s_cmp_eq_u32 {s(sFB)}, 0
    s_cselect_b32 {s(sCol0)}, {s(sT0)}, {s(sT2)}
    s_add_u32 {s(sT2)}, {s(sT0)}, 64
    s_add_u32 {s(sT3)}, {s(sT0)}, 512
    s_cmp_eq_u32 {s(sFB)}, 0
    s_cselect_b32 {s(sOffG[1])}, {s(sT2)}, {s(sT3)}
    s_cselect_b32 {s(sColF[1])}, 0x100000, {s(sT3)}
    s_add_u32 {s(sT3)}, {s(sT0)}, 576
    s_cmp_eq_u32 {s(sFB)}, 0
    s_cselect_b32 {s(sColF[2])}, {s(sT1)}, {s(sT3)}
    s_movk_i32 {s(sT2)}, 3072
    s_cselect_b32 {s(sStepG1)}, {s(sT2)}, 2752
    s_lshl_b32 {s(sOffG[0])}, {s(sCol0)}, 1
    s_lshl_b32 {s(sOffG[1])}, {s(sOffG[1])}, 1
    s_lshl_b32 {s(sOffG[2])}, {s(sColF[2])}, 1
    s_mov_b32 {s(sOffX)}, 0
    """)
    a.c("per-lane DMA source offsets")
    a(f"""
    v_lshrrev_b32 {v(vT[0])}, 3, {v(vL)}
    v_and_b32 {v(vT[1])}, 7, {v(vL)}
    v_lshrrev_b32 {v(vT[2])}, 4, {v(vL)}
    s_lshl_b32 {s(sT0)}, {s(sR)}, 7
    s_lshl_b32 {s(sT1)}, {s(sW)}, 4
    s_add_u32 {s(sT0)}, {s(sT0)}, {s(sT1)}
    v_add_u32 {v(vT[3])}, {s(sT0)}, {v(vT[0])}
    v_lshlrev_b32 {v(vT[3])}, 10, {v(vT[3])}
    v_xor_b32 {v(vT[4])}, {v(vT[1])}, {v(vT[2])}
    v_lshl_add_u32 {v(vXo[0])}, {v(vT[4])}, 4, {v(vT[3])}
    v_xor_b32 {v(vT[4])}, 4, {v(vT[4])}
    v_lshl_add_u32 {v(vXo[1])}, {v(vT[4])}, 4, {v(vT[3])}
    v_add_u32 {v(vXo[1])}, {8192 - 1024}, {v(vXo[1])}
    s_lshl_b32 {s(sT1)}, {s(sW)}, 3
    v_add_u32 {v(vT[3])}, {s(sT1)}, {v(vT[0])}
    v_and_b32 {v(vT[2])}, 1, {v(vT[2])}
    v_lshlrev_b32 {v(vT[2])}, 2, {v(vT[2])}
    v_xor_b32 {v(vT[4])}, {v(vT[1])}, {v(vT[2])}
    v_lshlrev_b32 {v(vT[4])}, 4, {v(vT[4])}
    v_mul_u32_u24 {v(vT[5])}, 3072, {v(vT[3])}
    v_add_u32 {v(vWo[0])}, {v(vT[5])}, {v(vT[4])}
    v_mul_u32_u24 {v(vT[5])}, 2752, {v(vT[3])}
    v_add_u32 {v(vWo[2])}, {v(vT[5])}, {v(vT[4])}
    v_mul_u32_u24 {v(vT[5])}, {s(sStepG1)}, {v(vT[3])}
    v_add_u32 {v(vWo[1])}, {v(vT[5])}, {v(vT[4])}
    s_lshl_b32 {s(sStepG1)}, {s(sStepG1)}, 6
    s_lshl_b32 {s(sM0X)}, {s(sW)}, 11
    s_lshl_b32 {s(sT0)}, {s(sW)}, 10
    s_add_u32 {s(sM0G[0])}, {s(sT0)}, 16384
    s_add_u32 {s(sM0G[1])}, {s(sT0)}, {16384 + 8192}
    s_add_u32 {s(sM0G[2])}, {s(sT0)}, {16384 + 16384}
    s_waitcnt lgkmcnt(0)
    """)
    srd(a, rX, "s4", "s5", 2048 * 1024)
    srd(a, rG[0], "s6", "s7", 512 * 3072)
    srd(a, rB1, "s10", "s11", 2752)
    srd(a, rWS, "s12", "s13", WS_END)
    a(f"""
    s_cmp_ge_u32 {s(sColF[2])}, 1376
    s_cselect_b32 {s(sT0)}, 0, {512 * 2752}
    s_mov_b32 {s(rG[2])}, s8
    s_mov_b32 {s(rG[2]+1)}, s9
    s_mov_b32 {s(rG[2]+2)}, {s(sT0)}
    s_mov_b32 {s(rG[2]+3)}, 0x00020000
    s_cmp_ge_u32 {s(sColF[1])}, 1376
    s_cselect_b32 {s(sT0)}, 0, {512 * 2752}
    s_cmp_eq_u32 {s(sFB)}, 0
    s_cselect_b32 {s(rG[1])}, s6, s8
    s_cselect_b32 {s(rG[1]+1)}, s7, s9
    s_cselect_b32 {s(rG[1]+2)}, {512 * 3072}, {s(sT0)}
    s_mov_b32 {s(rG[1]+3)}, 0x00020000
    """)
    def dma(slot_expr_s):
        a(f"""
        s_add_u32 m0, {slot_expr_s}, {s(sM0X)}
        s_nop 0
        buffer_load_dwordx4 {v(vXo[0])}, {s(rX,4)}, {s(sOffX)} offen lds
        buffer_load_dwordx4 {v(vXo[1])}, {s(rX,4)}, {s(sOffX)} offen offset:1024 lds
        s_add_u32 {s(sOffX)}, {s(sOffX)}, 128
        """)
        for g in range(3):
            step = {0: str(64 * 3072), 1: s(sStepG1), 2: str(64 * 2752)}[g]
            a(f"""
            s_add_u32 m0, {slot_expr_s}, {s(sM0G[g])}
            s_nop 0
            buffer_load_dwordx4 {v(vWo[g])}, {s(rG[g],4)}, {s(sOffG[g])} offen lds
            s_add_u32 {s(sOffG[g])}, {s(sOffG[g])}, {step}
            """)
    a.c("bias loads (oldest vmem ops), then 4 chunks of DMA")
    a(f"""
    v_and_b32 {v(vT[0])}, 31, {v(vL)}
    s_lshl_b32 {s(sT0)}, {s(sNH)}, 5
    v_add_u32 {v(vT[0])}, {s(sT0)}, {v(vT[0])}
    v_and_b32 {v(vT[1])}, 32, {v(vL)}
    v_lshlrev_b32 {v(vT[1])}, 16, {v(vT[1])}
    v_add_u32 {v(vT[0])}, {v(vT[0])}, {v(vT[1])}
    v_add_u32 {v(vT[1])}, {s(sColF[1])}, {v(vT[0])}
    v_add_u32 {v(vT[2])}, {s(sColF[2])}, {v(vT[0])}
    v_lshlrev_b32 {v(vT[1])}, 1, {v(vT[1])}
    v_lshlrev_b32 {v(vT[2])}, 1, {v(vT[2])}
    buffer_load_ushort {v(vB[1])}, {v(vT[1])}, {s(rB1,4)}, 0 offen
    buffer_load_ushort {v(vB[2])}, {v(vT[2])}, {s(rB1,4)}, 0 offen
    """)
    for c in range(4):
        a(f"s_mov_b32 {s(sSlotI)}, {c * SLOT}")
        dma(s(sSlotI))
    a.c("LDS read addresses")
    a(f"""
    v_and_b32 {v(vT[0])}, 31, {v(vL)}
    v_lshrrev_b32 {v(vT[1])}, 5, {v(vL)}
    v_lshrrev_b32 {v(vT[2])}, 1, {v(vT[0])}
    v_and_b32 {v(vT[2])}, 7, {v(vT[2])}
    v_xor_b32 {v(vT[2])}, {v(vT[2])}, {v(vT[1])}
    s_lshl_b32 {s(sT0)}, {s(sMT)}, 12
    v_lshlrev_b32 {v(vT[3])}, 7, {v(vT[0])}
    v_add_u32 {v(vT[3])}, {s(sT0)}, {v(vT[3])}
    v_lshl_add_u32 {v(vXa[0])}, {v(vT[2])}, 4, {v(vT[3])}
    v_xor_b32 {v(vXa[1])}, 32, {v(vXa[0])}
    v_xor_b32 {v(vXa[2])}, 64, {v(vXa[0])}
    v_xor_b32 {v(vXa[3])}, 96, {v(vXa[0])}
    v_and_b32 {v(vT[2])}, 15, {v(vL)}
    v_lshrrev_b32 {v(vT[2])}, 2, {v(vT[2])}
    v_lshl_add_u32 {v(vT[2])}, {v(vT[1])}, 3, {v(vT[2])}
    v_lshlrev_b32 {v(vT[2])}, 7, {v(vT[2])}
    v_lshrrev_b32 {v(vT[3])}, 3, {v(vL)}
    v_and_b32 {v(vT[3])}, 1, {v(vT[3])}
    v_xor_b32 {v(vT[3])}, {s(sNH)}, {v(vT[3])}
    v_lshl_add_u32 {v(vT[2])}, {v(vT[3])}, 6, {v(vT[2])}
    v_lshrrev_b32 {v(vT[3])}, 4, {v(vL)}
    v_and_b32 {v(vT[3])}, 1, {v(vT[3])}
    v_lshl_add_u32 {v(vT[2])}, {v(vT[3])}, 5, {v(vT[2])}
    v_and_b32 {v(vT[3])}, 3, {v(vL)}
    v_lshl_add_u32 {v(vWa)}, {v(vT[3])}, 3, {v(vT[2])}
    v_mov_b32 {v(vOnes)}, 0x3f803f80
    v_mov_b32 {v(vSA[0])}, 0
    v_mov_b32 {v(vSA[1])}, 0
    """)
    for g in range(3):
        a(f"v_mov_b32 {v(vCS[g][0])}, 0\nv_mov_b32 {v(vCS[g][1])}, 0")
        for i in range(16):
            a(f"v_mov_b32 {v(ACC[g]+i)}, 0")
    for i in range(16):
        a(f"v_mov_b32 {v(F[3]+i)}, 0")
    a(f"""
    s_cmp_eq_u32 {s(sNH)}, 1
    s_cselect_b64 vcc, -1, 0
    s_mov_b32 {s(sIt)}, 0
    s_mov_b32 {s(sSlotC)}, 0
    s_mov_b32 {s(sSlotI)}, {-SLOT & 0xffffffff}
    """)
    LB = a.label("K1_B"); LEPI = a.label("K1_EPI")
    a(f"s_cmp_eq_u32 {s(sFB)}, 1\ns_cbranch_scc1 {LB}")

    def reads(st):
        a(f"ds_read_b128 {v(F[st],4)}, {v(cXa[st])}")
        for g in range(3):
            for j in range(2):
                a(f"ds_read_b64_tr_b16 {v(F[st]+4+4*g+2*j,2)}, {v(cWa)} offset:{16384 + g*8192 + st*2048 + j*512}")
    def mfmas(st, flavB):
        for g in range(3):
            w, x = v(F[st]+4+4*g,4), v(F[st],4)
            if flavB and g == 0:
                a(f"v_mfma_f32_32x32x16_bf16 {v(ACC[g],16)}, {x}, {w}, {v(ACC[g],16)}")
            else:
                a(f"v_mfma_f32_32x32x16_bf16 {v(ACC[g],16)}, {w}, {x}, {v(ACC[g],16)}")
    def stats(st):
        l1, l2, l3 = a.label("K1_s"), a.label("K1_s"), a.label("K1_s")
        a(f"s_cbranch_vccnz {l1}")
        for j in range(4):
            a(f"v_dot2_f32_bf16 {v(vSA[j%2])}, {v(F[st]+j)}, {v(vOnes)}, {v(vSA[j%2])}")
        a(f"s_branch {l2}\n{l1}:")
        for j in range(4):
            a(f"v_dot2_f32_bf16 {v(vSA[j%2])}, {v(F[st]+j)}, {v(F[st]+j)}, {v(vSA[j%2])}")
        a(f"{l2}:\ns_cmp_lg_u32 {s(sMT)}, {st}\ns_cbranch_scc1 {l3}")
        for j in range(4):
            for g in range(3):
                a(f"v_dot2_f32_bf16 {v(vCS[g][j%2])}, {v(F[st]+4+4*g+j)}, {v(vOnes)}, {v(vCS[g][j%2])}")
        a(f"{l3}:")
    def mainloop(flavB):
        LOOP = a.label("K1_LOOP"); w15, w5, w0, wd, noi = [a.label("K1_w") for _ in range(5)]
        a(f"""
        {LOOP}:
        s_cmp_eq_u32 {s(sIt)}, 0
        s_cbranch_scc1 {w15}
        s_cmp_eq_u32 {s(sIt)}, 6
        s_cbranch_scc1 {w5}
        s_cmp_eq_u32 {s(sIt)}, 7
        s_cbranch_scc1 {w0}
        s_waitcnt vmcnt(10)
        s_branch {wd}
        {w15}:
        s_waitcnt vmcnt(15)
        s_branch {wd}
        {w5}:
        s_waitcnt vmcnt(5)
        s_branch {wd}
        {w0}:
        s_waitcnt vmcnt(0)
        {wd}:
        s_barrier
        """)
        for st in range(4):
            a(f"v_add_u32 {v(cXa[st])}, {s(sSlotC)}, {v(vXa[st])}")
        a(f"v_add_u32 {v(cWa)}, {s(sSlotC)}, {v(vWa)}")
        reads(0); reads(1)
        a(f"""
        s_sub_u32 {s(sT0)}, {s(sIt)}, 1
        s_cmp_ge_u32 {s(sT0)}, 4
        s_cbranch_scc1 {noi}
        """)
        dma(s(sSlotI))
        a(f"{noi}:")
        mfmas(3, flavB); stats(3)
        a("s_waitcnt lgkmcnt(7)")
        mfmas(0, flavB); reads(2); stats(0)
        a("s_waitcnt lgkmcnt(7)")
        mfmas(1, flavB); reads(3); stats(1)
        a("s_waitcnt lgkmcnt(7)")
        mfmas(2, flavB); stats(2)
        a(f"""
        s_mov_b32 {s(sSlotI)}, {s(sSlotC)}
        s_add_u32 {s(sSlotC)}, {s(sSlotC)}, {SLOT}
        s_cmp_eq_u32 {s(sSlotC)}, {4*SLOT}
        s_cselect_b32 {s(sSlotC)}, 0, {s(sSlotC)}
        s_add_u32 {s(sIt)}, {s(sIt)}, 1
        s_waitcnt lgkmcnt(0)
        s_cmp_lt_u32 {s(sIt)}, 8
        s_cbranch_scc1 {LOOP}
        """)
        mfmas(3, flavB); stats(3)
    mainloop(False)
    a(f"s_branch {LEPI}\n{LB}:")
    mainloop(True)
    a(f"{LEPI}:")
    a.c("stats exchange: rows[128][4] f32 at 0, cs[192*2][4] f32 at 2048")
    a(f"""
    s_nop 2
    v_add_f32 {v(vSA[0])}, {v(vSA[0])}, {v(vSA[1])}
    v_add_f32 {v(vCS[0][0])}, {v(vCS[0][0])}, {v(vCS[0][1])}
    v_add_f32 {v(vCS[1][0])}, {v(vCS[1][0])}, {v(vCS[1][1])}
    v_add_f32 {v(vCS[2][0])}, {v(vCS[2][0])}, {v(vCS[2][1])}
    v_and_b32 {v(vT[0])}, 31, {v(vL)}
    v_lshrrev_b32 {v(vT[1])}, 5, {v(vL)}
    s_lshl_b32 {s(sT0)}, {s(sMT)}, 9
    v_lshl_add_u32 {v(vT[2])}, {v(vT[0])}, 4, {s(sT0)}
    s_lshl_b32 {s(sT1)}, {s(sNH)}, 3
    v_lshl_add_u32 {v(vT[3])}, {v(vT[1])}, 2, {v(vT[2])}
    v_add_u32 {v(vT[3])}, {s(sT1)}, {v(vT[3])}
    s_lshl_b32 {s(sT1)}, {s(sNH)}, 10
    v_lshl_add_u32 {v(vT[4])}, {v(vT[0])}, 5, {s(sT1)}
    v_lshl_add_u32 {v(vT[4])}, {v(vT[1])}, 4, {v(vT[4])}
    s_lshl_b32 {s(sT1)}, {s(sMT)}, 2
    v_add_u32 {v(vT[5])}, {s(sT1)}, {v(vT[4])}
    ds_write_b32 {v(vT[3])}, {v(vSA[0])}
    ds_write_b32 {v(vT[5])}, {v(vCS[0][0])} offset:{2048}
    ds_write_b32 {v(vT[5])}, {v(vCS[1][0])} offset:{2048 + 2048}
    ds_write_b32 {v(vT[5])}, {v(vCS[2][0])} offset:{2048 + 4096}
    s_waitcnt lgkmcnt(0)
    s_barrier
    ds_read_b128 {v(F[0],4)}, {v(vT[2])}
    ds_read_b128 {v(F[0]+4,4)}, {v(vT[4])} offset:{2048}
    ds_read_b128 {v(F[0]+8,4)}, {v(vT[4])} offset:{2048 + 2048}
    ds_read_b128 {v(F[0]+12,4)}, {v(vT[4])} offset:{2048 + 4096}
    s_waitcnt lgkmcnt(3)
    """)
    vMean, vVar, vSD, vRstd = vT[6], vT[7], vT[8], vT[9]
    XA = F[1]
    WA = [F[1]+4, F[1]+8, F[1]+12]
    a(f"""
    v_add_f32 {v(vMean)}, {v(F[0])}, {v(F[0]+1)}
    v_add_f32 {v(vVar)}, {v(F[0]+2)}, {v(F[0]+3)}
    v_mul_f32 {v(vMean)}, {f32(1/512)}, {v(vMean)}
    v_mul_f32 {v(vVar)}, {f32(1/512)}, {v(vVar)}
    v_fma_f32 {v(vVar)}, -{v(vMean)}, {v(vMean)}, {v(vVar)}
    v_max_f32 {v(vVar)}, 0, {v(vVar)}
    v_cvt_pk_bf16_f32 {v(vT[10])}, -{v(vMean)}, {v(vVar)}
    v_and_b32 {v(vVar)}, 0xffff0000, {v(vT[10])}
    v_add_f32 {v(vVar)}, {f32(1e-5)}, {v(vVar)}
    v_cvt_pk_bf16_f32 {v(vVar)}, {v(vVar)}, {v(vVar)}
    v_and_b32 {v(vVar)}, 0xffff0000, {v(vVar)}
    v_sqrt_f32 {v(vSD)}, {v(vVar)}
    v_and_b32 {v(vT[10])}, 0xffff, {v(vT[10])}
    v_cvt_pk_bf16_f32 {v(vSD)}, {v(vSD)}, {v(vSD)}
    v_and_b32 {v(vSD)}, 0xffff0000, {v(vSD)}
    v_rcp_f32 {v(vRstd)}, {v(vSD)}
    v_lshl_or_b32 {v(XA)}, {v(vT[10])}, 16, {v(vT[10])}
    v_or_b32 {v(XA+1)}, {v(vSD)}, {v(vT[10])}
    v_mov_b32 {v(XA+2)}, 0
    v_mov_b32 {v(XA+3)}, 0
    s_waitcnt lgkmcnt(0)
    """)
    a.c("W-side augmented fragments: [cs_hi, cs_mid, cs_lo, bias]")
    for g in range(3):
        b = F[0] + 4 + 4*g
        a(f"""
        v_add_f32 {v(b)}, {v(b)}, {v(b+1)}
        v_add_f32 {v(b+2)}, {v(b+2)}, {v(b+3)}
        v_add_f32 {v(b)}, {v(b)}, {v(b+2)}
        v_and_b32 {v(b+1)}, 0xffff0000, {v(b)}
        v_sub_f32 {v(b+2)}, {v(b)}, {v(b+1)}
        v_and_b32 {v(b+3)}, 0xffff0000, {v(b+2)}
        v_sub_f32 {v(b+2)}, {v(b+2)}, {v(b+3)}
        v_lshrrev_b32 {v(b+1)}, 16, {v(b+1)}
        v_or_b32 {v(WA[g])}, {v(b+1)}, {v(b+3)}
        v_lshrrev_b32 {v(b+2)}, 16, {v(b+2)}
        """)
        if g == 0:
            a(f"v_mov_b32 {v(WA[g]+1)}, {v(b+2)}")
        else:
            a(f"v_lshl_or_b32 {v(WA[g]+1)}, {v(vB[g])}, 16, {v(b+2)}")
        a(f"v_mov_b32 {v(WA[g]+2)}, 0\nv_mov_b32 {v(WA[g]+3)}, 0")
    LVB = a.label("K1_EB"); LF2 = a.label("K1_F2")
    vAd, vAd2 = vT[0], vT[1]
    P = F[2]
    sTT = sT3
    a(f"""
    s_lshl_b32 {s(sTT)}, {s(sR)}, 2
    s_add_u32 {s(sTT)}, {s(sTT)}, {s(sMT)}
    v_mfma_f32_32x32x16_bf16 {v(ACC[1],16)}, {v(WA[1],4)}, {v(XA,4)}, {v(ACC[1],16)}
    v_mfma_f32_32x32x16_bf16 {v(ACC[2],16)}, {v(WA[2],4)}, {v(XA,4)}, {v(ACC[2],16)}
    s_cmp_eq_u32 {s(sFB)}, 1
    s_cbranch_scc1 {LVB}
    """)
    def ffn_tile(g):
        skip = a.label("K1_skip")
        c1 = -2 * 0.7978845608028654 * LOG2E
        c2 = c1 * 0.044715
        vC1, vC2 = vT[2], vT[4]
        a(f"""
        s_lshl_b32 {s(sT0)}, {s(sNH)}, 5
        s_add_u32 {s(sT0)}, {s(sT0)}, {s(sColF[g])}
        s_cmp_ge_u32 {s(sT0)}, 1376
        s_cbranch_scc1 {skip}
        s_lshl_b32 {s(sT0)}, {s(sT0)}, 6
        s_mul_i32 {s(sT1)}, {s(sTT)}, {A3_TSTRIDE}
        s_add_u32 {s(sT0)}, {s(sT0)}, {s(sT1)}
        s_add_u32 {s(sT0)}, {s(sT0)}, {WS_A3 + 32*1024}
        """)
        A = ACC[g]; T = F[3]; T2 = F[0]
        for i in range(0, 16, 2):
            a(f"v_mul_f32 {v(T+i)}, {v(A+i)}, {v(A+i)}\nv_mul_f32 {v(T+i+1)}, {v(A+i+1)}, {v(A+i+1)}")
        for i in range(16):
            a(f"v_fma_f32 {v(T+i)}, {v(T+i)}, {v(vGC2)}, {v(vGC1)}")
        for i in range(16):
            a(f"v_mul_f32 {v(T+i)}, {v(T+i)}, {v(A+i)}")
        for i in range(16):
            a(f"v_exp_f32 {v(T+i)}, {v(T+i)}")
        for i in range(16):
            a(f"v_fma_f32 {v(T+i)}, {v(T+i)}, {v(vSD)}, {v(vSD)}")
        for i in range(16):
            a(f"v_rcp_f32 {v(T+i)}, {v(T+i)}")
        for i in range(16):
            a(f"v_mul_f32 {v(T+i)}, {v(T+i)}, {v(A+i)}")
        for i in range(8):
            a(f"v_cvt_pk_bf16_f32 {v(T2+i)}, {v(T+2*i)}, {v(T+2*i+1)}")
        a(f"""
        buffer_store_dwordx4 {v(T2,4)}, {v(vAd)}, {s(rWS,4)}, {s(sT0)} offen
        buffer_store_dwordx4 {v(T2+4,4)}, {v(vAd)}, {s(rWS,4)}, {s(sT0)} offen offset:1024
        s_nop 1
        {skip}:
        """)
    vGC1, vGC2 = vT[2], vT[3]
    def gelu_consts():
        c1 = -2 * 0.7978845608028654 * LOG2E
        c2 = c1 * 0.044715
        a(f"""
        v_mul_f32 {v(vGC1)}, {f32(c1)}, {v(vRstd)}
        v_mul_f32 {v(vGC2)}, {v(vRstd)}, {v(vRstd)}
        v_mul_f32 {v(vGC2)}, {v(vGC2)}, {v(vRstd)}
        v_mul_f32 {v(vGC2)}, {f32(c2)}, {v(vGC2)}
        v_lshlrev_b32 {v(vAd)}, 4, {v(vL)}
        """)
    a(f"""
    v_mfma_f32_32x32x16_bf16 {v(ACC[0],16)}, {v(WA[0],4)}, {v(XA,4)}, {v(ACC[0],16)}
    s_cmp_lt_u32 {s(sCP)}, 4
    s_cselect_b32 {s(sT0)}, {f32(0.25*LOG2E)}, 1.0
    s_cselect_b32 {s(sT1)}, 0, 12
    v_mul_f32 {v(vT[4])}, {s(sT0)}, {v(vRstd)}
    v_lshrrev_b32 {v(vT[5])}, 1, {v(vL)}
    v_xor_b32 {v(vT[5])}, {v(vT[5])}, {v(vL)}
    v_and_b32 {v(vT[5])}, 4, {v(vT[5])}
    v_mul_u32_u24 {v(vT[5])}, 3, {v(vT[5])}
    v_and_b32 {v(vT[5])}, {s(sT1)}, {v(vT[5])}
    v_xor_b32 {v(vT[5])}, {v(vT[5])}, {v(vL)}
    v_lshlrev_b32 {v(vAd2)}, 4, {v(vT[5])}
    s_lshl_b32 {s(sT0)}, {s(sNH)}, 5
    s_add_u32 {s(sT0)}, {s(sT0)}, {s(sCol0)}
    s_lshl_b32 {s(sT0)}, {s(sT0)}, 12
    s_lshl_b32 {s(sT1)}, {s(sTT)}, 10
    s_add_u32 {s(sT0)}, {s(sT0)}, {s(sT1)}
    s_add_u32 {s(sT1)}, {s(sT0)}, 65536
    """)
    for g in (1, 0):
        A = ACC[g]
        for i in range(16):
            a(f"v_mul_f32 {v(A+i)}, {v(A+i)}, {v(vT[4])}")
        Pg = P + 8*g
        for i in range(8):
            a(f"v_cvt_pk_bf16_f32 {v(Pg+i)}, {v(A+2*i)}, {v(A+2*i+1)}")
        off = 64*4096*g
        a(f"""
        s_add_u32 {s(sR)}, {s(sT0)}, {off}
        s_add_u32 {s(sCP)}, {s(sT1)}, {off}
        buffer_store_dwordx4 {v(Pg,4)}, {v(vAd2)}, {s(rWS,4)}, {s(sR)} offen
        buffer_store_dwordx4 {v(Pg+4,4)}, {v(vAd2)}, {s(rWS,4)}, {s(sCP)} offen
        """)
    gelu_consts()
    a(f"s_branch {LF2}")
    a(f"{LVB}:")
    a(f"""
    v_mfma_f32_32x32x16_bf16 {v(ACC[0],16)}, {v(XA,4)}, {v(WA[0],4)}, {v(ACC[0],16)}
    s_lshl_b32 {s(sT0)}, {s(sW)}, 7
    s_add_u32 {s(sT0)}, {s(sT0)}, 16384
    v_and_b32 {v(vT[4])}, 31, {v(vL)}
    v_lshl_add_u32 {v(vT[5])}, {v(vT[4])}, 2, {s(sT0)}
    ds_write_b32 {v(vT[5])}, {v(vRstd)}
    v_lshrrev_b32 {v(vT[5])}, 5, {v(vL)}
    v_lshl_add_u32 {v(vT[10])}, {v(vT[5])}, 4, {s(sT0)}
    s_waitcnt lgkmcnt(0)
    ds_read_b128 {v(F[3],4)}, {v(vT[10])}
    ds_read_b128 {v(F[3]+4,4)}, {v(vT[10])} offset:32
    ds_read_b128 {v(F[3]+8,4)}, {v(vT[10])} offset:64
    ds_read_b128 {v(F[3]+12,4)}, {v(vT[10])} offset:96
    v_lshrrev_b32 {v(vT[10])}, 4, {v(vT[4])}
    v_lshlrev_b32 {v(vT[10])}, 16, {v(vT[10])}
    v_and_b32 {v(vT[4])}, 15, {v(vT[4])}
    v_lshl_add_u32 {v(vT[10])}, {v(vT[4])}, 4, {v(vT[10])}
    v_lshl_add_u32 {v(vAd2)}, {v(vT[5])}, 8, {v(vT[10])}
    s_lshl_b32 {s(sT0)}, {s(sNH)}, 5
    s_add_u32 {s(sT0)}, {s(sT0)}, {s(sCol0)}
    s_lshl_b32 {s(sT0)}, {s(sT0)}, 12
    s_lshl_b32 {s(sT1)}, {s(sTT)}, 10
    s_add_u32 {s(sT0)}, {s(sT0)}, {s(sT1)}
    s_waitcnt lgkmcnt(0)
    """)
    A = ACC[0]
    for i in range(16):
        a(f"v_mul_f32 {v(A+i)}, {v(A+i)}, {v(F[3]+i)}")
    for i in range(8):
        a(f"v_cvt_pk_bf16_f32 {v(P+i)}, {v(A+2*i)}, {v(A+2*i+1)}")
    a(f"""
    buffer_store_dwordx4 {v(P,4)}, {v(vAd2)}, {s(rWS,4)}, {s(sT0)} offen
    buffer_store_dwordx4 {v(P+4,4)}, {v(vAd2)}, {s(rWS,4)}, {s(sT0)} offen offset:512
    """)
    gelu_consts()
    ffn_tile(1)
    a(f"{LF2}:")
    ffn_tile(2)
    a(f"{END}:\ns_endpgm")
    return V.hi, S.hi

def gen_k2(a, name):
    S = Regs("s", 6, 100); V = Regs("v", 1, 256)
    kernel_header(a, name)
    END = a.label("K2_END")
    sW, sH, sTT, sT0, sT1, sIt, sBar, sPass = [S.alloc() for _ in range(8)]
    rWS = S.alloc(4, 4); sMask = S.alloc(2, 2)
    vL16 = V.alloc(); vKa = V.alloc(); vVa = V.alloc(); vIdx = V.alloc(); vT = [V.alloc() for _ in range(4)]
    Q = V.alloc(4, 4); K = V.alloc(4, 4); V1 = V.alloc(4, 4); V2 = V.alloc(4, 4)
    SB = [V.alloc(16, 4), V.alloc(16, 4)]; O = V.alloc(16, 4); C = V.alloc(16, 4)
    a(f"""
    s_cmp_ge_u32 s2, 256
    s_cbranch_scc1 {END}
    s_load_dwordx2 s[4:5], s[0:1], 80
    v_lshrrev_b32 {v(vT[0])}, 6, v0
    v_and_b32 {v(vT[1])}, 63, v0
    v_readfirstlane_b32 {s(sW)}, {v(vT[0])}
    v_lshlrev_b32 {v(vL16)}, 4, {v(vT[1])}
    s_and_b32 {s(sH)}, s2, 7
    s_lshl_b32 {s(sH)}, {s(sH)}, 2
    s_lshr_b32 {s(sT0)}, s2, 3
    s_and_b32 {s(sT1)}, {s(sT0)}, 3
    s_add_u32 {s(sH)}, {s(sH)}, {s(sT1)}
    s_lshr_b32 {s(sTT)}, s2, 5
    s_lshl_b32 {s(sTT)}, {s(sTT)}, 3
    s_add_u32 {s(sTT)}, {s(sTT)}, {s(sW)}
    s_waitcnt lgkmcnt(0)
    """)
    srd(a, rWS, "s4", "s5", WS_END)
    a.c("Q fragment, then K/V DMA: stage 1 = tiles 0..15, stage 2 = rest")
    a(f"""
    s_lshl_b32 {s(sT0)}, {s(sH)}, 16
    s_lshl_b32 {s(sT1)}, {s(sTT)}, 10
    s_add_u32 {s(sT1)}, {s(sT1)}, {s(sT0)}
    buffer_load_dwordx4 {v(Q,4)}, {v(vL16)}, {s(rWS,4)}, {s(sT1)} offen
    s_lshr_b32 {s(sT1)}, {s(sW)}, 2
    s_lshl_b32 {s(sIt)}, {s(sT1)}, 21
    s_add_u32 {s(sT0)}, {s(sT0)}, {s(sIt)}
    s_add_u32 {s(sT0)}, {s(sT0)}, {WS_K}
    s_lshl_b32 {s(sT1)}, {s(sT1)}, 16
    s_and_b32 {s(sIt)}, {s(sW)}, 3
    s_lshl_b32 {s(sIt)}, {s(sIt)}, 12
    s_add_u32 {s(sT0)}, {s(sT0)}, {s(sIt)}
    s_add_u32 {s(sT1)}, {s(sT1)}, {s(sIt)}
    """)
    for st in range(4):
        a(f"s_mov_b32 m0, {s(sT1)}\ns_nop 0")
        for i in range(4):
            a(f"buffer_load_dwordx4 {v(vL16)}, {s(rWS,4)}, {s(sT0)} offen offset:{i*1024} lds")
        if st < 3:
            a(f"s_add_u32 {s(sT0)}, {s(sT0)}, 16384\ns_add_u32 {s(sT1)}, {s(sT1)}, 16384")
    a(f"""
    v_mov_b32 {v(vIdx)}, 0xdddddddd
    s_mov_b32 {s(sMask)}, 0x0000ffff
    s_mov_b32 {s(sMask+1)}, 0x0000ffff
    v_and_b32 {v(vT[0])}, 15, {v(vT[1])}
    v_lshrrev_b32 {v(vT[2])}, 5, {v(vT[1])}
    v_lshlrev_b32 {v(vT[2])}, 8, {v(vT[2])}
    v_lshl_add_u32 {v(vT[2])}, {v(vT[0])}, 4, {v(vT[2])}
    v_add_u32 {v(vT[3])}, 65536, {v(vT[2])}
    v_and_b32 {v(vT[0])}, 27, {v(vT[1])}
    v_cmp_eq_u32 vcc, 16, {v(vT[0])}
    v_mov_b32 {v(vT[2])}, 0x3f803f80
    s_mov_b32 {s(sBar)}, 3
    s_mov_b32 {s(sPass)}, 0
    v_cndmask_b32 {v(vT[2])}, 0, {v(vT[2])}, vcc
    """)
    for i in range(4):
        a(f"v_mov_b32 {v(V1+i)}, {v(vT[2])}\nv_mov_b32 {v(V2+i)}, {v(vT[2])}")
    a(f"""
    s_waitcnt vmcnt(12)
    s_barrier
    ds_read_b128 {v(K,4)}, {v(vL16)}
    s_waitcnt lgkmcnt(0)
    v_mfma_f32_32x32x16_bf16 {v(SB[0],16)}, {v(K,4)}, {v(Q,4)}, 0
    s_nop 15
    """)
    def rowmax(src, dst, first):
        k = 0
        if first:
            a(f"v_max3_f32 {v(dst)}, {v(src)}, {v(src+1)}, {v(src+2)}"); k = 3
        while k < 16:
            if k + 1 < 16:
                a(f"v_max3_f32 {v(dst)}, {v(dst)}, {v(src+k)}, {v(src+k+1)}"); k += 2
            else:
                a(f"v_max_f32 {v(dst)}, {v(dst)}, {v(src+k)}"); k += 1
    rowmax(SB[0], vT[0], True)
    LSTART = a.label("K2_START"); LOOP = a.label("K2_LOOP"); nob = a.label("K2_nob"); DONE = a.label("K2_DONE")
    a(f"""
    {LSTART}:
    v_mov_b32 {v(vT[1])}, {v(vT[0])}
    s_nop 1
    v_permlane32_swap_b32 {v(vT[0])}, {v(vT[1])}
    v_mov_b32 {v(vKa)}, {v(vL16)}
    v_mov_b32 {v(vVa)}, {v(vT[3])}
    v_max_f32 {v(vT[0])}, {v(vT[0])}, {v(vT[1])}
    """)
    for i in range(16):
        a(f"v_sub_f32 {v(C+i)}, 0, {v(vT[0])}")
    for i in range(16):
        a(f"v_mov_b32 {v(O+i)}, 0")
    for i in range(8, 16):
        a(f"v_mov_b32 {v(SB[1]+i)}, 0")
    a(f"""
    v_mfma_f32_32x32x16_bf16 {v(SB[0],16)}, {v(K,4)}, {v(Q,4)}, {v(C,16)}
    s_mov_b64 exec, {s(sMask,2)}
    ds_read_b128 {v(V2,4)}, {v(vVa)}
    s_mov_b64 exec, -1
    ds_read_b128 {v(K,4)}, {v(vKa)} offset:1024
    s_mov_b64 exec, {s(sMask,2)}
    ds_read_b128 {v(V1,4)}, {v(vVa)}
    s_mov_b64 exec, -1
    s_mov_b32 {s(sIt)}, 0
    s_nop 3
    .p2align 3
    {LOOP}:
    s_cmp_lg_u32 {s(sIt)}, {s(sBar)}
    s_cbranch_scc1 {nob}
    s_waitcnt vmcnt(0)
    s_barrier
    {nob}:
    """)
    U = 4
    for t in range(U):
        cur, oth = SB[t % 2], SB[(t + 1) % 2]
        e = lambda i: a(f"v_exp_f32 {v(cur+i)}, {v(cur+i)}")
        e(0); e(1)
        a(f"s_waitcnt lgkmcnt(2)")
        a(f"v_smfmac_f32_32x32x32_bf16 {v(O,16)}, {v(V2,4)}, {v(oth+8,8)}, {v(vIdx)}")
        e(2)
        a(f"s_mov_b64 exec, {s(sMask,2)}\nds_read_b128 {v(V2,4)}, {v(vVa)} offset:{t*1024 + 512}\ns_mov_b64 exec, -1")
        e(3); e(4); e(5)
        a(f"s_waitcnt lgkmcnt(2)")
        a(f"v_mfma_f32_32x32x16_bf16 {v(oth,16)}, {v(K,4)}, {v(Q,4)}, {v(C,16)}")
        e(6)
        a(f"ds_read_b128 {v(K,4)}, {v(vKa)} offset:{(t+2)*1024}")
        e(7); e(8); e(9); e(10)
        a(f"s_waitcnt lgkmcnt(2)")
        a(f"v_smfmac_f32_32x32x32_bf16 {v(O,16)}, {v(V1,4)}, {v(cur,8)}, {v(vIdx)}")
        e(11)
        a(f"s_mov_b64 exec, {s(sMask,2)}\nds_read_b128 {v(V1,4)}, {v(vVa)} offset:{(t+1)*1024}\ns_mov_b64 exec, -1")
        e(12); e(13)
        if t == U - 1:
            a(f"v_add_u32 {v(vKa)}, {U*1024}, {v(vKa)}\nv_add_u32 {v(vVa)}, {U*1024}, {v(vVa)}")
            a(f"s_add_u32 {s(sIt)}, {s(sIt)}, 1\ns_cmp_lt_u32 {s(sIt)}, {64//U}")
        e(14); e(15)
    a(f"""
    s_cbranch_scc1 {LOOP}
    s_waitcnt lgkmcnt(0)
    s_nop 0
    v_smfmac_f32_32x32x32_bf16 {v(O,16)}, {v(V2,4)}, {v(SB[1]+8,8)}, {v(vIdx)}
    s_mov_b32 {s(sBar)}, -1
    s_cmp_lg_u32 {s(sPass)}, 0
    s_nop 15
    s_cbranch_scc1 {DONE}
    """)
    a.c("stand-in max was the max of the first key tile: verify nothing overflowed, else redo with the true max")
    a(f"""
    v_max3_f32 {v(vT[0])}, |{v(O)}|, |{v(O+1)}|, |{v(O+2)}|
    v_max3_f32 {v(vT[0])}, {v(vT[0])}, |{v(O+3)}|, |{v(O+4)}|
    v_max3_f32 {v(vT[0])}, {v(vT[0])}, |{v(O+5)}|, |{v(O+6)}|
    v_max_f32 {v(vT[0])}, {v(vT[0])}, |{v(O+7)}|
    v_add_f32 {v(vT[1])}, {v(O)}, {v(O+1)}
    v_add_f32 {v(vT[2])}, {v(O+2)}, {v(O+3)}
    v_add_f32 {v(vT[1])}, {v(vT[1])}, {v(O+4)}
    v_add_f32 {v(vT[2])}, {v(vT[2])}, {v(O+5)}
    v_add_f32 {v(vT[1])}, {v(vT[1])}, {v(O+6)}
    v_add_f32 {v(vT[2])}, {v(vT[2])}, {v(O+7)}
    v_add_f32 {v(vT[1])}, {v(vT[1])}, {v(vT[2])}
    s_mov_b32 {s(sT0)}, {f32(2.0**60)}
    s_mov_b32 {s(sT1)}, {f32(2.0**120)}
    v_cmp_nlt_f32 vcc, {v(O+8)}, {s(sT0)}
    v_cmp_nlt_f32 s[4:5], {v(vT[0])}, {s(sT1)}
    s_or_b64 vcc, vcc, s[4:5]
    v_cmp_u_f32 s[4:5], {v(vT[1])}, {v(vT[1])}
    s_or_b64 vcc, vcc, s[4:5]
    s_cbranch_vccz {DONE}
    """)
    ML = a.label("K2_MAXLOOP")
    a(f"""
    s_mov_b32 {s(sPass)}, 1
    v_mov_b32 {v(vKa)}, {v(vL16)}
    v_mov_b32 {v(vT[0])}, 0xff800000
    s_mov_b32 {s(sIt)}, 0
    {ML}:
    ds_read_b128 {v(K,4)}, {v(vKa)}
    v_add_u32 {v(vKa)}, 1024, {v(vKa)}
    s_waitcnt lgkmcnt(0)
    v_mfma_f32_32x32x16_bf16 {v(SB[0],16)}, {v(K,4)}, {v(Q,4)}, 0
    s_nop 15
    """)
    rowmax(SB[0], vT[0], False)
    a(f"""
    s_add_u32 {s(sIt)}, {s(sIt)}, 1
    s_cmp_lt_u32 {s(sIt)}, 64
    s_cbranch_scc1 {ML}
    ds_read_b128 {v(K,4)}, {v(vL16)}
    s_waitcnt lgkmcnt(0)
    s_branch {LSTART}
    {DONE}:
    v_rcp_f32 {v(vT[0])}, {v(O+8)}
    s_mul_i32 {s(sT0)}, {s(sTT)}, {A3_TSTRIDE}
    s_lshl_b32 {s(sT1)}, {s(sH)}, 10
    s_add_u32 {s(sT0)}, {s(sT0)}, {s(sT1)}
    s_add_u32 {s(sT0)}, {s(sT0)}, {WS_A3}
    """)
    for i in range(8):
        a(f"v_mul_f32 {v(O+i)}, {v(O+i)}, {v(vT[0])}")
    for i in range(4):
        a(f"v_cvt_pk_bf16_f32 {v(K+i)}, {v(O+2*i)}, {v(O+2*i+1)}")
    a(f"""
    buffer_store_dwordx4 {v(K,4)}, {v(vL16)}, {s(rWS,4)}, {s(sT0)} offen
    {END}:
    s_endpgm
    """)
    return V.hi, S.hi

def gen_k3(a, name):
    S = Regs("s", 16, 100); V = Regs("v", 1, 256)
    kernel_header(a, name)
    END = a.label("K3_END")
    NCH, NSLOT, SLOT = 30, 8, 16384
    EPI = NSLOT * SLOT
    sW, sTM, sTN, sT0, sT1, sIt, sSlotI, sSlotC, sOffA, sOffB, sM0A, sM0B = [S.alloc() for _ in range(12)]
    rWS = S.alloc(4, 4); rB = S.alloc(4, 4); rX = S.alloc(4, 4); rOut = S.alloc(4, 4); rB2 = S.alloc(4, 4)
    vL = V.alloc(); vL16 = V.alloc(); vBo = V.alloc(); vAa = V.alloc(); vBa = V.alloc(); cAa = V.alloc(); cBa = V.alloc()
    vT = [V.alloc() for _ in range(6)]
    vXr = V.alloc(4, 4); vB2 = V.alloc(4, 4)
    FA = [V.alloc(4, 4) for _ in range(2)]; FB = [V.alloc(4, 4) for _ in range(2)]
    ACC = V.alloc(16, 4); R = V.alloc(16, 4)
    a(f"""
    s_cmp_ge_u32 s2, 256
    s_cbranch_scc1 {END}
    s_load_dwordx2 s[4:5], s[0:1], 0
    s_load_dwordx2 s[6:7], s[0:1], 16
    s_load_dwordx4 s[8:11], s[0:1], 48
    s_load_dwordx2 s[12:13], s[0:1], 64
    s_load_dwordx2 s[14:15], s[0:1], 80
    v_lshrrev_b32 {v(vT[0])}, 6, v0
    v_and_b32 {v(vL)}, 63, v0
    v_readfirstlane_b32 {s(sW)}, {v(vT[0])}
    v_lshlrev_b32 {v(vL16)}, 4, {v(vL)}
    s_and_b32 {s(sT0)}, s2, 7
    s_lshr_b32 {s(sT1)}, s2, 3
    s_lshl_b32 {s(sTM)}, {s(sT0)}, 2
    s_and_b32 {s(sT0)}, {s(sT1)}, 3
    s_add_u32 {s(sTM)}, {s(sTM)}, {s(sT0)}
    s_lshr_b32 {s(sTN)}, {s(sT1)}, 2
    """)
    a.c("A source: token tile 2*tm + (w>>2), step w&3 ; B source rows 8w..8w+7 of the chunk, cols 64*tn")
    a(f"""
    s_lshl_b32 {s(sT0)}, {s(sTM)}, 1
    s_lshr_b32 {s(sT1)}, {s(sW)}, 2
    s_add_u32 {s(sT0)}, {s(sT0)}, {s(sT1)}
    s_mul_i32 {s(sOffA)}, {s(sT0)}, {A3_TSTRIDE}
    s_and_b32 {s(sT1)}, {s(sW)}, 3
    s_lshl_b32 {s(sT1)}, {s(sT1)}, 10
    s_add_u32 {s(sOffA)}, {s(sOffA)}, {s(sT1)}
    s_add_u32 {s(sOffA)}, {s(sOffA)}, {WS_A3}
    s_lshl_b32 {s(sOffB)}, {s(sTN)}, 7
    s_lshl_b32 {s(sM0A)}, {s(sW)}, 10
    s_add_u32 {s(sM0B)}, {s(sM0A)}, 8192
    v_lshrrev_b32 {v(vT[0])}, 3, {v(vL)}
    s_lshl_b32 {s(sT1)}, {s(sW)}, 3
    v_add_u32 {v(vT[0])}, {s(sT1)}, {v(vT[0])}
    v_lshrrev_b32 {v(vT[1])}, 4, {v(vL)}
    v_and_b32 {v(vT[1])}, 1, {v(vT[1])}
    v_lshlrev_b32 {v(vT[1])}, 2, {v(vT[1])}
    v_and_b32 {v(vT[2])}, 7, {v(vL)}
    v_xor_b32 {v(vT[1])}, {v(vT[1])}, {v(vT[2])}
    v_lshlrev_b32 {v(vT[1])}, 4, {v(vT[1])}
    v_lshl_add_u32 {v(vBo)}, {v(vT[0])}, 10, {v(vT[1])}
    s_waitcnt lgkmcnt(0)
    """)
    srd(a, rWS, "s14", "s15", WS_END)
    srd(a, rB, "s6", "s7", 512 * 1024)
    srd(a, rX, "s4", "s5", 2048 * 1024)
    srd(a, rOut, "s12", "s13", 2048 * 1024)
    srd(a, rB2, "s10", "s11", 1024)
    a.c("residual x and b2 for the epilogue: thread t -> row t/8, cols 8*(t%8)")
    a(f"""
    v_lshrrev_b32 {v(vT[0])}, 3, v0
    s_lshl_b32 {s(sT0)}, {s(sTM)}, 6
    v_add_u32 {v(vT[0])}, {s(sT0)}, {v(vT[0])}
    v_and_b32 {v(vT[1])}, 7, v0
    v_lshlrev_b32 {v(vT[1])}, 4, {v(vT[1])}
    v_add_u32 {v(vT[1])}, {s(sOffB)}, {v(vT[1])}
    v_lshl_add_u32 {v(vT[5])}, {v(vT[0])}, 10, {v(vT[1])}
    buffer_load_dwordx4 {v(vXr,4)}, {v(vT[5])}, {s(rX,4)}, 0 offen
    buffer_load_dwordx4 {v(vB2,4)}, {v(vT[1])}, {s(rB2,4)}, 0 offen
    """)
    def dma(slot, chunk):
        if chunk == 8:
            a(f"s_mov_b32 {s(rB)}, s8\ns_mov_b32 {s(rB+1)}, s9\ns_mov_b32 {s(rB+2)}, {1376*1024}\ns_lshl_b32 {s(sOffB)}, {s(sTN)}, 7")
        a(f"""
        s_add_u32 m0, {slot}, {s(sM0A)}
        s_nop 0
        buffer_load_dwordx4 {v(vL16)}, {s(rWS,4)}, {s(sOffA)} offen lds
        s_add_u32 m0, {slot}, {s(sM0B)}
        s_add_u32 {s(sOffA)}, {s(sOffA)}, 4096
        buffer_load_dwordx4 {v(vBo)}, {s(rB,4)}, {s(sOffB)} offen lds
        s_add_u32 {s(sOffB)}, {s(sOffB)}, 65536
        """)
    for c in range(NSLOT):
        dma(str(c * SLOT), c)
    a(f"s_mov_b32 {s(rB)}, s8\ns_mov_b32 {s(rB+1)}, s9\ns_mov_b32 {s(rB+2)}, {1376*1024}\ns_lshl_b32 {s(sOffB)}, {s(sTN)}, 7")
    a.c("wave (mt=w&1, nt=(w>>1)&1, kh=w>>2)")
    a(f"""
    s_and_b32 {s(sT0)}, {s(sW)}, 1
    s_lshl_b32 {s(sT0)}, {s(sT0)}, 12
    s_lshr_b32 {s(sT1)}, {s(sW)}, 2
    s_lshl_b32 {s(sT1)}, {s(sT1)}, 11
    s_add_u32 {s(sT0)}, {s(sT0)}, {s(sT1)}
    v_add_u32 {v(vAa)}, {s(sT0)}, {v(vL16)}
    v_lshrrev_b32 {v(vT[0])}, 5, {v(vL)}
    v_and_b32 {v(vT[1])}, 15, {v(vL)}
    v_lshrrev_b32 {v(vT[1])}, 2, {v(vT[1])}
    v_lshl_add_u32 {v(vT[1])}, {v(vT[0])}, 2, {v(vT[1])}
    v_lshlrev_b32 {v(vT[1])}, 7, {v(vT[1])}
    s_lshr_b32 {s(sT0)}, {s(sW)}, 1
    s_and_b32 {s(sT0)}, {s(sT0)}, 1
    v_lshrrev_b32 {v(vT[2])}, 3, {v(vL)}
    v_and_b32 {v(vT[2])}, 1, {v(vT[2])}
    v_xor_b32 {v(vT[2])}, {s(sT0)}, {v(vT[2])}
    v_lshl_add_u32 {v(vT[1])}, {v(vT[2])}, 6, {v(vT[1])}
    v_lshrrev_b32 {v(vT[2])}, 4, {v(vL)}
    v_and_b32 {v(vT[2])}, 1, {v(vT[2])}
    v_lshl_add_u32 {v(vT[1])}, {v(vT[2])}, 5, {v(vT[1])}
    v_and_b32 {v(vT[2])}, 3, {v(vL)}
    v_lshl_add_u32 {v(vT[1])}, {v(vT[2])}, 3, {v(vT[1])}
    s_lshl_b32 {s(sT1)}, {s(sT1)}, 1
    s_add_u32 {s(sT1)}, {s(sT1)}, 8192
    v_add_u32 {v(vBa)}, {s(sT1)}, {v(vT[1])}
    """)
    for i in range(16):
        a(f"v_mov_b32 {v(ACC+i)}, 0")
    def compute(issue):
        a(f"""
        v_add_u32 {v(cAa)}, {s(sSlotC)}, {v(vAa)}
        v_add_u32 {v(cBa)}, {s(sSlotC)}, {v(vBa)}
        """)
        for st in range(2):
            a(f"ds_read_b128 {v(FA[st],4)}, {v(cAa)} offset:{st*1024}")
            for j in range(2):
                a(f"ds_read_b64_tr_b16 {v(FB[st]+2*j,2)}, {v(cBa)} offset:{st*2048 + j*1024}")
        if issue:
            dma(s(sSlotI), None)
        a(f"""
        s_mov_b32 {s(sSlotI)}, {s(sSlotC)}
        s_add_u32 {s(sSlotC)}, {s(sSlotC)}, {SLOT}
        s_and_b32 {s(sSlotC)}, {s(sSlotC)}, {NSLOT*SLOT - 1}
        s_waitcnt lgkmcnt(3)
        v_mfma_f32_32x32x16_bf16 {v(ACC,16)}, {v(FB[0],4)}, {v(FA[0],4)}, {v(ACC,16)}
        s_waitcnt lgkmcnt(0)
        v_mfma_f32_32x32x16_bf16 {v(ACC,16)}, {v(FB[1],4)}, {v(FA[1],4)}, {v(ACC,16)}
        """)
    LOOP = a.label("K3_LOOP")
    a(f"s_mov_b32 {s(sSlotC)}, 0\ns_waitcnt vmcnt({2*(NSLOT-1)})\ns_barrier")
    compute(False)
    a(f"s_mov_b32 {s(sIt)}, 1\n{LOOP}:\ns_waitcnt vmcnt({2*(NSLOT-2)})\ns_barrier")
    compute(True)
    a(f"s_add_u32 {s(sIt)}, {s(sIt)}, 1\ns_cmp_lt_u32 {s(sIt)}, {NCH - NSLOT + 1}\ns_cbranch_scc1 {LOOP}")
    for c in range(NCH - NSLOT + 1, NCH):
        a(f"s_waitcnt vmcnt({2*(NCH-1-c)})\ns_barrier")
        compute(False)
    a.c("epilogue: fp32 tile [kh][64 rows][64 cols] (row stride 272B) through LDS")
    RS = 272
    a(f"""
    s_and_b32 {s(sT0)}, {s(sW)}, 1
    s_lshl_b32 {s(sT0)}, {s(sT0)}, 5
    v_and_b32 {v(vT[0])}, 31, {v(vL)}
    v_add_u32 {v(vT[0])}, {s(sT0)}, {v(vT[0])}
    v_mul_u32_u24 {v(vT[0])}, {RS}, {v(vT[0])}
    v_lshrrev_b32 {v(vT[1])}, 5, {v(vL)}
    v_lshl_add_u32 {v(vT[0])}, {v(vT[1])}, 4, {v(vT[0])}
    s_lshr_b32 {s(sT0)}, {s(sW)}, 1
    s_and_b32 {s(sT0)}, {s(sT0)}, 1
    s_lshl_b32 {s(sT0)}, {s(sT0)}, 7
    s_lshr_b32 {s(sT1)}, {s(sW)}, 2
    s_mul_i32 {s(sT1)}, {s(sT1)}, {64*RS}
    s_add_u32 {s(sT0)}, {s(sT0)}, {s(sT1)}
    v_add_u32 {v(vT[0])}, {s(sT0)}, {v(vT[0])}
    v_lshrrev_b32 {v(vT[1])}, 3, v0
    v_mul_u32_u24 {v(vT[1])}, {RS}, {v(vT[1])}
    v_and_b32 {v(vT[2])}, 7, v0
    v_lshl_add_u32 {v(vT[1])}, {v(vT[2])}, 5, {v(vT[1])}
    s_barrier
    """)
    for g in range(4):
        a(f"ds_write_b128 {v(vT[0])}, {v(ACC+4*g,4)} offset:{g*32}")
    a(f"""
    s_waitcnt lgkmcnt(0)
    s_barrier
    ds_read_b128 {v(R,4)}, {v(vT[1])}
    ds_read_b128 {v(R+4,4)}, {v(vT[1])} offset:16
    ds_read_b128 {v(R+8,4)}, {v(vT[1])} offset:{64*RS}
    ds_read_b128 {v(R+12,4)}, {v(vT[1])} offset:{64*RS+16}
    """)
    for i in range(4):
        a(f"""
        v_lshlrev_b32 {v(ACC+2*i)}, 16, {v(vXr+i)}
        v_and_b32 {v(ACC+2*i+1)}, 0xffff0000, {v(vXr+i)}
        v_lshlrev_b32 {v(ACC+8+2*i)}, 16, {v(vB2+i)}
        v_and_b32 {v(ACC+8+2*i+1)}, 0xffff0000, {v(vB2+i)}
        """)
    for i in range(8):
        a(f"v_add_f32 {v(ACC+i)}, {v(ACC+i)}, {v(ACC+8+i)}")
    a("s_waitcnt lgkmcnt(0)")
    for i in range(8):
        a(f"v_add_f32 {v(R+i)}, {v(R+i)}, {v(R+8+i)}")
    for i in range(8):
        a(f"v_add_f32 {v(R+i)}, {v(R+i)}, {v(ACC+i)}")
    for i in range(4):
        a(f"v_cvt_pk_bf16_f32 {v(R+8+i)}, {v(R+2*i)}, {v(R+2*i+1)}")
    a(f"""
    buffer_store_dwordx4 {v(R+8,4)}, {v(vT[5])}, {s(rOut,4)}, 0 offen
    {END}:
    s_endpgm
    """)
    return V.hi, S.hi

def main():
    head = open("cdna_kernels/" + NAME + ".s.ref").read().split("\n")
    hdr = [l for l in head if l.startswith(";") and "@launch" not in l and "Override launch" not in l and "grid=ceil" not in l]
    a = Asm()
    ks = [("k1_kernel", gen_k1, 512, 163840), ("k2_kernel", gen_k2, 512, 131072), ("k3_kernel", gen_k3, 512, 131072)]
    out = "\n".join(hdr) + "\n"
    for n, _, blk, lds in ks:
        out += f"; @launch kernel={n} grid=(256,1,1) block=({blk},1,1) lds={lds}\n"
    out += '.amdgcn_target "amdgcn-amd-amdhsa--gfx950"\n.text\n'
    descs = ""
    for n, g, blk, lds in ks:
        vh, sh = g(a, n)
        descs += kernel_desc(n, vh, sh)
        print(n, "vgpr", vh, "sgpr", sh, file=sys.stderr)
    out += a.text() + '.section .rodata,"a"\n.p2align 6\n' + descs
    dst = sys.argv[1] if len(sys.argv) > 1 else "cdna_kernels/" + NAME + ".s"
    open(dst, "w").write(out)

main()
```

```python
import sys, struct
from asmlib import *

NAME = "parallel_sum__softmax_full_mha__dense_activation_gelu__prompt"
KNAME = NAME + "_kernel"
def opt(name, default):
    for x in sys.argv:
        if x.startswith(name + "="): return int(x.split("=")[1], 0)
    return default
WS_BASE = opt("wsbase", 0)
WS_Q, WS_K, WS_V, WS_A3 = WS_BASE, WS_BASE + 0x200000, WS_BASE + 0x400000, WS_BASE + 0x600000
A3_STEPS = 118
A3_TSTRIDE = A3_STEPS * 1024
WS_FLAG = WS_A3 + 64 * A3_TSTRIDE
FLAG_Q, FLAG_H, FLAG_O = WS_FLAG, WS_FLAG + 65536, WS_FLAG + 131072
WS_EPOCH = WS_FLAG + 196608
WS_END = WS_EPOCH + 256
LOG2E = 1.4426950408889634
PROF = "prof" in sys.argv
WS_PROF = 0x2000000
def f32(x): return "0x%08x" % struct.unpack("<I", struct.pack("<f", x))[0]
SC = " sc1"
SCQ = {0: " sc1", 1: "", 2: " nt", 3: " sc0 sc1", 4: " sc1 nt"}[opt("scq", 0)]
SCL = " sc1" if opt("scl", 1) else ""
XNT = " nt" if opt("xnt",0) else ""
WNT = " nt" if opt("wnt",0) else ""

class Cnt:
    def __init__(self, a, name, maxv):
        self.a, self.name, self.maxv, self.q = a, name, maxv, []
    def op(self, tag, n=1):
        self.q += [tag] * n
    def wait(self, *tags):
        idx = max((i for i, t in enumerate(self.q) if t in tags), default=-1)
        if idx < 0: return
        n = len(self.q) - 1 - idx
        self.a(f"s_waitcnt {self.name}({min(n, self.maxv)})")
        self.q = self.q[idx + 1:] if n <= self.maxv else self.q[len(self.q) - self.maxv:]
    def all(self):
        self.a(f"s_waitcnt {self.name}(0)")
        self.q = []

class Prof:
    def __init__(self, a, S, n):
        self.a, self.n = a, n
        if PROF:
            self.t = [S.alloc(2, 2) for _ in range(n)]
            self.rt = [S.alloc(2, 2) for _ in range(2)]
            self.r = S.alloc(4, 4)
    def start(self):
        if PROF:
            self.a(f"s_memrealtime {s(self.rt[0],2)}")
            for t in self.t: self.a(f"s_mov_b64 {s(t,2)}, 0")
            self.stamp(0)
    def stamp(self, i, kind="std"):
        mode = "fine" if "fine" in sys.argv else ("early" if "early" in sys.argv else "std")
        if PROF and (kind == mode or i in (0, self.n - 1)):
            self.a(f"s_memtime {s(self.t[i],2)}")
    def finish(self, vt, vt2, wave_s):
        if not PROF: return
        a = self.a
        a("s_waitcnt vmcnt(0)")
        self.stamp(self.n - 1)
        a(f"s_memrealtime {s(self.rt[1],2)}\ns_waitcnt lgkmcnt(0)")
        a(f"s_load_dwordx2 {s(self.r,2)}, s[0:1], 80\ns_waitcnt lgkmcnt(0)")
        a(f"s_mov_b32 {s(self.r+2)}, 0x4000000\ns_mov_b32 {s(self.r+3)}, 0x00020000")
        o = self.rt[0] + 1
        a(f"s_lshl_b32 {s(o)}, s2, 4\ns_add_u32 {s(o)}, {s(o)}, {s(wave_s)}\ns_lshl_b32 {s(o)}, {s(o)}, 6\ns_add_u32 {s(o)}, {s(o)}, {WS_PROF}")
        a(f"s_mov_b64 exec, 1\nv_mov_b32 {v(vt)}, {s(o)}")
        for j, r in enumerate([self.rt[0], self.rt[1]] + self.t):
            a(f"v_mov_b32 {v(vt2)}, {s(r)}\nbuffer_store_dword {v(vt2)}, {v(vt)}, {s(self.r,4)}, 0 offen offset:{4*j}\ns_nop 1")

def srd(a, d, lo, hi, size):
    a(f"s_mov_b32 {s(d)}, {lo}\ns_mov_b32 {s(d+1)}, {hi}\ns_mov_b32 {s(d+2)}, {size}\ns_mov_b32 {s(d+3)}, 0x00020000")

MFMA = "v_mfma_f32_32x32x16_bf16"
SMF = "v_smfmac_f32_32x32x32_bf16"
RING = 65536; SLOT = 24576
STG = 131072
QFLAG_CHUNK = opt("qflag", 15)

def gen(a):
    S = Regs("s", 24, 102)
    kernel_header(a, KNAME)
    END = a.label("END"); AUX = a.label("AUX")
    pf = Prof(a, S, 14 if not opt("lin", 0) else 14)
    sW, sRB, sCB, sH, sR8, sT0, sT1, sT2, sT3, sIt = [S.alloc() for _ in range(10)]
    rWS = S.alloc(4, 4); rA = S.alloc(4, 4); rB = S.alloc(4, 4); rC = S.alloc(4, 4)
    rL = pf.r if PROF else S.alloc(4, 4)
    sU = [S.alloc() for _ in range(10)]
    sMask = S.alloc(2, 2); sK = S.alloc(2, 2)
    a(f"""
    s_cmp_ge_u32 s2, 256
    s_cbranch_scc1 {END}
    """)
    pf.start()
    a(f"""
    s_load_dwordx4 s[4:7], s[0:1], 0
    s_load_dwordx2 s[8:9], s[0:1], 16
    s_load_dwordx8 s[12:19], s[0:1], 32
    s_load_dwordx4 s[20:23], s[0:1], 64
    s_load_dwordx2 {s(rWS,2)}, s[0:1], 80
    v_lshrrev_b32 v1, 6, v0
    v_and_b32 v2, 63, v0
    v_readfirstlane_b32 {s(sW)}, v1
    s_and_b32 {s(sT0)}, s2, 7
    s_lshr_b32 {s(sT1)}, s2, 3
    s_and_b32 {s(sRB)}, {s(sT0)}, 3
    s_lshl_b32 {s(sRB)}, {s(sRB)}, 3
    s_and_b32 {s(sT2)}, {s(sT1)}, 7
    s_add_u32 {s(sRB)}, {s(sRB)}, {s(sT2)}
    s_and_b32 {s(sCB)}, {s(sT0)}, 4
    s_lshr_b32 {s(sT2)}, {s(sT1)}, 3
    s_add_u32 {s(sCB)}, {s(sCB)}, {s(sT2)}
    s_lshl_b32 {s(sH)}, {s(sT0)}, 2
    s_and_b32 {s(sT2)}, {s(sT1)}, 3
    s_add_u32 {s(sH)}, {s(sH)}, {s(sT2)}
    s_lshr_b32 {s(sR8)}, {s(sT1)}, 2
    s_mov_b32 {s(rWS+2)}, {WS_END}
    s_mov_b32 {s(rWS+3)}, 0x00020000
    s_cmp_ge_u32 {s(sW)}, 8
    s_cbranch_scc1 {AUX}
    """)
    vmax = 0
    vmax = max(vmax, gen_main(a, locals()))
    a(f"{AUX}:")
    vmax = max(vmax, gen_aux(a, locals()))
    a(f"{END}:\ns_endpgm")
    return vmax, S.hi

def gen_main(a, G):
    g = lambda n: G[n]
    pf, sW, sRB, sCB, sH, sR8, sT0, sT1, sT2, sT3, sIt = [g(n) for n in "pf sW sRB sCB sH sR8 sT0 sT1 sT2 sT3 sIt".split()]
    rWS, rA, rB, rC, sU, sMask, sK, END = [g(n) for n in "rWS rA rB rC sU sMask sK END".split()]
    V = Regs("v", 3, 168)
    vL = 2
    vm = Cnt(a, "vmcnt", 63); lg = Cnt(a, "lgkmcnt", 15)
    vT = [V.alloc() for _ in range(8)]
    vBias = [V.alloc(4, 4), V.alloc(4, 4)]
    vOneB = V.alloc(4, 4)
    XA = [V.alloc() for _ in range(8)]; WA = [V.alloc(), V.alloc()]
    F = [V.alloc(12, 4) for _ in range(4)]
    ACC1 = [V.alloc(16, 4), V.alloc(16, 4)]; ACC2 = [V.alloc(16, 4), V.alloc(16, 4)]
    P = V.alloc(16, 4)
    vDum = V.alloc(4, 2)
    X = ACC1[0]
    sMT, sNH, sHI = sU[0], sU[1], sU[2]
    a.c("---------------- main waves: x rows -> LayerNorm -> xn in LDS")
    a(f"""
    v_lshrrev_b32 {v(vT[0])}, 3, {v(vL)}
    v_and_b32 {v(vT[1])}, 7, {v(vL)}
    s_lshl_b32 {s(sT0)}, {s(sRB)}, 6
    s_lshl_b32 {s(sT1)}, {s(sW)}, 3
    s_add_u32 {s(sT0)}, {s(sT0)}, {s(sT1)}
    s_lshl_b32 {s(sT0)}, {s(sT0)}, 10
    v_lshlrev_b32 {v(vT[2])}, 10, {v(vT[0])}
    v_lshl_add_u32 {v(vT[2])}, {v(vT[1])}, 4, {v(vT[2])}
    s_and_b32 {s(sMT)}, {s(sW)}, 1
    s_lshr_b32 {s(sNH)}, {s(sW)}, 1
    s_and_b32 {s(sNH)}, {s(sNH)}, 1
    s_lshr_b32 {s(sHI)}, {s(sW)}, 2
    s_mov_b32 {s(rA+2)}, {2048*1024}
    s_mov_b32 {s(rA+3)}, 0x00020000
    s_mov_b32 {s(rB+2)}, 2752
    s_mov_b32 {s(rB+3)}, 0x00020000
    """)
    pf.stamp(1, "early")
    a(f"""
    s_waitcnt lgkmcnt(0)
    s_mov_b32 {s(rA)}, s4
    s_mov_b32 {s(rA+1)}, s5
    s_mov_b32 {s(rB)}, s14
    s_mov_b32 {s(rB+1)}, s15
    """)
    if opt("tlb", 0):
        a.c("one gather that touches every buffer, so that all address translations are fetched together (speed only)")
        TA = P + 12
        a(f"v_mov_b64 {v(TA,2)}, s[4:5]")
        for i, pr in enumerate(["s[6:7]", "s[12:13]", "s[14:15]", s(rWS,2), "s[22:23]", "s[16:17]", "s[8:9]", "s[18:19]", "s[20:21]"]):
            a(f"s_mov_b64 exec, {2 << i}\nv_mov_b64 {v(TA,2)}, {pr}")
        a(f"s_mov_b64 exec, 0x3ff\nglobal_load_dword {v(vDum)}, {v(TA,2)}, off\ns_mov_b64 exec, -1"); vm.op("tlb")
    pf.stamp(2, "early")
    for i in range(8):
        a(f"buffer_load_dwordx4 {v(X+4*i,4)}, {v(vT[2])}, {s(rA,4)}, {s(sT0)} offen offset:{128*i}{XNT}"); vm.op(f"x{i}")
    pf.stamp(3, "early")
    a.c("bias fragments: column = 192cb + 64g + 32nh + l%32 (g = 0,1 for waves 0-3, g = 2 for waves 4-7); upper half-wave reads out of range -> 0")
    a(f"""
    s_mul_i32 {s(sT1)}, {s(sCB)}, 192
    s_lshl_b32 {s(sT2)}, {s(sHI)}, 7
    s_add_u32 {s(sT1)}, {s(sT1)}, {s(sT2)}
    s_lshl_b32 {s(sT2)}, {s(sNH)}, 5
    s_add_u32 {s(sU[3])}, {s(sT1)}, {s(sT2)}
    v_and_b32 {v(vT[3])}, 31, {v(vL)}
    v_and_b32 {v(vT[4])}, 32, {v(vL)}
    v_lshl_add_u32 {v(vT[4])}, {v(vT[4])}, 16, {v(vT[3])}
    v_add_u32 {v(vT[4])}, {s(sU[3])}, {v(vT[4])}
    v_lshlrev_b32 {v(vT[4])}, 1, {v(vT[4])}
    buffer_load_ushort {v(vBias[0])}, {v(vT[4])}, {s(rB,4)}, 0 offen
    buffer_load_ushort {v(vBias[1])}, {v(vT[4])}, {s(rB,4)}, 0 offen offset:128
    """)
    vm.op("b", 2)
    if opt("mpf", 0):
        a.c("cooperative L2 warm-up (speed only): this workgroup touches 1/8 of the weight lines its column block needs")
        a(f"""
        s_mov_b32 {s(rC)}, s6
        s_mov_b32 {s(rC+1)}, s7
        s_mov_b32 {s(rC+2)}, {512*3072}
        s_mov_b32 {s(rC+3)}, 0x00020000
        s_and_b32 {s(sT1)}, {s(sRB)}, 7
        s_lshl_b32 {s(sT1)}, {s(sT1)}, 6
        v_add_u32 {v(P+2)}, {s(sT1)}, {v(vL)}
        v_mul_u32_u24 {v(P+3)}, 3072, {v(P+2)}
        v_mul_u32_u24 {v(P+2)}, 2752, {v(P+2)}
        s_lshl_b32 {s(sT1)}, {s(sCB)}, 7
        s_lshl_b32 {s(sT2)}, {s(sW)}, 10
        s_add_u32 {s(sT1)}, {s(sT1)}, {s(sT2)}
        s_cmp_ge_u32 {s(sW)}, 3
        s_cselect_b32 {s(sT1)}, 0x4000000, {s(sT1)}
        buffer_load_dword {v(vDum)}, {v(P+3)}, {s(rC,4)}, {s(sT1)} offen
        s_mov_b32 {s(rC)}, s12
        s_mov_b32 {s(rC+1)}, s13
        s_mov_b32 {s(rC+2)}, {512*2752}
        s_and_b32 {s(sT1)}, {s(sW)}, 3
        s_lshl_b32 {s(sT1)}, {s(sT1)}, 7
        s_min_u32 {s(sT1)}, {s(sT1)}, 380
        s_mul_i32 {s(sT2)}, {s(sCB)}, 384
        s_add_u32 {s(sT1)}, {s(sT1)}, {s(sT2)}
        s_cmp_lt_u32 {s(sW)}, 4
        s_cselect_b32 {s(sU[9])}, 0x4000000, {s(sT1)}
        """)
        vm.op("pf")
    pf.stamp(4, "early")
    a("s_barrier")
    pf.stamp(5, "early")
    sColF = sU[3]
    a.c("LDS addresses for the GEMM phases")
    a(f"""
    v_lshrrev_b32 {v(vT[4])}, 5, {v(vL)}
    v_and_b32 {v(vT[5])}, 15, {v(vL)}
    v_xor_b32 {v(vT[6])}, {v(vT[5])}, {v(vT[4])}
    s_lshl_b32 {s(sT1)}, {s(sMT)}, 15
    v_lshl_add_u32 {v(vT[7])}, {v(vT[3])}, 10, {s(sT1)}
    v_lshl_add_u32 {v(XA[0])}, {v(vT[6])}, 4, {v(vT[7])}
    """)
    for q in range(1, 8):
        a(f"v_xor_b32 {v(XA[q])}, {32*q}, {v(XA[0])}")
    a(f"""
    v_lshrrev_b32 {v(vT[5])}, 2, {v(vT[5])}
    v_lshl_add_u32 {v(vT[5])}, {v(vT[4])}, 3, {v(vT[5])}
    v_lshlrev_b32 {v(vT[5])}, 7, {v(vT[5])}
    v_and_b32 {v(vT[6])}, 1, {v(vT[0])}
    v_xor_b32 {v(vT[6])}, {s(sNH)}, {v(vT[6])}
    v_lshl_add_u32 {v(vT[5])}, {v(vT[6])}, 6, {v(vT[5])}
    v_bfe_u32 {v(vT[6])}, {v(vL)}, 4, 1
    v_lshl_add_u32 {v(vT[5])}, {v(vT[6])}, 5, {v(vT[5])}
    v_and_b32 {v(vT[6])}, 3, {v(vL)}
    v_lshl_add_u32 {v(vT[5])}, {v(vT[6])}, 3, {v(vT[5])}
    s_lshl_b32 {s(sT1)}, {s(sHI)}, 14
    s_add_u32 {s(sT1)}, {s(sT1)}, {RING}
    v_add_u32 {v(WA[0])}, {s(sT1)}, {v(vT[5])}
    v_add_u32 {v(WA[1])}, {2*SLOT}, {v(WA[0])}
    v_mov_b32 {v(vOneB)}, 0x3f80
    """)
    for r in (vBias[0], vBias[1], vOneB):
        for i in range(1, 4): a(f"v_mov_b32 {v(r+i)}, 0")
    a.c("xn write addresses: row = 8w + l/8")
    vWr = [vT[3], vT[4]]; vS = [F[0], F[0]+1, F[0]+2, F[0]+3]; vOnes = vT[5]; RN = F[0] + 4
    a(f"""
    s_lshl_b32 {s(sT1)}, {s(sW)}, 3
    v_add_u32 {v(vT[6])}, {s(sT1)}, {v(vT[0])}
    v_and_b32 {v(vT[7])}, 15, {v(vT[6])}
    v_xor_b32 {v(vT[7])}, {v(vT[7])}, {v(vT[1])}
    v_lshlrev_b32 {v(vT[7])}, 4, {v(vT[7])}
    v_lshl_add_u32 {v(vWr[0])}, {v(vT[6])}, 10, {v(vT[7])}
    v_xor_b32 {v(vWr[1])}, 128, {v(vWr[0])}
    v_mov_b32 {v(vOnes)}, 0x3f803f80
    """)
    for i in range(4): a(f"v_mov_b32 {v(vS[i])}, 0")
    pf.stamp(1); pf.stamp(6, "early")
    for i in range(8):
        vm.wait(f"x{i}")
        if i == 0: pf.stamp(7, "early")
        if i == 7: pf.stamp(8, "early")
        for d in range(4):
            r = X + 4*i + d
            a(f"v_dot2_f32_bf16 {v(vS[d%2])}, {v(r)}, {v(vOnes)}, {v(vS[d%2])}")
            a(f"v_dot2_f32_bf16 {v(vS[2+d%2])}, {v(r)}, {v(r)}, {v(vS[2+d%2])}")
    pf.stamp(2)
    a(f"""
    s_nop 2
    v_add_f32 {v(vS[0])}, {v(vS[0])}, {v(vS[1])}
    v_add_f32 {v(vS[2])}, {v(vS[2])}, {v(vS[3])}
    """)
    for m in ("quad_perm:[1,0,3,2]", "quad_perm:[2,3,0,1]", "row_half_mirror"):
        a(f"""
        s_nop 1
        v_add_f32_dpp {v(vS[0])}, {v(vS[0])}, {v(vS[0])} {m} row_mask:0xf bank_mask:0xf
        v_add_f32_dpp {v(vS[2])}, {v(vS[2])}, {v(vS[2])} {m} row_mask:0xf bank_mask:0xf
        """)
    vMean, vVar = vS[0], vS[2]
    a(f"""
    v_mul_f32 {v(vMean)}, {f32(1/512)}, {v(vMean)}
    v_mul_f32 {v(vVar)}, {f32(1/512)}, {v(vVar)}
    v_fma_f32 {v(vVar)}, -{v(vMean)}, {v(vMean)}, {v(vVar)}
    v_max_f32 {v(vVar)}, 0, {v(vVar)}
    v_cvt_pk_bf16_f32 {v(vMean)}, -{v(vMean)}, {v(vVar)}
    v_and_b32 {v(vVar)}, 0xffff0000, {v(vMean)}
    v_add_f32 {v(vVar)}, {f32(1e-5)}, {v(vVar)}
    v_cvt_pk_bf16_f32 {v(vVar)}, {v(vVar)}, {v(vVar)}
    v_and_b32 {v(vVar)}, 0xffff0000, {v(vVar)}
    v_sqrt_f32 {v(vVar)}, {v(vVar)}
    v_lshlrev_b32 {v(vMean)}, 16, {v(vMean)}
    v_cvt_pk_bf16_f32 {v(vVar)}, {v(vVar)}, {v(vVar)}
    v_and_b32 {v(vVar)}, 0xffff0000, {v(vVar)}
    v_rcp_f32 {v(RN)}, {v(vVar)}
    s_nop 0
    v_mul_f32 {v(RN+1)}, {v(vMean)}, {v(RN)}
    """)
    if opt("mpf", 0):
        a(f"buffer_load_dword {v(vDum+1)}, {v(P+2)}, {s(rC,4)}, {s(sU[9])} offen"); vm.op("pf")
    TT = F[1]
    for i in range(8):
        for d in range(4):
            r = X + 4*i + d
            a(f"v_lshlrev_b32 {v(TT+2*d)}, 16, {v(r)}\nv_and_b32 {v(TT+2*d+1)}, 0xffff0000, {v(r)}")
        for d in range(4):
            a(f"v_pk_fma_f32 {v(TT+2*d,2)}, {v(TT+2*d,2)}, {v(RN,2)}, {v(RN,2)} op_sel:[0,0,1] op_sel_hi:[1,0,1]")
        for d in range(4):
            a(f"v_cvt_pk_bf16_f32 {v(X+4*i+d)}, {v(TT+2*d)}, {v(TT+2*d+1)}")
        a(f"ds_write_b128 {v(vWr[i%2])}, {v(X+4*i,4)} offset:{(i//2)*256}"); lg.op("w")
    vm.wait("b")
    lg.all()
    pf.stamp(3); pf.stamp(9, "early")
    HI = a.label("M_HI"); JOIN = a.label("M_JOIN")
    a(f"s_cmp_eq_u32 {s(sHI)}, 1\ns_cbranch_scc1 {HI}")
    state = (list(vm.q), list(lg.q))
    def gemm(hi):
        vm.q, lg.q = list(state[0]), list(state[1])
        ng = 1 if hi else 2
        def xread(c, st):
            sidx = (c % 8) * 4 + st
            a(f"ds_read_b128 {v(F[st],4)}, {v(XA[sidx & 7])} offset:{(sidx >> 3) * 256}"); lg.op(("x", c, st))
        def wread(c, st):
            sl = c & 3
            for gi in range(ng):
                for j in range(2):
                    off = (sl & 1) * SLOT + gi * 8192 + st * 2048 + j * 512
                    a(f"ds_read_b64_tr_b16 {v(F[st]+4+4*gi+2*j,2)}, {v(WA[sl >> 1])} offset:{off}"); lg.op(("w", c, st))
        def mf(c, st):
            lg.wait(("x", c, st), ("w", c, st))
            acc = ACC1 if c < 8 else ACC2
            for gi in range(ng):
                w, x = v(F[st]+4+4*gi,4), v(F[st],4)
                cin = "0" if (c == 0 and st == 0) else v(acc[gi],16)
                if hi and c < 8: a(f"{MFMA} {v(acc[gi],16)}, {x}, {w}, {cin}")
                else: a(f"{MFMA} {v(acc[gi],16)}, {w}, {x}, {cin}")
        def qkv_epilogue(part):
            sTT, sO = sU[4], sU[5]
            if part == 0:
                a(f"""
                s_lshl_b32 {s(sTT)}, {s(sRB)}, 1
                s_add_u32 {s(sTT)}, {s(sTT)}, {s(sMT)}
                s_lshl_b32 {s(sO)}, {s(sCB)}, 1
                s_add_u32 {s(sO)}, {s(sO)}, {s(sNH)}
                s_lshl_b32 {s(sO)}, {s(sO)}, 17
                s_lshl_b32 {s(sT0)}, {s(sTT)}, 10
                s_add_u32 {s(sO)}, {s(sO)}, {s(sT0)}
                s_add_u32 {s(sO)}, {s(sO)}, {WS_Q}
                """)
                if not hi:
                    a(f"""
                    v_lshlrev_b32 {v(vT[0])}, 4, {v(vL)}
                    v_lshrrev_b32 {v(vT[1])}, 1, {v(vL)}
                    v_xor_b32 {v(vT[1])}, {v(vT[1])}, {v(vL)}
                    v_and_b32 {v(vT[1])}, 4, {v(vT[1])}
                    v_mul_u32_u24 {v(vT[1])}, 3, {v(vT[1])}
                    v_xor_b32 {v(vT[1])}, {v(vT[1])}, {v(vL)}
                    v_lshlrev_b32 {v(vT[1])}, 4, {v(vT[1])}
                    s_add_u32 {s(sU[6])}, {s(sO)}, 65536
                    s_add_u32 {s(sU[7])}, {s(sO)}, {WS_K - WS_Q}
                    s_add_u32 {s(sU[8])}, {s(sO)}, {WS_K - WS_Q + 65536}
                    """)
                else:
                    a(f"""
                    v_lshlrev_b32 {v(vT[0])}, 4, {v(vL)}
                    v_bfe_u32 {v(vT[1])}, {v(vL)}, 4, 1
                    v_lshlrev_b32 {v(vT[1])}, 16, {v(vT[1])}
                    v_and_b32 {v(vT[2])}, 15, {v(vL)}
                    v_lshl_add_u32 {v(vT[1])}, {v(vT[2])}, 4, {v(vT[1])}
                    v_lshrrev_b32 {v(vT[2])}, 5, {v(vL)}
                    v_lshl_add_u32 {v(vT[1])}, {v(vT[2])}, 8, {v(vT[1])}
                    s_add_u32 {s(sU[7])}, {s(sO)}, {WS_V - WS_Q}
                    """)
            elif hi:
                if part == 1:
                    for i in range(8): a(f"v_cvt_pk_bf16_f32 {v(P+i)}, {v(ACC1[0]+2*i)}, {v(ACC1[0]+2*i+1)}")
                    a(f"buffer_store_dwordx4 {v(P,4)}, {v(vT[1])}, {s(rWS,4)}, {s(sU[7])} offen{SCQ}")
                    a(f"buffer_store_dwordx4 {v(P+4,4)}, {v(vT[1])}, {s(rWS,4)}, {s(sU[7])} offen offset:512{SCQ}")
                    vm.op("st", 2)
            elif part == 1:
                for i in range(8): a(f"v_cvt_pk_bf16_f32 {v(P+8+i)}, {v(ACC1[1]+2*i)}, {v(ACC1[1]+2*i+1)}")
                a(f"buffer_store_dwordx4 {v(P+8,4)}, {v(vT[1])}, {s(rWS,4)}, {s(sU[7])} offen{SCQ}")
                a(f"buffer_store_dwordx4 {v(P+12,4)}, {v(vT[1])}, {s(rWS,4)}, {s(sU[8])} offen{SCQ}")
                vm.op("st", 2)
            else:
                for i in range(16): a(f"v_mul_f32 {v(ACC1[0]+i)}, {f32(0.25*LOG2E)}, {v(ACC1[0]+i)}")
                for i in range(8): a(f"v_cvt_pk_bf16_f32 {v(P+i)}, {v(ACC1[0]+2*i)}, {v(ACC1[0]+2*i+1)}")
                a(f"buffer_store_dwordx4 {v(P,4)}, {v(vT[0])}, {s(rWS,4)}, {s(sO)} offen{SCQ}")
                a(f"buffer_store_dwordx4 {v(P+4,4)}, {v(vT[0])}, {s(rWS,4)}, {s(sU[6])} offen{SCQ}")
                vm.op("st", 2)
        for c in range(16):
            if c == QFLAG_CHUNK: vm.all()
            a("s_barrier")
            if c == QFLAG_CHUNK and not hi:
                nf, ok, pl = a.label("M_noflag"), a.label("M_tokok"), a.label("M_tokpoll")
                a.c("wave 0 publishes Q/K/V: this launch's tag into each of the 32 consumers' flag rows")
                a(f"""
                s_cmp_lg_u32 {s(sW)}, 0
                s_cbranch_scc1 {nf}
                s_mov_b32 {s(sIt)}, 0
                {pl}:
                v_cmp_eq_u32 vcc, 0, {v(vDum)}
                s_cbranch_vccz {ok}
                s_sleep 2
                v_mov_b32 {v(vDum+2)}, 0
                global_load_dwordx2 {v(vDum,2)}, {v(vDum+2)}, s[22:23]{SC}
                s_add_u32 {s(sIt)}, {s(sIt)}, 1
                s_waitcnt vmcnt(0)
                s_cmp_lt_u32 {s(sIt)}, 0x20000
                s_cbranch_scc1 {pl}
                {ok}:
                s_lshl_b32 {s(sT0)}, {s(sCB)}, 13
                s_lshl_b32 {s(sT1)}, {s(sRB)}, 3
                s_add_u32 {s(sT0)}, {s(sT0)}, {s(sT1)}
                s_add_u32 {s(sT0)}, {s(sT0)}, {FLAG_Q}
                v_lshlrev_b32 {v(vDum+2)}, 8, {v(vL)}
                s_mov_b32 exec_hi, 0
                buffer_store_dwordx2 {v(vDum,2)}, {v(vDum+2)}, {s(rWS,4)}, {s(sT0)} offen{SC}
                s_mov_b64 exec, -1
                {nf}:
                """)
            if c == 8 and not hi:
                nf = a.label("M_notokld")
                a(f"""
                s_cmp_lg_u32 {s(sW)}, 0
                s_cbranch_scc1 {nf}
                v_mov_b32 {v(vDum+2)}, 0
                global_load_dwordx2 {v(vDum,2)}, {v(vDum+2)}, s[22:23]{SC}
                {nf}:
                """)
            if c == 0:
                pf.stamp(4); pf.stamp(10, "early")
                xread(0, 0); xread(0, 1)
            if c == 8: pf.stamp(5)
            if c >= 5: pf.stamp(c - 4, "fine")
            wread(c, 0); wread(c, 1)
            if c > 0: mf(c - 1, 3)
            if c == 7:
                qkv_epilogue(0)
            if c == 8:
                for gi in range(ng):
                    a(f"{MFMA} {v(ACC2[gi],16)}, {v(vBias[gi],4)}, {v(vOneB,4)}, 0")
            mf(c, 0)
            xread(c, 2); wread(c, 2)
            mf(c, 1)
            xread(c, 3); wread(c, 3)
            if c == 8:
                if hi: a("s_nop 3")
                qkv_epilogue(1)
            if c < 15: xread(c + 1, 0); xread(c + 1, 1)
            mf(c, 2)
            if c == 8: qkv_epilogue(2)
            lg.wait(("w", c, 3))
        a("s_barrier")
        pf.stamp(6); pf.stamp(12, "fine")
        mf(15, 3)
        c1 = -2 * 0.7978845608028654 * LOG2E
        c2 = c1 * 0.044715
        CC = F[0]; T = F[1]
        a(f"""
        v_mov_b32 {v(CC)}, {f32(c2)}
        v_mov_b32 {v(CC+1)}, {f32(c1)}
        s_mul_i32 {s(sT1)}, {s(sU[4])}, {A3_TSTRIDE}
        s_lshl_b32 {s(sT0)}, {s(sColF)}, 6
        s_add_u32 {s(sT0)}, {s(sT0)}, {s(sT1)}
        s_add_u32 {s(sT0)}, {s(sT0)}, {WS_A3 + 32*1024}
        s_mov_b32 {s(sU[6])}, 0x40000000
        s_mov_b32 {s(sU[7])}, 0x40000000
        s_nop 5
        """)
        for gi in range(ng):
            skip = a.label("M_skip")
            A_ = ACC2[gi]; Pg = P + 8*gi
            a(f"s_add_u32 {s(sT1)}, {s(sColF)}, {64*gi}\ns_cmp_ge_u32 {s(sT1)}, 1376\ns_cbranch_scc1 {skip}")
            for i in range(0, 16, 2): a(f"v_pk_mul_f32 {v(T+i,2)}, {v(A_+i,2)}, {v(A_+i,2)}")
            for i in range(0, 16, 2): a(f"v_pk_fma_f32 {v(T+i,2)}, {v(T+i,2)}, {v(CC,2)}, {v(CC,2)} op_sel:[0,0,1] op_sel_hi:[1,0,1]")
            for i in range(0, 16, 2): a(f"v_pk_mul_f32 {v(T+i,2)}, {v(T+i,2)}, {v(A_+i,2)}")
            for i in range(16): a(f"v_exp_f32 {v(T+i)}, {v(T+i)}")
            for i in range(0, 16, 2): a(f"v_pk_add_f32 {v(T+i,2)}, {v(T+i,2)}, 1.0 op_sel_hi:[1,0]")
            for i in range(16): a(f"v_rcp_f32 {v(T+i)}, {v(T+i)}")
            for i in range(0, 16, 2): a(f"v_pk_mul_f32 {v(T+i,2)}, {v(T+i,2)}, {v(A_+i,2)}")
            for i in range(8): a(f"v_cvt_pk_bf16_f32 {v(Pg+i)}, {v(T+2*i)}, {v(T+2*i+1)}")
            a(f"s_add_u32 {s(sU[6+gi])}, {s(sT0)}, {4096*gi}")
            a(f"{skip}:")
    gemm(False)
    a(f"s_branch {JOIN}\n{HI}:")
    gemm(True)
    a(f"{JOIN}:")
    vm.q = []; lg.q = []
    pf.stamp(7)
    V2 = Regs("v", 3, 168)
    vL16 = V2.alloc(); vKa = V2.alloc(); vVa = V2.alloc(); vIdx = V2.alloc(); vVb = V2.alloc(); t = [V2.alloc() for _ in range(3)]
    assert vL16 == vT[0]
    V2.n = P + 16
    V2.n = ACC1[0]
    Q = V2.alloc(4, 4); K = V2.alloc(4, 4); V1 = V2.alloc(4, 4); Vb = V2.alloc(4, 4)
    C = V2.alloc(16, 4)
    SB = [ACC2[0], ACC2[1]]; O = F[0]
    assert V2.n <= ACC2[0] and F[0] + 16 <= ACC1[0]
    sBar, sPass, sTT = sU[0], sU[1], sU[2]
    a.c("---------------- attention: head h, q tile 8*r8 + w")
    a(f"""
    v_mov_b32 {v(vIdx)}, 0xdddddddd
    s_mov_b32 {s(sMask)}, 0x0000ffff
    s_mov_b32 {s(sMask+1)}, 0x0000ffff
    v_and_b32 {v(t[0])}, 15, {v(vL)}
    v_lshrrev_b32 {v(t[1])}, 5, {v(vL)}
    v_lshlrev_b32 {v(t[1])}, 8, {v(t[1])}
    v_lshl_add_u32 {v(t[1])}, {v(t[0])}, 4, {v(t[1])}
    v_add_u32 {v(vVb)}, 65536, {v(t[1])}
    v_and_b32 {v(t[0])}, 27, {v(vL)}
    v_cmp_eq_u32 vcc, 16, {v(t[0])}
    v_mov_b32 {v(t[2])}, 0x3f803f80
    s_mov_b32 {s(sBar)}, 3
    s_mov_b32 {s(sPass)}, 0
    v_cndmask_b32 {v(t[2])}, 0, {v(t[2])}, vcc
    s_lshl_b32 {s(sTT)}, {s(sR8)}, 3
    s_add_u32 {s(sTT)}, {s(sTT)}, {s(sW)}
    s_lshl_b32 {s(sT0)}, {s(sW)}, 10
    s_add_u32 {s(sT0)}, {s(sT0)}, {STG}
    v_add_u32 {v(t[0])}, {s(sT0)}, {v(vL16)}
    """)
    for i in range(4):
        a(f"v_mov_b32 {v(V1+i)}, {v(t[2])}\nv_mov_b32 {v(Vb+i)}, {v(t[2])}")
    def hstores():
        a(f"""
        buffer_store_dwordx4 {v(P,4)}, {v(vL16)}, {s(rWS,4)}, {s(sU[6])} offen{SC}
        buffer_store_dwordx4 {v(P+4,4)}, {v(vL16)}, {s(rWS,4)}, {s(sU[6])} offen offset:1024{SC}
        buffer_store_dwordx4 {v(P+8,4)}, {v(vL16)}, {s(rWS,4)}, {s(sU[7])} offen{SC}
        buffer_store_dwordx4 {v(P+12,4)}, {v(vL16)}, {s(rWS,4)}, {s(sU[7])} offen offset:1024{SC}
        """)
    if opt("hst", 0) == 0: hstores()
    a(f"""
    s_barrier
    """)
    pf.stamp(8)
    a(f"""
    ds_read_b128 {v(Q,4)}, {v(t[0])}
    ds_read_b128 {v(K,4)}, {v(vL16)}
    """)
    if opt("hst", 0) == 1: hstores()
    a(f"""
    s_waitcnt lgkmcnt(0)
    {MFMA} {v(SB[0],16)}, {v(K,4)}, {v(Q,4)}, 0
    s_nop 11
    """)
    def rowmax(src, dst, first):
        k = 0
        if first:
            a(f"v_max3_f32 {v(dst)}, {v(src)}, {v(src+1)}, {v(src+2)}"); k = 3
        while k < 16:
            if k + 1 < 16:
                a(f"v_max3_f32 {v(dst)}, {v(dst)}, {v(src+k)}, {v(src+k+1)}"); k += 2
            else:
                a(f"v_max_f32 {v(dst)}, {v(dst)}, {v(src+k)}"); k += 1
    rowmax(SB[0], t[0], True)
    LSTART = a.label("AT_START"); LOOP = a.label("AT_LOOP"); nob = a.label("AT_nob"); DONE = a.label("AT_DONE")
    a(f"""
    {LSTART}:
    v_mov_b32 {v(t[1])}, {v(t[0])}
    v_mov_b32 {v(vKa)}, {v(vL16)}
    v_mov_b32 {v(vVa)}, {v(vVb)}
    v_permlane32_swap_b32 {v(t[0])}, {v(t[1])}
    """)
    for i in range(8): a(f"v_mov_b32 {v(O+i)}, 0")
    a(f"v_max_f32 {v(t[0])}, {v(t[0])}, {v(t[1])}")
    for i in range(16): a(f"v_sub_f32 {v(C+i)}, 0, {v(t[0])}")
    for i in range(8, 16): a(f"v_mov_b32 {v(O+i)}, 0")
    a(f"{MFMA} {v(SB[0],16)}, {v(K,4)}, {v(Q,4)}, {v(C,16)}")
    a(f"""
    s_mov_b64 exec, {s(sMask,2)}
    ds_read_b128 {v(Vb,4)}, {v(vVa)}
    s_mov_b64 exec, -1
    ds_read_b128 {v(K,4)}, {v(vKa)} offset:1024
    s_mov_b64 exec, {s(sMask,2)}
    ds_read_b128 {v(V1,4)}, {v(vVa)}
    s_mov_b64 exec, -1
    s_mov_b32 {s(sIt)}, 0
    """)
    for i in range(8, 16): a(f"v_mov_b32 {v(SB[1]+i)}, 0")
    a(f"""
    .p2align 3
    {LOOP}:
    s_cmp_lg_u32 {s(sIt)}, {s(sBar)}
    s_cbranch_scc1 {nob}
    s_waitcnt vmcnt(0)
    s_barrier
    {nob}:
    """)
    U = 4
    for k in range(U):
        cur, oth = SB[k % 2], SB[(k + 1) % 2]
        e = lambda i: a(f"v_exp_f32 {v(cur+i)}, {v(cur+i)}")
        a(f"s_setprio {2 - (k % 3) if False else 3 - k}")
        e(0); e(1)
        a(f"s_waitcnt lgkmcnt(2)\n{SMF} {v(O,16)}, {v(Vb,4)}, {v(oth+8,8)}, {v(vIdx)}")
        a(f"s_mov_b64 exec, {s(sMask,2)}\nds_read_b128 {v(Vb,4)}, {v(vVa)} offset:{k*1024 + 512}\ns_mov_b64 exec, -1")
        e(2); e(3); e(4); e(5)
        a(f"s_waitcnt lgkmcnt(2)\n{MFMA} {v(oth,16)}, {v(K,4)}, {v(Q,4)}, {v(C,16)}")
        a(f"ds_read_b128 {v(K,4)}, {v(vKa)} offset:{(k+2)*1024}")
        e(6); e(7); e(8); e(9); e(10)
        a(f"s_waitcnt lgkmcnt(2)\n{SMF} {v(O,16)}, {v(V1,4)}, {v(cur,8)}, {v(vIdx)}")
        a(f"s_mov_b64 exec, {s(sMask,2)}\nds_read_b128 {v(V1,4)}, {v(vVa)} offset:{(k+1)*1024}\ns_mov_b64 exec, -1")
        e(11); e(12); e(13)
        if k == U - 1:
            a(f"v_add_u32 {v(vKa)}, {U*1024}, {v(vKa)}\nv_add_u32 {v(vVa)}, {U*1024}, {v(vVa)}")
            a(f"s_add_u32 {s(sIt)}, {s(sIt)}, 1\ns_cmp_lt_u32 {s(sIt)}, {64//U}")
        e(14); e(15)
    a(f"""
    s_cbranch_scc1 {LOOP}
    s_waitcnt lgkmcnt(0)
    s_setprio 3
    {SMF} {v(O,16)}, {v(Vb,4)}, {v(SB[1]+8,8)}, {v(vIdx)}
    s_mov_b32 {s(sBar)}, -1
    s_mov_b32 {s(sT0)}, {f32(2.0**60)}
    s_mov_b32 {s(sT1)}, {f32(2.0**120)}
    s_cmp_lg_u32 {s(sPass)}, 0
    s_nop 7
    s_cbranch_scc1 {DONE}
    """)
    a.c("the stand-in max was the max over the first key tile: check nothing overflowed, otherwise redo with the true row max")
    a(f"""
    v_max3_f32 {v(t[0])}, |{v(O)}|, |{v(O+1)}|, |{v(O+2)}|
    v_add_f32 {v(t[1])}, {v(O)}, {v(O+1)}
    v_add_f32 {v(t[2])}, {v(O+2)}, {v(O+3)}
    v_max3_f32 {v(t[0])}, {v(t[0])}, |{v(O+3)}|, |{v(O+4)}|
    v_add_f32 {v(t[1])}, {v(t[1])}, {v(O+4)}
    v_add_f32 {v(t[2])}, {v(t[2])}, {v(O+5)}
    v_max3_f32 {v(t[0])}, {v(t[0])}, |{v(O+5)}|, |{v(O+6)}|
    v_add_f32 {v(t[1])}, {v(t[1])}, {v(O+6)}
    v_add_f32 {v(t[2])}, {v(t[2])}, {v(O+7)}
    v_max_f32 {v(t[0])}, {v(t[0])}, |{v(O+7)}|
    v_add_f32 {v(t[1])}, {v(t[1])}, {v(t[2])}
    v_cmp_nlt_f32 vcc, {v(O+8)}, {s(sT0)}
    v_cmp_nlt_f32 {s(sK,2)}, {v(t[0])}, {s(sT1)}
    s_or_b64 vcc, vcc, {s(sK,2)}
    v_cmp_u_f32 {s(sK,2)}, {v(t[1])}, {v(t[1])}
    s_or_b64 vcc, vcc, {s(sK,2)}
    s_cbranch_vccz {DONE}
    """)
    ML = a.label("AT_MAXLOOP")
    a(f"""
    s_mov_b32 {s(sPass)}, 1
    v_mov_b32 {v(vKa)}, {v(vL16)}
    v_mov_b32 {v(t[0])}, 0xff800000
    s_mov_b32 {s(sIt)}, 0
    {ML}:
    ds_read_b128 {v(K,4)}, {v(vKa)}
    v_add_u32 {v(vKa)}, 1024, {v(vKa)}
    s_waitcnt lgkmcnt(0)
    {MFMA} {v(SB[0],16)}, {v(K,4)}, {v(Q,4)}, 0
    s_nop 15
    """)
    rowmax(SB[0], t[0], False)
    a(f"""
    s_add_u32 {s(sIt)}, {s(sIt)}, 1
    s_cmp_lt_u32 {s(sIt)}, 64
    s_cbranch_scc1 {ML}
    ds_read_b128 {v(K,4)}, {v(vL16)}
    s_waitcnt lgkmcnt(0)
    s_branch {LSTART}
    {DONE}:
    v_rcp_f32 {v(t[0])}, {v(O+8)}
    s_mul_i32 {s(sT0)}, {s(sTT)}, {A3_TSTRIDE}
    s_lshl_b32 {s(sT1)}, {s(sH)}, 10
    s_add_u32 {s(sT0)}, {s(sT0)}, {s(sT1)}
    s_add_u32 {s(sT0)}, {s(sT0)}, {WS_A3}
    """)
    for i in range(8): a(f"v_mul_f32 {v(O+i)}, {v(O+i)}, {v(t[0])}")
    for i in range(4): a(f"v_cvt_pk_bf16_f32 {v(K+i)}, {v(O+2*i)}, {v(O+2*i+1)}")
    a(f"buffer_store_dwordx4 {v(K,4)}, {v(vL16)}, {s(rWS,4)}, {s(sT0)} offen{SC}")
    pf.stamp(9)
    a("s_barrier")
    a.c("---------------- final: out tile (tm = rb, tn = cb), wave (mt = w&1, nt = (w>>1)&1, kh = w>>2)")
    vXr = SB[0]; vB2 = SB[0] + 4; vOa = SB[0] + 8; vAa = SB[0] + 9; vBa = SB[0] + 10; vWp = SB[0] + 11; vRp = SB[0] + 12
    ACC = C; FA = [SB[1], SB[1] + 4, O, O + 4]; FB = [SB[1] + 8, SB[1] + 12, O + 8, O + 12]
    a(f"""
    s_mov_b32 {s(rB)}, s18
    s_mov_b32 {s(rB+1)}, s19
    s_mov_b32 {s(rB+2)}, 1024
    s_mov_b32 {s(rC)}, s20
    s_mov_b32 {s(rC+1)}, s21
    s_mov_b32 {s(rC+2)}, {2048*1024}
    s_mov_b32 {s(rC+3)}, 0x00020000
    v_lshrrev_b32 {v(t[0])}, 3, v0
    s_lshl_b32 {s(sT0)}, {s(sRB)}, 6
    v_add_u32 {v(t[1])}, {s(sT0)}, {v(t[0])}
    v_and_b32 {v(t[2])}, 7, v0
    s_lshl_b32 {s(sT0)}, {s(sCB)}, 7
    v_lshl_add_u32 {v(vRp)}, {v(t[2])}, 4, {s(sT0)}
    v_lshl_add_u32 {v(vOa)}, {v(t[1])}, 10, {v(vRp)}
    buffer_load_dwordx4 {v(vXr,4)}, {v(vOa)}, {s(rA,4)}, 0 offen
    buffer_load_dwordx4 {v(vB2,4)}, {v(vRp)}, {s(rB,4)}, 0 offen
    """)
    a.c("C init from the FFN2 partials: [kh][mt][nt][g][lane][16B]")
    a(f"""
    s_and_b32 {s(sT0)}, {s(sW)}, 1
    s_lshr_b32 {s(sT1)}, {s(sW)}, 2
    s_lshr_b32 {s(sT2)}, {s(sW)}, 1
    s_and_b32 {s(sT2)}, {s(sT2)}, 1
    s_lshl_b32 {s(sT3)}, {s(sT1)}, 14
    s_lshl_b32 {s(sIt)}, {s(sT0)}, 13
    s_add_u32 {s(sT3)}, {s(sT3)}, {s(sIt)}
    s_lshl_b32 {s(sIt)}, {s(sT2)}, 12
    s_add_u32 {s(sT3)}, {s(sT3)}, {s(sIt)}
    s_add_u32 {s(sT3)}, {s(sT3)}, {STG}
    v_add_u32 {v(vAa)}, {s(sT3)}, {v(vL16)}
    """)
    for gq in range(4): a(f"ds_read_b128 {v(ACC+4*gq,4)}, {v(vAa)} offset:{gq*1024}")
    a.c("partial-tile write address [kh][row][chunk ^ (row&15)] and read address")
    a(f"""
    v_and_b32 {v(vWp)}, 31, {v(vL)}
    s_lshl_b32 {s(sIt)}, {s(sT0)}, 5
    v_add_u32 {v(vWp)}, {s(sIt)}, {v(vWp)}
    v_lshrrev_b32 {v(vBa)}, 5, {v(vL)}
    s_lshl_b32 {s(sIt)}, {s(sT2)}, 3
    v_add_u32 {v(vBa)}, {s(sIt)}, {v(vBa)}
    v_and_b32 {v(vAa)}, 15, {v(vWp)}
    v_xor_b32 {v(vBa)}, {v(vBa)}, {v(vAa)}
    v_lshlrev_b32 {v(vBa)}, 4, {v(vBa)}
    v_lshl_add_u32 {v(vWp)}, {v(vWp)}, 8, {v(vBa)}
    s_lshl_b32 {s(sIt)}, {s(sT1)}, 14
    s_add_u32 {s(sIt)}, {s(sIt)}, {STG}
    v_add_u32 {v(vWp)}, {s(sIt)}, {v(vWp)}
    v_lshlrev_b32 {v(t[2])}, 1, {v(t[2])}
    v_and_b32 {v(vAa)}, 15, {v(t[0])}
    v_xor_b32 {v(t[2])}, {v(t[2])}, {v(vAa)}
    v_lshlrev_b32 {v(t[2])}, 4, {v(t[2])}
    v_lshl_add_u32 {v(vRp)}, {v(t[0])}, 8, {v(t[2])}
    v_add_u32 {v(vRp)}, {STG}, {v(vRp)}
    """)
    a.c("fragment addresses")
    a(f"""
    s_lshl_b32 {s(sIt)}, {s(sT0)}, 15
    s_lshl_b32 {s(sT3)}, {s(sT1)}, 14
    s_add_u32 {s(sIt)}, {s(sIt)}, {s(sT3)}
    s_add_u32 {s(sIt)}, {s(sIt)}, 65536
    v_add_u32 {v(vAa)}, {s(sIt)}, {v(vL16)}
    v_lshrrev_b32 {v(t[0])}, 5, {v(vL)}
    v_bfe_u32 {v(t[1])}, {v(vL)}, 2, 2
    v_lshl_add_u32 {v(t[1])}, {v(t[0])}, 2, {v(t[1])}
    v_lshlrev_b32 {v(t[1])}, 7, {v(t[1])}
    v_bfe_u32 {v(t[0])}, {v(vL)}, 3, 1
    v_xor_b32 {v(t[0])}, {s(sT2)}, {v(t[0])}
    v_lshl_add_u32 {v(t[1])}, {v(t[0])}, 6, {v(t[1])}
    v_bfe_u32 {v(t[0])}, {v(vL)}, 4, 1
    v_lshl_add_u32 {v(t[1])}, {v(t[0])}, 5, {v(t[1])}
    v_and_b32 {v(t[0])}, 3, {v(vL)}
    v_lshl_add_u32 {v(t[1])}, {v(t[0])}, 3, {v(t[1])}
    s_lshl_b32 {s(sIt)}, {s(sT1)}, 15
    v_add_u32 {v(vBa)}, {s(sIt)}, {v(t[1])}
    s_waitcnt vmcnt(2) lgkmcnt(0)
    s_barrier
    """)
    pf.stamp(10)
    a("s_barrier")
    pf.stamp(11)
    lg.q = []
    def rd(st):
        b = st % 4
        a(f"ds_read_b128 {v(FA[b],4)}, {v(vAa)} offset:{st*1024}"); lg.op(st)
        for j in range(2):
            a(f"ds_read_b64_tr_b16 {v(FB[b]+2*j,2)}, {v(vBa)} offset:{st*2048 + j*1024}"); lg.op(st)
    def mm(st):
        lg.wait(st)
        a(f"{MFMA} {v(ACC,16)}, {v(FB[st%4],4)}, {v(FA[st%4],4)}, {v(ACC,16)}")
    for half in range(2):
        if half == 1: a("s_barrier")
        base = 8 * half
        for st in range(base, base + 3): rd(st)
        if half == 1: mm(7)
        for st in range(base, base + 8):
            if st + 3 < base + 8: rd(st + 3)
            if st == 7: lg.wait(7)
            else: mm(st)
    a("s_nop 7")
    for i in range(4):
        a(f"""
        v_lshlrev_b32 {v(SB[1]+2*i)}, 16, {v(vXr+i)}
        v_and_b32 {v(SB[1]+2*i+1)}, 0xffff0000, {v(vXr+i)}
        """) if False else None
    a("s_waitcnt vmcnt(0)")
    R = O
    for i in range(4):
        a(f"v_lshlrev_b32 {v(SB[1]+2*i)}, 16, {v(vXr+i)}\nv_and_b32 {v(SB[1]+2*i+1)}, 0xffff0000, {v(vXr+i)}")
    for gq in range(4):
        a(f"v_xor_b32 {v(t[0])}, {32*gq}, {v(vWp)}\nds_write_b128 {v(t[0])}, {v(ACC+4*gq,4)}")
    for i in range(4):
        a(f"v_lshlrev_b32 {v(SB[1]+8+2*i)}, 16, {v(vB2+i)}\nv_and_b32 {v(SB[1]+8+2*i+1)}, 0xffff0000, {v(vB2+i)}")
    for i in range(8): a(f"v_add_f32 {v(SB[1]+i)}, {v(SB[1]+i)}, {v(SB[1]+8+i)}")
    a(f"""
    v_xor_b32 {v(t[1])}, 16, {v(vRp)}
    s_waitcnt lgkmcnt(0)
    s_barrier
    ds_read_b128 {v(R,4)}, {v(vRp)}
    ds_read_b128 {v(R+4,4)}, {v(t[1])}
    ds_read_b128 {v(R+8,4)}, {v(vRp)} offset:16384
    ds_read_b128 {v(R+12,4)}, {v(t[1])} offset:16384
    s_waitcnt lgkmcnt(2)
    """)
    for i in range(8): a(f"v_add_f32 {v(R+i)}, {v(R+i)}, {v(SB[1]+i)}")
    a("s_waitcnt lgkmcnt(0)")
    for i in range(8): a(f"v_add_f32 {v(R+i)}, {v(R+i)}, {v(R+8+i)}")
    for i in range(4): a(f"v_cvt_pk_bf16_f32 {v(R+8+i)}, {v(R+2*i)}, {v(R+2*i+1)}")
    a(f"buffer_store_dwordx4 {v(R+8,4)}, {v(vOa)}, {s(rC,4)}, 0 offen")
    pf.finish(t[0], t[1], sW)
    a("s_endpgm")
    return V.hi

def gen_aux(a, G):
    g = lambda n: G[n]
    pf, sW, sRB, sCB, sH, sR8, sT0, sT1, sT2, sT3, sIt = [g(n) for n in "pf sW sRB sCB sH sR8 sT0 sT1 sT2 sT3 sIt".split()]
    rWS, rA, rB, rC, sU, sMask, sK, END = [g(n) for n in "rWS rA rB rC sU sMask sK END".split()]
    V = Regs("v", 3, 168)
    vL = 2
    vm = Cnt(a, "vmcnt", 63); lg = Cnt(a, "lgkmcnt", 15)
    vL16 = V.alloc(); vT = [V.alloc() for _ in range(6)]
    vWq = [V.alloc(), V.alloc()]; vW1 = [V.alloc(), V.alloc()]
    vD = V.alloc(4, 4)
    sA = sU[0]; sOff = [sU[1], sU[2], sU[3]]; sM = [sU[4], sU[5], sU[6]]; sI8 = sU[7]
    a.c("---------------- aux waves: weight streaming for the two GEMMs")
    a(f"""
    s_setprio {opt("auxprio", 1)}
    s_sub_u32 {s(sA)}, {s(sW)}, 8
    v_lshlrev_b32 {v(vL16)}, 4, {v(vL)}
    v_lshrrev_b32 {v(vT[0])}, 3, {v(vL)}
    s_lshl_b32 {s(sT0)}, {s(sA)}, 4
    v_add_u32 {v(vT[0])}, {s(sT0)}, {v(vT[0])}
    v_bfe_u32 {v(vT[1])}, {v(vL)}, 4, 1
    v_lshlrev_b32 {v(vT[1])}, 2, {v(vT[1])}
    v_and_b32 {v(vT[2])}, 7, {v(vL)}
    v_xor_b32 {v(vT[1])}, {v(vT[1])}, {v(vT[2])}
    v_lshlrev_b32 {v(vT[1])}, 4, {v(vT[1])}
    v_mul_u32_u24 {v(vT[2])}, 3072, {v(vT[0])}
    v_add_u32 {v(vWq[0])}, {v(vT[2])}, {v(vT[1])}
    v_add_u32 {v(vWq[1])}, {8*3072 - 1024}, {v(vWq[0])}
    v_mul_u32_u24 {v(vT[2])}, 2752, {v(vT[0])}
    v_add_u32 {v(vW1[0])}, {v(vT[2])}, {v(vT[1])}
    v_add_u32 {v(vW1[1])}, {8*2752 - 1024}, {v(vW1[0])}
    s_lshl_b32 {s(sOff[0])}, {s(sCB)}, 7
    s_add_u32 {s(sOff[1])}, {s(sOff[0])}, 1024
    s_add_u32 {s(sOff[2])}, {s(sOff[0])}, 2048
    s_lshl_b32 {s(sM[0])}, {s(sA)}, 11
    s_add_u32 {s(sM[0])}, {s(sM[0])}, {RING}
    s_add_u32 {s(sM[1])}, {s(sM[0])}, 8192
    s_add_u32 {s(sM[2])}, {s(sM[0])}, 16384
    s_and_b32 {s(sI8)}, {s(sRB)}, 7
    s_mov_b32 {s(rA+2)}, {512*3072}
    s_mov_b32 {s(rA+3)}, 0x00020000
    s_mov_b32 {s(rB+2)}, {512*2752}
    s_mov_b32 {s(rB+3)}, 0x00020000
    s_cmp_eq_u32 {s(sCB)}, 7
    s_cselect_b32 {s(rC+2)}, 0, {512*2752}
    s_mov_b32 {s(rC+3)}, 0x00020000
    s_waitcnt lgkmcnt(0)
    s_mov_b32 {s(rA)}, s6
    s_mov_b32 {s(rA+1)}, s7
    s_mov_b32 {s(rB)}, s12
    s_mov_b32 {s(rB+1)}, s13
    s_mov_b32 {s(rC)}, s12
    s_mov_b32 {s(rC+1)}, s13
    """)
    sLQ, sLH = sU[8], sU[9]
    sN = sK
    nn = a.label("X_nonce")
    a(f"""
    s_lshl_b32 {s(sLQ)}, {s(sH)}, 3
    s_add_u32 {s(sLQ)}, {s(sLQ)}, {s(sR8)}
    s_lshl_b32 {s(sLQ)}, {s(sLQ)}, 8
    s_add_u32 {s(sLQ)}, {s(sLQ)}, {FLAG_Q}
    s_lshl_b32 {s(sLH)}, {s(sRB)}, 3
    s_add_u32 {s(sLH)}, {s(sLH)}, {s(sCB)}
    s_lshl_b32 {s(sLH)}, {s(sLH)}, 8
    s_add_u32 {s(sLH)}, {s(sLH)}, {FLAG_H}
    """)
    a.c("workgroup 0, wave 11 picks this launch's tag (previous tag + 1, low word never 0) and publishes it through d_debug")
    a(f"""
    s_cmp_lg_u32 s2, 0
    s_cbranch_scc1 {nn}
    s_cmp_lg_u32 {s(sA)}, 3
    s_cbranch_scc1 {nn}
    v_mov_b32 {v(vT[4])}, 0
    s_mov_b32 {s(sT0)}, {WS_EPOCH}
    s_mov_b64 exec, 1
    buffer_load_dwordx2 {v(vD,2)}, {v(vT[4])}, {s(rWS,4)}, {s(sT0)} offen{SC}
    s_waitcnt vmcnt(0)
    v_add_co_u32 {v(vD)}, vcc, 1, {v(vD)}
    s_nop 1
    v_addc_co_u32 {v(vD+1)}, vcc, 0, {v(vD+1)}, vcc
    v_max_u32 {v(vD)}, 1, {v(vD)}
    buffer_store_dwordx2 {v(vD,2)}, {v(vT[4])}, {s(rWS,4)}, {s(sT0)} offen{SC}
    global_store_dwordx2 {v(vT[4])}, {v(vD,2)}, s[22:23]{SC}
    s_mov_b64 exec, -1
    {nn}:
    """)
    def dma(c):
        sl = c & 3
        if c == 8:
            a(f"""
            s_mul_i32 {s(sOff[0])}, {s(sCB)}, 384
            s_add_u32 {s(sOff[1])}, {s(sOff[0])}, 128
            s_add_u32 {s(sOff[2])}, {s(sOff[0])}, 256
            """)
        for gi in range(3):
            r = rA if c < 8 else (rB if gi == 0 else rC)
            vo = vWq if c < 8 else vW1
            a(f"""
            s_add_u32 m0, {s(sM[gi])}, {sl*SLOT}
            s_nop 0
            buffer_load_dwordx4 {v(vo[0])}, {s(r,4)}, {s(sOff[gi])} offen{WNT} lds
            buffer_load_dwordx4 {v(vo[1])}, {s(r,4)}, {s(sOff[gi])} offen offset:1024{WNT} lds
            s_add_u32 {s(sOff[gi])}, {s(sOff[gi])}, {64*(3072 if c < 8 else 2752)}
            """)
            vm.op(("c", c), 2)
    if opt("lin", 0):
        a.c("linear warm-up of the weights into the memory-side cache: every workgroup touches a contiguous 1/256 of one matrix per wave")
        rL = G["rL"]
        a(f"""
        s_cmp_eq_u32 {s(sA)}, 1
        s_cselect_b32 {s(rL)}, s12, s6
        s_cselect_b32 {s(rL+1)}, s13, s7
        s_movk_i32 {s(sT1)}, 6144
        s_cselect_b32 {s(sT0)}, 5504, {s(sT1)}
        s_cmp_eq_u32 {s(sA)}, 2
        s_cselect_b32 {s(rL)}, s16, {s(rL)}
        s_cselect_b32 {s(rL+1)}, s17, {s(rL+1)}
        s_cselect_b32 {s(sT0)}, 5504, {s(sT0)}
        s_cmp_eq_u32 {s(sA)}, 3
        s_cselect_b32 {s(rL)}, s8, {s(rL)}
        s_cselect_b32 {s(rL+1)}, s9, {s(rL+1)}
        s_cselect_b32 {s(sT0)}, 2048, {s(sT0)}
        s_lshl_b32 {s(rL+2)}, {s(sT0)}, 8
        s_mov_b32 {s(rL+3)}, 0x00020000
        s_mul_i32 {s(sT1)}, {s(sT0)}, s2
        s_sub_u32 {s(sT0)}, {s(sT0)}, 4
        v_lshlrev_b32 {v(vT[4])}, 7, {v(vL)}
        v_min_u32 {v(vT[4])}, {s(sT0)}, {v(vT[4])}
        buffer_load_dword {v(vD+2)}, {v(vT[4])}, {s(rL,4)}, {s(sT1)} offen
        """)
        vm.op("lin")
    if opt("tlbw", 0):
        a(f"""
        v_lshlrev_b32 {v(vT[4])}, 20, {v(vL)}
        v_add_u32 {v(vT[4])}, 0xff000, {v(vT[4])}
        buffer_load_dword {v(vD+3)}, {v(vT[4])}, {s(rWS,4)}, 0 offen
        """)
        vm.op("tlb")
    PFS = SC if opt("pfsc", 0) else (" nt" if opt("pfnt", 0) else "")
    a.c("cooperative L2 warm-up (speed only): this workgroup touches 1/8 of the lines its column block needs")
    a(f"""
    s_lshl_b32 {s(sT0)}, {s(sI8)}, 6
    v_add_u32 {v(vT[1])}, {s(sT0)}, {v(vL)}
    v_mul_u32_u24 {v(vT[0])}, 2752, {v(vT[1])}
    v_mul_u32_u24 {v(vT[1])}, 3072, {v(vT[1])}
    s_lshl_b32 {s(sT0)}, {s(sA)}, 7
    s_min_u32 {s(sT0)}, {s(sT0)}, 380
    s_mul_i32 {s(sT1)}, {s(sCB)}, 384
    s_add_u32 {s(sT0)}, {s(sT0)}, {s(sT1)}
    s_lshl_b32 {s(sT1)}, {s(sCB)}, 7
    s_lshl_b32 {s(sT2)}, {s(sA)}, 10
    s_add_u32 {s(sT1)}, {s(sT1)}, {s(sT2)}
    s_cmp_eq_u32 {s(sA)}, 3
    s_cselect_b32 {s(sT1)}, 0x4000000, {s(sT1)}
    """)
    def pfA(): a(f"buffer_load_dword {v(vD)}, {v(vT[1])}, {s(rA,4)}, {s(sT1)} offen{PFS}"); vm.op("pf")
    def pfB(): a(f"buffer_load_dword {v(vD+1)}, {v(vT[0])}, {s(rB,4)}, {s(sT0)} offen{PFS}"); vm.op("pf")
    order = {0: "X A 0 B 1", 1: "X 0 A 1 B", 2: "A X 0 B 1", 3: "X A B 0 1", 4: "X 0 1 A B", 5: "A B X 0 1", 6: "X 0 1", 7: "X 0 1 A"}[opt("pford", 7)]
    for o in order.split():
        if o == "X": a("s_barrier")
        elif o == "A": pfA()
        elif o == "B": pfB()
        else: dma(int(o))
    def poll(setup, load, nl):
        L = a.label("X_poll"); D = a.label("X_polld")
        a(setup)
        a(f"s_mov_b32 {s(sIt)}, 0\ns_mov_b64 exec, 255")
        if nl == 32: a("s_mov_b32 exec_lo, -1")
        a(f"""
        {L}:
        {load}
        s_add_u32 {s(sIt)}, {s(sIt)}, 1
        s_waitcnt vmcnt(0)
        v_cmp_ne_u64 vcc, {s(sN,2)}, {v(vD,2)}
        s_cbranch_vccz {D}
        s_sleep {opt("pollsleep", 2)}
        s_cmp_lt_u32 {s(sIt)}, 0x20000
        s_cbranch_scc1 {L}
        {D}:
        s_mov_b64 exec, -1
        """)
        vm.q = []
    def setflag(base, sline, lineshift, sslot, nl):
        nf = a.label("X_noflag")
        a(f"""
        s_cmp_lg_u32 {s(sA)}, 0
        s_cbranch_scc1 {nf}
        s_lshl_b32 {s(sT0)}, {s(sline)}, {lineshift + 8}
        s_lshl_b32 {s(sT1)}, {s(sslot)}, 3
        s_add_u32 {s(sT0)}, {s(sT0)}, {s(sT1)}
        s_add_u32 {s(sT0)}, {s(sT0)}, {base}
        v_lshlrev_b32 {v(vT[0])}, 8, {v(vL)}
        v_mov_b64 {v(vD+2,2)}, {s(sN,2)}
        s_mov_b64 exec, 255
        """)
        if nl == 32: a("s_mov_b32 exec_lo, -1")
        a(f"""
        buffer_store_dwordx2 {v(vD+2,2)}, {v(vT[0])}, {s(rWS,4)}, {s(sT0)} offen{SC}
        s_mov_b64 exec, -1
        {nf}:
        """)
    for c in range(16):
        vm.wait(("c", c))
        if c >= 5: pf.stamp(c - 4, "fine")
        a("s_barrier")
        if c == 0: pf.stamp(4)
        if c == 8: pf.stamp(5)
        sched = {0: [2, 3]}
        for k in range(4, 16): sched[k - 3] = [k]
        if opt("dsched", 1) == 1:
            sched[9] = []; sched[10] = [12]; sched[11] = [13, 14]
        if opt("dsched", 1) == 2:
            sched[9] = []; sched[10] = []; sched[11] = [12, 13, 14]
        for k in sched.get(c, []): dma(k)
        if c == opt("pfb", 4) and "B" not in order: pfB()
        if c == 10:
            a(f"s_load_dwordx2 {s(sN,2)}, s[22:23], 0")
        if c == 14:
            tk, tl = a.label("X_tok"), a.label("X_tokl")
            a(f"""
            s_waitcnt lgkmcnt(0)
            s_cmp_lg_u32 {s(sN)}, 0
            s_cbranch_scc1 {tk}
            s_mov_b32 {s(sIt)}, 0
            v_mov_b32 {v(vT[4])}, 0
            {tl}:
            global_load_dwordx2 {v(vD,2)}, {v(vT[4])}, s[22:23]{SC}
            s_add_u32 {s(sIt)}, {s(sIt)}, 1
            s_waitcnt vmcnt(0)
            v_readfirstlane_b32 {s(sN)}, {v(vD)}
            v_readfirstlane_b32 {s(sN+1)}, {v(vD+1)}
            s_cmp_lg_u32 {s(sN)}, 0
            s_cbranch_scc1 {tk}
            s_sleep 2
            s_cmp_lt_u32 {s(sIt)}, 0x20000
            s_cbranch_scc1 {tl}
            {tk}:
            """)
    pf.stamp(1)
    qset = f"""
        v_and_b32 {v(vT[0])}, 31, {v(vL)}
        v_lshlrev_b32 {v(vT[0])}, 3, {v(vT[0])}
        """
    qld = f"buffer_load_dwordx2 {v(vD,2)}, {v(vT[0])}, {s(rWS,4)}, {s(sLQ)} offen{SC}"
    a(qset); a(qld)
    a("s_barrier")
    a("s_waitcnt vmcnt(0)")
    pf.stamp(6)
    qok = a.label("X_qok")
    a(f"v_cmp_ne_u64 vcc, {s(sN,2)}, {v(vD,2)}\ns_cbranch_vccz {qok}")
    poll("", qld, 32)
    a(f"{qok}:")
    pf.stamp(2)
    a.c("Q tiles -> staging, K/V -> LDS; wave a: matrix (a>>1), tiles 8*(a&1).. of every group of 16")
    a(f"""
    s_lshl_b32 {s(sT0)}, {s(sH)}, 16
    s_lshl_b32 {s(sT1)}, {s(sR8)}, 13
    s_add_u32 {s(sT1)}, {s(sT1)}, {s(sT0)}
    s_lshl_b32 {s(sT2)}, {s(sA)}, 11
    s_add_u32 {s(sT1)}, {s(sT1)}, {s(sT2)}
    s_add_u32 {s(sT1)}, {s(sT1)}, {WS_Q}
    s_add_u32 m0, {s(sT2)}, {STG}
    s_nop 0
    buffer_load_dwordx4 {v(vL16)}, {s(rWS,4)}, {s(sT1)} offen{SCL} lds
    buffer_load_dwordx4 {v(vL16)}, {s(rWS,4)}, {s(sT1)} offen offset:1024{SCL} lds
    s_lshr_b32 {s(sT1)}, {s(sA)}, 1
    s_lshl_b32 {s(sT2)}, {s(sT1)}, 21
    s_add_u32 {s(sT0)}, {s(sT0)}, {s(sT2)}
    s_add_u32 {s(sT0)}, {s(sT0)}, {WS_K}
    s_lshl_b32 {s(sT1)}, {s(sT1)}, 16
    s_and_b32 {s(sT2)}, {s(sA)}, 1
    s_lshl_b32 {s(sT2)}, {s(sT2)}, 13
    s_add_u32 {s(sT0)}, {s(sT0)}, {s(sT2)}
    s_add_u32 {s(sT1)}, {s(sT1)}, {s(sT2)}
    """)
    vm.op("s1", 2)
    for st in range(4):
        for hb in range(2):
            a(f"s_add_u32 m0, {s(sT1)}, {st*16384 + hb*4096}\ns_add_u32 {s(sT2)}, {s(sT0)}, {st*16384 + hb*4096}")
            for i in range(4):
                a(f"buffer_load_dwordx4 {v(vL16)}, {s(rWS,4)}, {s(sT2)} offen offset:{i*1024}{SCL} lds")
            vm.op("s1" if st == 0 else "s2", 4)
        if st == 0 and opt("early1", 1):
            vm.wait("s1"); a("s_barrier"); pf.stamp(8)
    if not opt("early1", 1):
        vm.wait("s1"); a("s_barrier"); pf.stamp(8)
    a.c("L2 warm-up of W2 / Wo column block (1/8 share)")
    a(f"""
    s_mov_b32 {s(rA)}, s16
    s_mov_b32 {s(rA+1)}, s17
    s_mov_b32 {s(rA+2)}, {1376*1024}
    s_mov_b32 {s(rB)}, s8
    s_mov_b32 {s(rB+1)}, s9
    s_mov_b32 {s(rB+2)}, {512*1024}
    s_mul_i32 {s(sT0)}, {s(sI8)}, 172
    s_mul_i32 {s(sT1)}, {s(sA)}, 43
    s_add_u32 {s(sT0)}, {s(sT0)}, {s(sT1)}
    v_min_u32 {v(vT[0])}, 42, {v(vL)}
    v_add_u32 {v(vT[0])}, {s(sT0)}, {v(vT[0])}
    v_lshlrev_b32 {v(vT[0])}, 10, {v(vT[0])}
    s_lshl_b32 {s(sT0)}, {s(sI8)}, 6
    s_lshl_b32 {s(sT1)}, {s(sA)}, 4
    s_add_u32 {s(sT0)}, {s(sT0)}, {s(sT1)}
    v_and_b32 {v(vT[1])}, 15, {v(vL)}
    v_add_u32 {v(vT[1])}, {s(sT0)}, {v(vT[1])}
    v_lshlrev_b32 {v(vT[1])}, 10, {v(vT[1])}
    s_lshl_b32 {s(sT1)}, {s(sCB)}, 7
    buffer_load_dword {v(vT[3])}, {v(vT[0])}, {s(rA,4)}, {s(sT1)} offen
    buffer_load_dword {v(vT[5])}, {v(vT[1])}, {s(rB,4)}, {s(sT1)} offen
    """)
    vm.op("pf", 2)
    vm.wait("s2")
    a("s_barrier")
    setflag(FLAG_H, sRB, 3, sCB, 8)
    pf.stamp(3)
    poll(f"v_lshlrev_b32 {v(vT[0])}, 3, {v(vL)}", f"buffer_load_dwordx2 {v(vD,2)}, {v(vT[0])}, {s(rWS,4)}, {s(sLH)} offen{SC}", 8)
    pf.stamp(7)
    ACC = [V.alloc(16, 4), V.alloc(16, 4)]
    HB = [V.alloc(4, 4) for _ in range(4)]; WB = [V.alloc(8, 4) for _ in range(2)]
    vWo = [vWq[0], vWq[1]]; vRa = vW1[0]; vRb = vW1[1]
    sHo, sWo, sSt = sU[1], sU[2], sU[3]
    a.c("---------------- FFN2 in the shadow of attention")
    a(f"""
    s_and_b32 {s(sT0)}, {s(sA)}, 1
    s_lshl_b32 {s(sT1)}, {s(sRB)}, 1
    s_add_u32 {s(sT1)}, {s(sT1)}, {s(sT0)}
    s_mul_i32 {s(sT1)}, {s(sT1)}, {A3_TSTRIDE}
    s_add_u32 {s(sT1)}, {s(sT1)}, {WS_A3 + 32*1024}
    s_add_u32 {s(rC)}, {s(rWS)}, {s(sT1)}
    s_addc_u32 {s(rC+1)}, {s(rWS+1)}, 0
    s_mov_b32 {s(rC+2)}, {86*1024}
    s_lshr_b32 {s(sT1)}, {s(sA)}, 1
    s_mul_i32 {s(sHo)}, {s(sT1)}, {44*1024}
    s_mul_i32 {s(sWo)}, {s(sT1)}, {44*16*1024}
    s_lshl_b32 {s(sT2)}, {s(sCB)}, 7
    s_add_u32 {s(sWo)}, {s(sWo)}, {s(sT2)}
    s_lshl_b32 {s(sSt)}, {s(sA)}, 13
    s_add_u32 {s(sSt)}, {s(sSt)}, {STG}
    v_lshrrev_b32 {v(vT[0])}, 3, {v(vL)}
    v_bfe_u32 {v(vT[1])}, {v(vL)}, 4, 1
    v_lshlrev_b32 {v(vT[1])}, 2, {v(vT[1])}
    v_and_b32 {v(vT[2])}, 7, {v(vL)}
    v_xor_b32 {v(vT[1])}, {v(vT[1])}, {v(vT[2])}
    v_lshlrev_b32 {v(vT[1])}, 4, {v(vT[1])}
    v_lshl_add_u32 {v(vWo[0])}, {v(vT[0])}, 10, {v(vT[1])}
    v_add_u32 {v(vWo[1])}, {8*1024 - 1024}, {v(vWo[0])}
    v_lshrrev_b32 {v(vT[0])}, 5, {v(vL)}
    v_bfe_u32 {v(vT[1])}, {v(vL)}, 2, 2
    v_lshl_add_u32 {v(vT[1])}, {v(vT[0])}, 2, {v(vT[1])}
    v_lshlrev_b32 {v(vT[1])}, 7, {v(vT[1])}
    v_bfe_u32 {v(vT[0])}, {v(vL)}, 3, 1
    v_lshl_add_u32 {v(vT[1])}, {v(vT[0])}, 6, {v(vT[1])}
    v_bfe_u32 {v(vT[0])}, {v(vL)}, 4, 1
    v_lshl_add_u32 {v(vT[1])}, {v(vT[0])}, 5, {v(vT[1])}
    v_and_b32 {v(vT[0])}, 3, {v(vL)}
    v_lshl_add_u32 {v(vT[1])}, {v(vT[0])}, 3, {v(vT[1])}
    v_add_u32 {v(vRa)}, {s(sSt)}, {v(vT[1])}
    v_xor_b32 {v(vRb)}, 64, {v(vRa)}
    """)
    for n in range(2):
        for i in range(16): a(f"v_mov_b32 {v(ACC[n]+i)}, 0")
    def f_issue(sl):
        a(f"""
        s_add_u32 m0, {s(sSt)}, {sl*2048}
        buffer_load_dwordx4 {v(HB[sl],4)}, {v(vL16)}, {s(rC,4)}, {s(sHo)} offen{SCL}
        buffer_load_dwordx4 {v(vWo[0])}, {s(rA,4)}, {s(sWo)} offen lds
        buffer_load_dwordx4 {v(vWo[1])}, {s(rA,4)}, {s(sWo)} offen offset:1024 lds
        s_add_u32 {s(sHo)}, {s(sHo)}, 1024
        s_add_u32 {s(sWo)}, {s(sWo)}, 16384
        """)
    for sl in range(3): f_issue(sl)
    FL = a.label("X_FFN2")
    a(f"s_mov_b32 {s(sIt)}, 0\n{FL}:")
    for sl in range(4):
        a("s_waitcnt vmcnt(6)")
        w = WB[sl % 2]
        for n, va in enumerate((vRa, vRb)):
            for j in range(2):
                a(f"ds_read_b64_tr_b16 {v(w+4*n+2*j,2)}, {v(va)} offset:{sl*2048 + j*1024}")
        f_issue((sl + 3) % 4)
        a("s_waitcnt lgkmcnt(0)")
        for n in range(2):
            a(f"{MFMA} {v(ACC[n],16)}, {v(w+4*n,4)}, {v(HB[sl],4)}, {v(ACC[n],16)}")
    a(f"""
    s_add_u32 {s(sIt)}, {s(sIt)}, 1
    s_cmp_lt_u32 {s(sIt)}, {opt("ffnit", 11)}
    s_cbranch_scc1 {FL}
    s_waitcnt vmcnt(0)
    s_nop 7
    v_add_u32 {v(vT[0])}, {s(sSt)}, {v(vL16)}
    """)
    for n in range(2):
        for gq in range(4):
            a(f"ds_write_b128 {v(vT[0])}, {v(ACC[n]+4*gq,4)} offset:{n*4096 + gq*1024}")
    a("s_waitcnt lgkmcnt(0)")
    pf.stamp(9)
    a("s_barrier")
    a.c("Wo column block -> LDS [0,64K): wave a rows 128a..128a+127")
    a(f"""
    s_lshl_b32 {s(sT0)}, {s(sA)}, 17
    s_lshl_b32 {s(sT1)}, {s(sCB)}, 7
    s_add_u32 {s(sT0)}, {s(sT0)}, {s(sT1)}
    s_lshl_b32 {s(sT1)}, {s(sA)}, 14
    """)
    for i in range(8):
        a(f"""
        s_add_u32 m0, {s(sT1)}, {i*2048}
        s_add_u32 {s(sT2)}, {s(sT0)}, {i*16384}
        buffer_load_dwordx4 {v(vWo[0])}, {s(rB,4)}, {s(sT2)} offen lds
        buffer_load_dwordx4 {v(vWo[1])}, {s(rB,4)}, {s(sT2)} offen offset:1024 lds
        """)
    a("s_barrier")
    pf.stamp(10)
    setflag(FLAG_O, sR8, 5, sH, 32)
    poll(f"v_lshlrev_b32 {v(vT[0])}, 3, {v(vL)}\ns_add_u32 {s(sT0)}, {s(sLH)}, 65536", f"buffer_load_dwordx2 {v(vD,2)}, {v(vT[0])}, {s(rWS,4)}, {s(sT0)} offen{SC}", 32)
    pf.stamp(12)
    a.c("O fragments -> LDS [64K,128K): wave a: token tile (a&1), heads 16*(a>>1)..")
    a(f"""
    s_and_b32 {s(sT0)}, {s(sA)}, 1
    s_lshl_b32 {s(sT1)}, {s(sRB)}, 1
    s_add_u32 {s(sT1)}, {s(sT1)}, {s(sT0)}
    s_mul_i32 {s(sT1)}, {s(sT1)}, {A3_TSTRIDE}
    s_lshr_b32 {s(sT2)}, {s(sA)}, 1
    s_lshl_b32 {s(sT2)}, {s(sT2)}, 14
    s_add_u32 {s(sT1)}, {s(sT1)}, {s(sT2)}
    s_add_u32 {s(sT1)}, {s(sT1)}, {WS_A3}
    s_lshl_b32 {s(sT0)}, {s(sT0)}, 15
    s_add_u32 {s(sT0)}, {s(sT0)}, {s(sT2)}
    s_add_u32 {s(sT0)}, {s(sT0)}, 65536
    """)
    for q4 in range(4):
        a(f"s_add_u32 m0, {s(sT0)}, {q4*4096}\ns_add_u32 {s(sT2)}, {s(sT1)}, {q4*4096}")
        for i in range(4):
            a(f"buffer_load_dwordx4 {v(vL16)}, {s(rWS,4)}, {s(sT2)} offen offset:{i*1024}{SCL} lds")
    a("s_waitcnt vmcnt(8)\ns_barrier")
    pf.stamp(11)
    a("s_waitcnt vmcnt(0)\ns_barrier")
    pf.finish(vT[0], vT[1], sW)
    return V.hi

def main():
    head = open("cdna_kernels/" + NAME + ".s.ref").read().split("\n")
    hdr = [l for l in head if l.startswith(";") and "@launch" not in l and "Override launch" not in l and "grid=ceil" not in l]
    a = Asm()
    out = "\n".join(hdr) + "\n; @launch grid=(256,1,1) block=(768,1,1) lds=163840\n"
    out += '.amdgcn_target "amdgcn-amd-amdhsa--gfx950"\n.text\n'
    vh, sh = gen(a)
    print("vgpr", vh, "sgpr", sh, file=sys.stderr)
    out += a.text() + '.section .rodata,"a"\n.p2align 6\n' + kernel_desc(KNAME, vh, sh)
    args = [x for x in sys.argv[1:] if x.endswith(".s")]
    dst = args[0] if args else "cdna_kernels/" + NAME + ".s"
    open(dst, "w").write(out)

main()
```

```python
import sys, struct
from asmlib import *

NAME = "parallel_sum__softmax_full_mha__dense_activation_gelu__prompt"
WS_Q, WS_K, WS_V, WS_A3 = 0x000000, 0x200000, 0x400000, 0x600000
A3_STEPS = 118
A3_TSTRIDE = A3_STEPS * 1024
WS_A3_BYTES = 64 * A3_TSTRIDE
WS_END = WS_A3 + WS_A3_BYTES
LOG2E = 1.4426950408889634
def f32(x): return "0x%08x" % struct.unpack("<I", struct.pack("<f", x))[0]

PROF = "prof" in sys.argv
WS_PROF = 0x2000000
class Prof:
    def __init__(self, a, S, kidx, n):
        self.a, self.kidx, self.n, self.i = a, kidx, n, 0
        if PROF:
            self.t = [S.alloc(2, 2) for _ in range(n)]
            self.rt = [S.alloc(2, 2) for _ in range(2)]
            self.r = S.alloc(4, 4)
    def start(self):
        if PROF: self.a(f"s_memrealtime {s(self.rt[0],2)}")
        self.stamp()
    def stamp(self):
        if PROF:
            self.a(f"s_memtime {s(self.t[self.i],2)}")
            self.i += 1
    def finish(self, wsptr_lo, vtmp, vtmp2, wave_s):
        if not PROF: return
        a = self.a
        self.stamp()
        a(f"s_memrealtime {s(self.rt[1],2)}\ns_waitcnt lgkmcnt(0)")
        a(f"s_load_dwordx2 {s(self.r,2)}, s[0:1], 80\ns_waitcnt lgkmcnt(0)")
        a(f"s_mov_b32 {s(self.r+2)}, 0x4000000\ns_mov_b32 {s(self.r+3)}, 0x00020000")
        a(f"s_lshl_b32 {s(self.rt[0]+1)}, s2, 4\ns_add_u32 {s(self.rt[0]+1)}, {s(self.rt[0]+1)}, {s(wave_s)}\ns_lshl_b32 {s(self.rt[0]+1)}, {s(self.rt[0]+1)}, 6")
        a(f"s_add_u32 {s(self.rt[0]+1)}, {s(self.rt[0]+1)}, {WS_PROF + self.kidx * 0x40000}")
        a(f"s_mov_b64 exec, 1\nv_mov_b32 {v(vtmp)}, {s(self.rt[0]+1)}")
        vals = [self.rt[0], self.rt[1]] + self.t[:self.i]
        for j, r in enumerate(vals):
            a(f"v_mov_b32 {v(vtmp2)}, {s(r)}\nbuffer_store_dword {v(vtmp2)}, {v(vtmp)}, {s(self.r,4)}, 0 offen offset:{4*j}\ns_nop 1")

def srd(a, d, lo, hi, size):
    a(f"s_mov_b32 {s(d)}, {lo}\ns_mov_b32 {s(d+1)}, {hi}\ns_mov_b32 {s(d+2)}, {size}\ns_mov_b32 {s(d+3)}, 0x00020000")

def gen_k1(a, name):
    S = Regs("s", 14, 102); V = Regs("v", 1, 256)
    kernel_header(a, name)
    END = a.label("K1_END")
    pf = Prof(a, S, 0, 10)
    SLOT = 40960
    sW, sMT, sNH, sR, sCP, sFB = [S.alloc() for _ in range(6)]
    sT0, sT1, sT2, sT3 = [S.alloc() for _ in range(4)]
    rX = S.alloc(4, 4); rG = [S.alloc(4, 4) for _ in range(3)]; rB1 = S.alloc(4, 4); rWS = S.alloc(4, 4)
    sOffX = S.alloc(); sOffG = [S.alloc() for _ in range(3)]; sStepG1 = S.alloc()
    sM0X = S.alloc(); sM0G = [S.alloc() for _ in range(3)]
    sSlotI, sSlotC, sIt = S.alloc(), S.alloc(), S.alloc()
    sColF = [None, S.alloc(), S.alloc()]
    sCol0 = S.alloc()
    vL = V.alloc(); vXo = [V.alloc(), V.alloc()]; vWo = [V.alloc() for _ in range(3)]
    vXa = [V.alloc() for _ in range(4)]; vWa = V.alloc()
    cXa = [V.alloc() for _ in range(4)]; cWa = V.alloc()
    vOnes = V.alloc(); vSA = [V.alloc(), V.alloc()]; vCS = [[V.alloc(), V.alloc()] for _ in range(3)]
    vB = [None, V.alloc(), V.alloc()]
    vT = [V.alloc() for _ in range(12)]
    F = [V.alloc(16, 4) for _ in range(4)]
    ACC = [V.alloc(16, 4) for _ in range(3)]
    a(f"""
    s_cmp_ge_u32 s2, 256
    s_cbranch_scc1 {END}
    """)
    pf.start()
    a(f"""
    s_load_dwordx4 s[4:7], s[0:1], 0
    s_load_dwordx4 s[8:11], s[0:1], 32
    s_load_dwordx2 s[12:13], s[0:1], 80
    v_lshrrev_b32 {v(vT[0])}, 6, v0
    v_and_b32 {v(vL)}, 63, v0
    v_readfirstlane_b32 {s(sW)}, {v(vT[0])}
    s_and_b32 {s(sT0)}, s2, 7
    s_lshr_b32 {s(sT1)}, s2, 3
    s_and_b32 {s(sR)}, {s(sT0)}, 1
    s_lshl_b32 {s(sR)}, {s(sR)}, 3
    s_and_b32 {s(sT2)}, {s(sT1)}, 7
    s_add_u32 {s(sR)}, {s(sR)}, {s(sT2)}
    s_lshr_b32 {s(sT1)}, {s(sT1)}, 3
    s_lshr_b32 {s(sFB)}, {s(sT1)}, 1
    s_and_b32 {s(sT1)}, {s(sT1)}, 1
    s_andn2_b32 {s(sCP)}, {s(sT0)}, 1
    s_add_u32 {s(sCP)}, {s(sCP)}, {s(sT1)}
    s_and_b32 {s(sMT)}, {s(sW)}, 3
    s_lshr_b32 {s(sNH)}, {s(sW)}, 2
    """)
    a.c("column bases: A: g0=128cp g1=128cp+64 (Wqkv) g2=64cp (W1); B: g0=1024+64cp (Wqkv), g1=64(8+2cp), g2=64(9+2cp) (W1)")
    a(f"""
    s_lshl_b32 {s(sT0)}, {s(sCP)}, 7
    s_lshl_b32 {s(sT1)}, {s(sCP)}, 6
    s_add_u32 {s(sT2)}, {s(sT1)}, 1024
    s_cmp_eq_u32 {s(sFB)}, 0
    s_cselect_b32 {s(sCol0)}, {s(sT0)}, {s(sT2)}
    s_add_u32 {s(sT2)}, {s(sT0)}, 64
    s_add_u32 {s(sT3)}, {s(sT0)}, 512
    s_cmp_eq_u32 {s(sFB)}, 0
    s_cselect_b32 {s(sOffG[1])}, {s(sT2)}, {s(sT3)}
    s_cselect_b32 {s(sColF[1])}, 0x100000, {s(sT3)}
    s_add_u32 {s(sT3)}, {s(sT0)}, 576
    s_cmp_eq_u32 {s(sFB)}, 0
    s_cselect_b32 {s(sColF[2])}, {s(sT1)}, {s(sT3)}
    s_movk_i32 {s(sT2)}, 3072
    s_cselect_b32 {s(sStepG1)}, {s(sT2)}, 2752
    s_lshl_b32 {s(sOffG[0])}, {s(sCol0)}, 1
    s_lshl_b32 {s(sOffG[1])}, {s(sOffG[1])}, 1
    s_lshl_b32 {s(sOffG[2])}, {s(sColF[2])}, 1
    s_mov_b32 {s(sOffX)}, 0
    """)
    a.c("per-lane DMA source offsets")
    a(f"""
    v_lshrrev_b32 {v(vT[0])}, 3, {v(vL)}
    v_and_b32 {v(vT[1])}, 7, {v(vL)}
    v_lshrrev_b32 {v(vT[2])}, 4, {v(vL)}
    s_lshl_b32 {s(sT0)}, {s(sR)}, 7
    s_lshl_b32 {s(sT1)}, {s(sW)}, 4
    s_add_u32 {s(sT0)}, {s(sT0)}, {s(sT1)}
    v_add_u32 {v(vT[3])}, {s(sT0)}, {v(vT[0])}
    v_lshlrev_b32 {v(vT[3])}, 10, {v(vT[3])}
    v_xor_b32 {v(vT[4])}, {v(vT[1])}, {v(vT[2])}
    v_lshl_add_u32 {v(vXo[0])}, {v(vT[4])}, 4, {v(vT[3])}
    v_xor_b32 {v(vT[4])}, 4, {v(vT[4])}
    v_lshl_add_u32 {v(vXo[1])}, {v(vT[4])}, 4, {v(vT[3])}
    v_add_u32 {v(vXo[1])}, {8192 - 1024}, {v(vXo[1])}
    s_lshl_b32 {s(sT1)}, {s(sW)}, 3
    v_add_u32 {v(vT[3])}, {s(sT1)}, {v(vT[0])}
    v_and_b32 {v(vT[2])}, 1, {v(vT[2])}
    v_lshlrev_b32 {v(vT[2])}, 2, {v(vT[2])}
    v_xor_b32 {v(vT[4])}, {v(vT[1])}, {v(vT[2])}
    v_lshlrev_b32 {v(vT[4])}, 4, {v(vT[4])}
    v_mul_u32_u24 {v(vT[5])}, 3072, {v(vT[3])}
    v_add_u32 {v(vWo[0])}, {v(vT[5])}, {v(vT[4])}
    v_mul_u32_u24 {v(vT[5])}, 2752, {v(vT[3])}
    v_add_u32 {v(vWo[2])}, {v(vT[5])}, {v(vT[4])}
    v_mul_u32_u24 {v(vT[5])}, {s(sStepG1)}, {v(vT[3])}
    v_add_u32 {v(vWo[1])}, {v(vT[5])}, {v(vT[4])}
    s_lshl_b32 {s(sStepG1)}, {s(sStepG1)}, 6
    s_lshl_b32 {s(sM0X)}, {s(sW)}, 11
    s_lshl_b32 {s(sT0)}, {s(sW)}, 10
    s_add_u32 {s(sM0G[0])}, {s(sT0)}, 16384
    s_add_u32 {s(sM0G[1])}, {s(sT0)}, {16384 + 8192}
    s_add_u32 {s(sM0G[2])}, {s(sT0)}, {16384 + 16384}
    s_waitcnt lgkmcnt(0)
    """)
    srd(a, rX, "s4", "s5", 2048 * 1024)
    srd(a, rG[0], "s6", "s7", 512 * 3072)
    srd(a, rB1, "s10", "s11", 2752)
    srd(a, rWS, "s12", "s13", WS_END)
    a(f"""
    s_cmp_ge_u32 {s(sColF[2])}, 1376
    s_cselect_b32 {s(sT0)}, 0, {512 * 2752}
    s_mov_b32 {s(rG[2])}, s8
    s_mov_b32 {s(rG[2]+1)}, s9
    s_mov_b32 {s(rG[2]+2)}, {s(sT0)}
    s_mov_b32 {s(rG[2]+3)}, 0x00020000
    s_cmp_ge_u32 {s(sColF[1])}, 1376
    s_cselect_b32 {s(sT0)}, 0, {512 * 2752}
    s_cmp_eq_u32 {s(sFB)}, 0
    s_cselect_b32 {s(rG[1])}, s6, s8
    s_cselect_b32 {s(rG[1]+1)}, s7, s9
    s_cselect_b32 {s(rG[1]+2)}, {512 * 3072}, {s(sT0)}
    s_mov_b32 {s(rG[1]+3)}, 0x00020000
    """)
    def dma(slot_expr_s):
        a(f"""
        s_add_u32 m0, {slot_expr_s}, {s(sM0X)}
        s_nop 0
        buffer_load_dwordx4 {v(vXo[0])}, {s(rX,4)}, {s(sOffX)} offen lds
        buffer_load_dwordx4 {v(vXo[1])}, {s(rX,4)}, {s(sOffX)} offen offset:1024 lds
        s_add_u32 {s(sOffX)}, {s(sOffX)}, 128
        """)
        for g in range(3):
            step = {0: str(64 * 3072), 1: s(sStepG1), 2: str(64 * 2752)}[g]
            a(f"""
            s_add_u32 m0, {slot_expr_s}, {s(sM0G[g])}
            s_nop 0
            buffer_load_dwordx4 {v(vWo[g])}, {s(rG[g],4)}, {s(sOffG[g])} offen lds
            s_add_u32 {s(sOffG[g])}, {s(sOffG[g])}, {step}
            """)
    if "pref" in sys.argv:
        rW1 = S.alloc(4, 4)
        srd(a, rW1, "s8", "s9", 512 * 2752)
        vP = [F[0], F[0]+1, F[0]+2]
        a.c("cooperative L2 warm-up: this CU touches 1/32 of its XCD's working set, wave w = k-chunk w")
        a(f"""
        s_lshr_b32 {s(sT0)}, s2, 3
        s_and_b32 {s(sT1)}, s2, 1
        s_lshl_b32 {s(sT1)}, {s(sT1)}, 5
        s_add_u32 {s(sT1)}, {s(sT1)}, {s(sT0)}
        s_lshl_b32 {s(sT1)}, {s(sT1)}, 15
        s_lshl_b32 {s(sT2)}, {s(sW)}, 7
        s_add_u32 {s(sT1)}, {s(sT1)}, {s(sT2)}
        v_lshlrev_b32 {v(vT[0])}, 10, {v(vL)}
        v_and_b32 {v(vT[1])}, 32, {v(vL)}
        v_lshl_add_u32 {v(vT[0])}, {v(vT[1])}, 20, {v(vT[0])}
        buffer_load_dword {v(vP[0])}, {v(vT[0])}, {s(rX,4)}, {s(sT1)} offen
        s_lshl_b32 {s(sT1)}, {s(sW)}, 6
        s_lshl_b32 {s(sT0)}, {s(sT0)}, 1
        s_add_u32 {s(sT0)}, {s(sT0)}, {s(sT1)}
        s_and_b32 {s(sT1)}, s2, 6
        v_lshrrev_b32 {v(vT[0])}, 3, {v(vL)}
        v_and_b32 {v(vT[1])}, 7, {v(vL)}
        v_add_u32 {v(vT[2])}, {s(sT0)}, {v(vT[0])}
        v_cmp_lt_u32 vcc, 1, {v(vT[0])}
        v_mov_b32 {v(vT[5])}, 0x4000000
        s_lshl_b32 {s(sT2)}, {s(sT1)}, 8
        s_lshl_b32 {s(sT3)}, {s(sT1)}, 7
        v_cndmask_b32 {v(vT[5])}, 0, {v(vT[5])}, vcc
        v_lshlrev_b32 {v(vT[3])}, 7, {v(vT[1])}
        v_add_u32 {v(vT[4])}, {s(sT2)}, {v(vT[3])}
        s_add_u32 {s(sT0)}, {s(sT3)}, {2048 - 512}
        v_add_u32 {v(vT[6])}, {s(sT0)}, {v(vT[3])}
        v_cmp_gt_u32 vcc, 4, {v(vT[1])}
        v_mul_u32_u24 {v(vT[7])}, 3072, {v(vT[2])}
        v_add_u32 {v(vT[7])}, {v(vT[7])}, {v(vT[5])}
        v_cndmask_b32 {v(vT[4])}, {v(vT[6])}, {v(vT[4])}, vcc
        v_cmp_lt_u32 vcc, 5, {v(vT[1])}
        v_add_u32 {v(vT[7])}, {v(vT[7])}, {v(vT[4])}
        v_mov_b32 {v(vT[6])}, 0x4000000
        v_cndmask_b32 {v(vT[7])}, {v(vT[7])}, {v(vT[6])}, vcc
        buffer_load_dword {v(vP[1])}, {v(vT[7])}, {s(rG[0],4)}, 0 offen
        v_min_u32 {v(vT[4])}, 252, {v(vT[3])}
        v_add_u32 {v(vT[4])}, {s(sT3)}, {v(vT[4])}
        v_subrev_u32 {v(vT[6])}, 384, {v(vT[3])}
        v_min_u32 {v(vT[6])}, 508, {v(vT[6])}
        s_add_u32 {s(sT2)}, {s(sT2)}, 1024
        v_add_u32 {v(vT[6])}, {s(sT2)}, {v(vT[6])}
        v_cmp_gt_u32 vcc, 3, {v(vT[1])}
        v_mul_u32_u24 {v(vT[7])}, 2752, {v(vT[2])}
        v_add_u32 {v(vT[7])}, {v(vT[7])}, {v(vT[5])}
        v_cndmask_b32 {v(vT[4])}, {v(vT[6])}, {v(vT[4])}, vcc
        v_add_u32 {v(vT[7])}, {v(vT[7])}, {v(vT[4])}
        buffer_load_dword {v(vP[2])}, {v(vT[7])}, {s(rW1,4)}, 0 offen
        """)
    a.c("bias loads (oldest vmem ops), then 4 chunks of DMA")
    a(f"""
    v_and_b32 {v(vT[0])}, 31, {v(vL)}
    s_lshl_b32 {s(sT0)}, {s(sNH)}, 5
    v_add_u32 {v(vT[0])}, {s(sT0)}, {v(vT[0])}
    v_and_b32 {v(vT[1])}, 32, {v(vL)}
    v_lshlrev_b32 {v(vT[1])}, 16, {v(vT[1])}
    v_add_u32 {v(vT[0])}, {v(vT[0])}, {v(vT[1])}
    v_add_u32 {v(vT[1])}, {s(sColF[1])}, {v(vT[0])}
    v_add_u32 {v(vT[2])}, {s(sColF[2])}, {v(vT[0])}
    v_lshlrev_b32 {v(vT[1])}, 1, {v(vT[1])}
    v_lshlrev_b32 {v(vT[2])}, 1, {v(vT[2])}
    buffer_load_ushort {v(vB[1])}, {v(vT[1])}, {s(rB1,4)}, 0 offen
    buffer_load_ushort {v(vB[2])}, {v(vT[2])}, {s(rB1,4)}, 0 offen
    """)
    if "dmaonly" in sys.argv:
        D = int([x for x in sys.argv if x.startswith("depth")][0][5:])
        for c in range(8 + D):
            if c < 8:
                a(f"s_mov_b32 {s(sSlotI)}, {(c % 4) * SLOT}")
                dma(s(sSlotI))
            if c >= D:
                n = 5 * (min(c, 7) - (c - D))
                a(f"s_waitcnt vmcnt({n})\ns_barrier")
                pf.stamp()
            elif "ordered" in sys.argv:
                a("s_barrier")
        pf.finish(12, vT[0], vT[1], sW)
        a(f"{END}:\ns_endpgm")
        return V.hi, S.hi
    for c in range(4):
        a(f"s_mov_b32 {s(sSlotI)}, {c * SLOT}")
        dma(s(sSlotI))
    pf.stamp()
    a.c("LDS read addresses")
    a(f"""
    v_and_b32 {v(vT[0])}, 31, {v(vL)}
    v_lshrrev_b32 {v(vT[1])}, 5, {v(vL)}
    v_lshrrev_b32 {v(vT[2])}, 1, {v(vT[0])}
    v_and_b32 {v(vT[2])}, 7, {v(vT[2])}
    v_xor_b32 {v(vT[2])}, {v(vT[2])}, {v(vT[1])}
    s_lshl_b32 {s(sT0)}, {s(sMT)}, 12
    v_lshlrev_b32 {v(vT[3])}, 7, {v(vT[0])}
    v_add_u32 {v(vT[3])}, {s(sT0)}, {v(vT[3])}
    v_lshl_add_u32 {v(vXa[0])}, {v(vT[2])}, 4, {v(vT[3])}
    v_xor_b32 {v(vXa[1])}, 32, {v(vXa[0])}
    v_xor_b32 {v(vXa[2])}, 64, {v(vXa[0])}
    v_xor_b32 {v(vXa[3])}, 96, {v(vXa[0])}
    v_and_b32 {v(vT[2])}, 15, {v(vL)}
    v_lshrrev_b32 {v(vT[2])}, 2, {v(vT[2])}
    v_lshl_add_u32 {v(vT[2])}, {v(vT[1])}, 3, {v(vT[2])}
    v_lshlrev_b32 {v(vT[2])}, 7, {v(vT[2])}
    v_lshrrev_b32 {v(vT[3])}, 3, {v(vL)}
    v_and_b32 {v(vT[3])}, 1, {v(vT[3])}
    v_xor_b32 {v(vT[3])}, {s(sNH)}, {v(vT[3])}
    v_lshl_add_u32 {v(vT[2])}, {v(vT[3])}, 6, {v(vT[2])}
    v_lshrrev_b32 {v(vT[3])}, 4, {v(vL)}
    v_and_b32 {v(vT[3])}, 1, {v(vT[3])}
    v_lshl_add_u32 {v(vT[2])}, {v(vT[3])}, 5, {v(vT[2])}
    v_and_b32 {v(vT[3])}, 3, {v(vL)}
    v_lshl_add_u32 {v(vWa)}, {v(vT[3])}, 3, {v(vT[2])}
    v_mov_b32 {v(vOnes)}, 0x3f803f80
    v_mov_b32 {v(vSA[0])}, 0
    v_mov_b32 {v(vSA[1])}, 0
    """)
    for g in range(3):
        a(f"v_mov_b32 {v(vCS[g][0])}, 0\nv_mov_b32 {v(vCS[g][1])}, 0")
        for i in range(16):
            a(f"v_mov_b32 {v(ACC[g]+i)}, 0")
    for i in range(16):
        a(f"v_mov_b32 {v(F[3]+i)}, 0")
    a(f"""
    s_cmp_eq_u32 {s(sNH)}, 1
    s_cselect_b64 vcc, -1, 0
    s_mov_b32 {s(sIt)}, 0
    s_mov_b32 {s(sSlotC)}, 0
    s_mov_b32 {s(sSlotI)}, {-SLOT & 0xffffffff}
    """)
    if PROF:
        a("s_waitcnt vmcnt(15)\ns_barrier")
        pf.stamp()
    LB = a.label("K1_B"); LEPI = a.label("K1_EPI")
    a(f"s_cmp_eq_u32 {s(sFB)}, 1\ns_cbranch_scc1 {LB}")

    def reads(st):
        if "noreads" in sys.argv: return
        a(f"ds_read_b128 {v(F[st],4)}, {v(cXa[st])}")
        for g in range(3):
            for j in range(2):
                a(f"ds_read_b64_tr_b16 {v(F[st]+4+4*g+2*j,2)}, {v(cWa)} offset:{16384 + g*8192 + st*2048 + j*512}")
    def mfmas(st, flavB):
        for g in range(3):
            w, x = v(F[st]+4+4*g,4), v(F[st],4)
            if flavB and g == 0:
                a(f"v_mfma_f32_32x32x16_bf16 {v(ACC[g],16)}, {x}, {w}, {v(ACC[g],16)}")
            else:
                a(f"v_mfma_f32_32x32x16_bf16 {v(ACC[g],16)}, {w}, {x}, {v(ACC[g],16)}")
    def stats(st):
        if "nostats" in sys.argv: return
        l1, l2, l3 = a.label("K1_s"), a.label("K1_s"), a.label("K1_s")
        a(f"s_cbranch_vccnz {l1}")
        for j in range(4):
            a(f"v_dot2_f32_bf16 {v(vSA[j%2])}, {v(F[st]+j)}, {v(vOnes)}, {v(vSA[j%2])}")
        a(f"s_branch {l2}\n{l1}:")
        for j in range(4):
            a(f"v_dot2_f32_bf16 {v(vSA[j%2])}, {v(F[st]+j)}, {v(F[st]+j)}, {v(vSA[j%2])}")
        a(f"{l2}:\ns_cmp_lg_u32 {s(sMT)}, {st}\ns_cbranch_scc1 {l3}")
        for j in range(4):
            for g in range(3):
                a(f"v_dot2_f32_bf16 {v(vCS[g][j%2])}, {v(F[st]+4+4*g+j)}, {v(vOnes)}, {v(vCS[g][j%2])}")
        a(f"{l3}:")
    def mainloop(flavB):
        LOOP = a.label("K1_LOOP"); w15, w5, w0, wd, noi = [a.label("K1_w") for _ in range(5)]
        a(f"""
        {LOOP}:
        s_cmp_eq_u32 {s(sIt)}, 0
        s_cbranch_scc1 {w15}
        s_cmp_eq_u32 {s(sIt)}, 6
        s_cbranch_scc1 {w5}
        s_cmp_eq_u32 {s(sIt)}, 7
        s_cbranch_scc1 {w0}
        s_waitcnt vmcnt(10)
        s_branch {wd}
        {w15}:
        s_waitcnt vmcnt(15)
        s_branch {wd}
        {w5}:
        s_waitcnt vmcnt(5)
        s_branch {wd}
        {w0}:
        s_waitcnt vmcnt(0)
        {wd}:
        s_barrier
        """)
        for st in range(4):
            a(f"v_add_u32 {v(cXa[st])}, {s(sSlotC)}, {v(vXa[st])}")
        a(f"v_add_u32 {v(cWa)}, {s(sSlotC)}, {v(vWa)}")
        reads(0); reads(1)
        a(f"""
        s_sub_u32 {s(sT0)}, {s(sIt)}, 1
        s_cmp_ge_u32 {s(sT0)}, 4
        s_cbranch_scc1 {noi}
        """)
        if "nodma" not in sys.argv: dma(s(sSlotI))
        a(f"{noi}:")
        mfmas(3, flavB); stats(3)
        a("s_waitcnt lgkmcnt(7)")
        mfmas(0, flavB); reads(2); stats(0)
        a("s_waitcnt lgkmcnt(7)")
        mfmas(1, flavB); reads(3); stats(1)
        a("s_waitcnt lgkmcnt(7)")
        mfmas(2, flavB); stats(2)
        a(f"""
        s_mov_b32 {s(sSlotI)}, {s(sSlotC)}
        s_add_u32 {s(sSlotC)}, {s(sSlotC)}, {SLOT}
        s_cmp_eq_u32 {s(sSlotC)}, {4*SLOT}
        s_cselect_b32 {s(sSlotC)}, 0, {s(sSlotC)}
        s_add_u32 {s(sIt)}, {s(sIt)}, 1
        s_waitcnt lgkmcnt(0)
        s_cmp_lt_u32 {s(sIt)}, 8
        s_cbranch_scc1 {LOOP}
        """)
        mfmas(3, flavB); stats(3)
    mainloop(False)
    a(f"s_branch {LEPI}\n{LB}:")
    mainloop(True)
    a(f"{LEPI}:")
    pf.stamp()
    a.c("stats exchange: rows[128][4] f32 at 0, cs[192*2][4] f32 at 2048")
    a(f"""
    s_nop 2
    v_add_f32 {v(vSA[0])}, {v(vSA[0])}, {v(vSA[1])}
    v_add_f32 {v(vCS[0][0])}, {v(vCS[0][0])}, {v(vCS[0][1])}
    v_add_f32 {v(vCS[1][0])}, {v(vCS[1][0])}, {v(vCS[1][1])}
    v_add_f32 {v(vCS[2][0])}, {v(vCS[2][0])}, {v(vCS[2][1])}
    v_and_b32 {v(vT[0])}, 31, {v(vL)}
    v_lshrrev_b32 {v(vT[1])}, 5, {v(vL)}
    s_lshl_b32 {s(sT0)}, {s(sMT)}, 9
    v_lshl_add_u32 {v(vT[2])}, {v(vT[0])}, 4, {s(sT0)}
    s_lshl_b32 {s(sT1)}, {s(sNH)}, 3
    v_lshl_add_u32 {v(vT[3])}, {v(vT[1])}, 2, {v(vT[2])}
    v_add_u32 {v(vT[3])}, {s(sT1)}, {v(vT[3])}
    s_lshl_b32 {s(sT1)}, {s(sNH)}, 10
    v_lshl_add_u32 {v(vT[4])}, {v(vT[0])}, 5, {s(sT1)}
    v_lshl_add_u32 {v(vT[4])}, {v(vT[1])}, 4, {v(vT[4])}
    s_lshl_b32 {s(sT1)}, {s(sMT)}, 2
    v_add_u32 {v(vT[5])}, {s(sT1)}, {v(vT[4])}
    ds_write_b32 {v(vT[3])}, {v(vSA[0])}
    ds_write_b32 {v(vT[5])}, {v(vCS[0][0])} offset:{2048}
    ds_write_b32 {v(vT[5])}, {v(vCS[1][0])} offset:{2048 + 2048}
    ds_write_b32 {v(vT[5])}, {v(vCS[2][0])} offset:{2048 + 4096}
    s_waitcnt lgkmcnt(0)
    s_barrier
    ds_read_b128 {v(F[0],4)}, {v(vT[2])}
    ds_read_b128 {v(F[0]+4,4)}, {v(vT[4])} offset:{2048}
    ds_read_b128 {v(F[0]+8,4)}, {v(vT[4])} offset:{2048 + 2048}
    ds_read_b128 {v(F[0]+12,4)}, {v(vT[4])} offset:{2048 + 4096}
    s_waitcnt lgkmcnt(3)
    """)
    vMean, vVar, vSD, vRstd = vT[6], vT[7], vT[8], vT[9]
    XA = F[1]
    WA = [F[1]+4, F[1]+8, F[1]+12]
    a(f"""
    v_add_f32 {v(vMean)}, {v(F[0])}, {v(F[0]+1)}
    v_add_f32 {v(vVar)}, {v(F[0]+2)}, {v(F[0]+3)}
    v_mul_f32 {v(vMean)}, {f32(1/512)}, {v(vMean)}
    v_mul_f32 {v(vVar)}, {f32(1/512)}, {v(vVar)}
    v_fma_f32 {v(vVar)}, -{v(vMean)}, {v(vMean)}, {v(vVar)}
    v_max_f32 {v(vVar)}, 0, {v(vVar)}
    v_cvt_pk_bf16_f32 {v(vT[10])}, -{v(vMean)}, {v(vVar)}
    v_and_b32 {v(vVar)}, 0xffff0000, {v(vT[10])}
    v_add_f32 {v(vVar)}, {f32(1e-5)}, {v(vVar)}
    v_cvt_pk_bf16_f32 {v(vVar)}, {v(vVar)}, {v(vVar)}
    v_and_b32 {v(vVar)}, 0xffff0000, {v(vVar)}
    v_sqrt_f32 {v(vSD)}, {v(vVar)}
    v_and_b32 {v(vT[10])}, 0xffff, {v(vT[10])}
    v_cvt_pk_bf16_f32 {v(vSD)}, {v(vSD)}, {v(vSD)}
    v_and_b32 {v(vSD)}, 0xffff0000, {v(vSD)}
    v_rcp_f32 {v(vRstd)}, {v(vSD)}
    v_lshl_or_b32 {v(XA)}, {v(vT[10])}, 16, {v(vT[10])}
    v_or_b32 {v(XA+1)}, {v(vSD)}, {v(vT[10])}
    v_mov_b32 {v(XA+2)}, 0
    v_mov_b32 {v(XA+3)}, 0
    s_waitcnt lgkmcnt(0)
    """)
    a.c("W-side augmented fragments: [cs_hi, cs_mid, cs_lo, bias]")
    for g in range(3):
        b = F[0] + 4 + 4*g
        a(f"""
        v_add_f32 {v(b)}, {v(b)}, {v(b+1)}
        v_add_f32 {v(b+2)}, {v(b+2)}, {v(b+3)}
        v_add_f32 {v(b)}, {v(b)}, {v(b+2)}
        v_and_b32 {v(b+1)}, 0xffff0000, {v(b)}
        v_sub_f32 {v(b+2)}, {v(b)}, {v(b+1)}
        v_and_b32 {v(b+3)}, 0xffff0000, {v(b+2)}
        v_sub_f32 {v(b+2)}, {v(b+2)}, {v(b+3)}
        v_lshrrev_b32 {v(b+1)}, 16, {v(b+1)}
        v_or_b32 {v(WA[g])}, {v(b+1)}, {v(b+3)}
        v_lshrrev_b32 {v(b+2)}, 16, {v(b+2)}
        """)
        if g == 0:
            a(f"v_mov_b32 {v(WA[g]+1)}, {v(b+2)}")
        else:
            a(f"v_lshl_or_b32 {v(WA[g]+1)}, {v(vB[g])}, 16, {v(b+2)}")
        a(f"v_mov_b32 {v(WA[g]+2)}, 0\nv_mov_b32 {v(WA[g]+3)}, 0")
    LVB = a.label("K1_EB"); LF2 = a.label("K1_F2")
    vAd, vAd2 = vT[0], vT[1]
    P = F[2]
    sTT = sT3
    a(f"""
    s_lshl_b32 {s(sTT)}, {s(sR)}, 2
    s_add_u32 {s(sTT)}, {s(sTT)}, {s(sMT)}
    v_mfma_f32_32x32x16_bf16 {v(ACC[1],16)}, {v(WA[1],4)}, {v(XA,4)}, {v(ACC[1],16)}
    v_mfma_f32_32x32x16_bf16 {v(ACC[2],16)}, {v(WA[2],4)}, {v(XA,4)}, {v(ACC[2],16)}
    s_cmp_eq_u32 {s(sFB)}, 1
    s_cbranch_scc1 {LVB}
    """)
    def ffn_tile(g):
        skip = a.label("K1_skip")
        c1 = -2 * 0.7978845608028654 * LOG2E
        c2 = c1 * 0.044715
        vC1, vC2 = vT[2], vT[4]
        a(f"""
        s_lshl_b32 {s(sT0)}, {s(sNH)}, 5
        s_add_u32 {s(sT0)}, {s(sT0)}, {s(sColF[g])}
        s_cmp_ge_u32 {s(sT0)}, 1376
        s_cbranch_scc1 {skip}
        s_lshl_b32 {s(sT0)}, {s(sT0)}, 6
        s_mul_i32 {s(sT1)}, {s(sTT)}, {A3_TSTRIDE}
        s_add_u32 {s(sT0)}, {s(sT0)}, {s(sT1)}
        s_add_u32 {s(sT0)}, {s(sT0)}, {WS_A3 + 32*1024}
        """)
        A = ACC[g]; T = F[3]; T2 = F[0]
        for i in range(0, 16, 2):
            a(f"v_mul_f32 {v(T+i)}, {v(A+i)}, {v(A+i)}\nv_mul_f32 {v(T+i+1)}, {v(A+i+1)}, {v(A+i+1)}")
        for i in range(16):
            a(f"v_fma_f32 {v(T+i)}, {v(T+i)}, {v(vGC2)}, {v(vGC1)}")
        for i in range(16):
            a(f"v_mul_f32 {v(T+i)}, {v(T+i)}, {v(A+i)}")
        for i in range(16):
            a(f"v_exp_f32 {v(T+i)}, {v(T+i)}")
        for i in range(16):
            a(f"v_fma_f32 {v(T+i)}, {v(T+i)}, {v(vSD)}, {v(vSD)}")
        for i in range(16):
            a(f"v_rcp_f32 {v(T+i)}, {v(T+i)}")
        for i in range(16):
            a(f"v_mul_f32 {v(T+i)}, {v(T+i)}, {v(A+i)}")
        for i in range(8):
            a(f"v_cvt_pk_bf16_f32 {v(T2+i)}, {v(T+2*i)}, {v(T+2*i+1)}")
        a(f"""
        buffer_store_dwordx4 {v(T2,4)}, {v(vAd)}, {s(rWS,4)}, {s(sT0)} offen
        buffer_store_dwordx4 {v(T2+4,4)}, {v(vAd)}, {s(rWS,4)}, {s(sT0)} offen offset:1024
        s_nop 1
        {skip}:
        """)
    vGC1, vGC2 = vT[2], vT[3]
    def gelu_consts():
        c1 = -2 * 0.7978845608028654 * LOG2E
        c2 = c1 * 0.044715
        a(f"""
        v_mul_f32 {v(vGC1)}, {f32(c1)}, {v(vRstd)}
        v_mul_f32 {v(vGC2)}, {v(vRstd)}, {v(vRstd)}
        v_mul_f32 {v(vGC2)}, {v(vGC2)}, {v(vRstd)}
        v_mul_f32 {v(vGC2)}, {f32(c2)}, {v(vGC2)}
        v_lshlrev_b32 {v(vAd)}, 4, {v(vL)}
        """)
    a(f"""
    v_mfma_f32_32x32x16_bf16 {v(ACC[0],16)}, {v(WA[0],4)}, {v(XA,4)}, {v(ACC[0],16)}
    s_cmp_lt_u32 {s(sCP)}, 4
    s_cselect_b32 {s(sT0)}, {f32(0.25*LOG2E)}, 1.0
    s_cselect_b32 {s(sT1)}, 0, 12
    v_mul_f32 {v(vT[4])}, {s(sT0)}, {v(vRstd)}
    v_lshrrev_b32 {v(vT[5])}, 1, {v(vL)}
    v_xor_b32 {v(vT[5])}, {v(vT[5])}, {v(vL)}
    v_and_b32 {v(vT[5])}, 4, {v(vT[5])}
    v_mul_u32_u24 {v(vT[5])}, 3, {v(vT[5])}
    v_and_b32 {v(vT[5])}, {s(sT1)}, {v(vT[5])}
    v_xor_b32 {v(vT[5])}, {v(vT[5])}, {v(vL)}
    v_lshlrev_b32 {v(vAd2)}, 4, {v(vT[5])}
    s_lshl_b32 {s(sT0)}, {s(sNH)}, 5
    s_add_u32 {s(sT0)}, {s(sT0)}, {s(sCol0)}
    s_lshl_b32 {s(sT0)}, {s(sT0)}, 12
    s_lshl_b32 {s(sT1)}, {s(sTT)}, 10
    s_add_u32 {s(sT0)}, {s(sT0)}, {s(sT1)}
    s_add_u32 {s(sT1)}, {s(sT0)}, 65536
    """)
    for g in (1, 0):
        A = ACC[g]
        for i in range(16):
            a(f"v_mul_f32 {v(A+i)}, {v(A+i)}, {v(vT[4])}")
        Pg = P + 8*g
        for i in range(8):
            a(f"v_cvt_pk_bf16_f32 {v(Pg+i)}, {v(A+2*i)}, {v(A+2*i+1)}")
        off = 64*4096*g
        a(f"""
        s_add_u32 {s(sR)}, {s(sT0)}, {off}
        s_add_u32 {s(sCP)}, {s(sT1)}, {off}
        buffer_store_dwordx4 {v(Pg,4)}, {v(vAd2)}, {s(rWS,4)}, {s(sR)} offen
        buffer_store_dwordx4 {v(Pg+4,4)}, {v(vAd2)}, {s(rWS,4)}, {s(sCP)} offen
        """)
    gelu_consts()
    a(f"s_branch {LF2}")
    a(f"{LVB}:")
    a(f"""
    v_mfma_f32_32x32x16_bf16 {v(ACC[0],16)}, {v(XA,4)}, {v(WA[0],4)}, {v(ACC[0],16)}
    s_lshl_b32 {s(sT0)}, {s(sW)}, 7
    s_add_u32 {s(sT0)}, {s(sT0)}, 16384
    v_and_b32 {v(vT[4])}, 31, {v(vL)}
    v_lshl_add_u32 {v(vT[5])}, {v(vT[4])}, 2, {s(sT0)}
    ds_write_b32 {v(vT[5])}, {v(vRstd)}
    v_lshrrev_b32 {v(vT[5])}, 5, {v(vL)}
    v_lshl_add_u32 {v(vT[10])}, {v(vT[5])}, 4, {s(sT0)}
    s_waitcnt lgkmcnt(0)
    ds_read_b128 {v(F[3],4)}, {v(vT[10])}
    ds_read_b128 {v(F[3]+4,4)}, {v(vT[10])} offset:32
    ds_read_b128 {v(F[3]+8,4)}, {v(vT[10])} offset:64
    ds_read_b128 {v(F[3]+12,4)}, {v(vT[10])} offset:96
    v_lshrrev_b32 {v(vT[10])}, 4, {v(vT[4])}
    v_lshlrev_b32 {v(vT[10])}, 16, {v(vT[10])}
    v_and_b32 {v(vT[4])}, 15, {v(vT[4])}
    v_lshl_add_u32 {v(vT[10])}, {v(vT[4])}, 4, {v(vT[10])}
    v_lshl_add_u32 {v(vAd2)}, {v(vT[5])}, 8, {v(vT[10])}
    s_lshl_b32 {s(sT0)}, {s(sNH)}, 5
    s_add_u32 {s(sT0)}, {s(sT0)}, {s(sCol0)}
    s_lshl_b32 {s(sT0)}, {s(sT0)}, 12
    s_lshl_b32 {s(sT1)}, {s(sTT)}, 10
    s_add_u32 {s(sT0)}, {s(sT0)}, {s(sT1)}
    s_waitcnt lgkmcnt(0)
    """)
    A = ACC[0]
    for i in range(16):
        a(f"v_mul_f32 {v(A+i)}, {v(A+i)}, {v(F[3]+i)}")
    for i in range(8):
        a(f"v_cvt_pk_bf16_f32 {v(P+i)}, {v(A+2*i)}, {v(A+2*i+1)}")
    a(f"""
    buffer_store_dwordx4 {v(P,4)}, {v(vAd2)}, {s(rWS,4)}, {s(sT0)} offen
    buffer_store_dwordx4 {v(P+4,4)}, {v(vAd2)}, {s(rWS,4)}, {s(sT0)} offen offset:512
    """)
    gelu_consts()
    ffn_tile(1)
    a(f"{LF2}:")
    ffn_tile(2)
    pf.stamp()
    if PROF: a("s_waitcnt vmcnt(0)")
    pf.finish(12, vT[0], vT[1], sW)
    a(f"{END}:\ns_endpgm")
    return V.hi, S.hi

def gen_k2(a, name):
    S = Regs("s", 6, 100); V = Regs("v", 1, 256)
    kernel_header(a, name)
    END = a.label("K2_END")
    pf = Prof(a, S, 1, 12)
    sW, sH, sTT, sT0, sT1, sIt, sBar, sPass = [S.alloc() for _ in range(8)]
    rWS = S.alloc(4, 4); sMask = S.alloc(2, 2)
    vL16 = V.alloc(); vKa = V.alloc(); vVa = V.alloc(); vIdx = V.alloc(); vT = [V.alloc() for _ in range(4)]
    Q = V.alloc(4, 4); K = V.alloc(4, 4); V1 = V.alloc(4, 4); V2 = V.alloc(4, 4)
    SB = [V.alloc(16, 4), V.alloc(16, 4)]; O = V.alloc(16, 4); C = V.alloc(16, 4)
    a(f"""
    s_cmp_ge_u32 s2, 256
    s_cbranch_scc1 {END}
    """)
    pf.start()
    a(f"""
    s_load_dwordx2 s[4:5], s[0:1], 80
    v_lshrrev_b32 {v(vT[0])}, 6, v0
    v_and_b32 {v(vT[1])}, 63, v0
    v_readfirstlane_b32 {s(sW)}, {v(vT[0])}
    v_lshlrev_b32 {v(vL16)}, 4, {v(vT[1])}
    s_and_b32 {s(sH)}, s2, 7
    s_lshl_b32 {s(sH)}, {s(sH)}, 2
    s_lshr_b32 {s(sT0)}, s2, 3
    s_and_b32 {s(sT1)}, {s(sT0)}, 3
    s_add_u32 {s(sH)}, {s(sH)}, {s(sT1)}
    s_lshr_b32 {s(sTT)}, s2, 5
    s_lshl_b32 {s(sTT)}, {s(sTT)}, 3
    s_add_u32 {s(sTT)}, {s(sTT)}, {s(sW)}
    s_waitcnt lgkmcnt(0)
    """)
    srd(a, rWS, "s4", "s5", WS_END)
    a.c("Q fragment, then K/V DMA: stage 1 = tiles 0..15, stage 2 = rest")
    a(f"""
    s_lshl_b32 {s(sT0)}, {s(sH)}, 16
    s_lshl_b32 {s(sT1)}, {s(sTT)}, 10
    s_add_u32 {s(sT1)}, {s(sT1)}, {s(sT0)}
    buffer_load_dwordx4 {v(Q,4)}, {v(vL16)}, {s(rWS,4)}, {s(sT1)} offen
    s_lshr_b32 {s(sT1)}, {s(sW)}, 2
    s_lshl_b32 {s(sIt)}, {s(sT1)}, 21
    s_add_u32 {s(sT0)}, {s(sT0)}, {s(sIt)}
    s_add_u32 {s(sT0)}, {s(sT0)}, {WS_K}
    s_lshl_b32 {s(sT1)}, {s(sT1)}, 16
    s_and_b32 {s(sIt)}, {s(sW)}, 3
    s_lshl_b32 {s(sIt)}, {s(sIt)}, 12
    s_add_u32 {s(sT0)}, {s(sT0)}, {s(sIt)}
    s_add_u32 {s(sT1)}, {s(sT1)}, {s(sIt)}
    """)
    for st in range(4):
        a(f"s_mov_b32 m0, {s(sT1)}\ns_nop 0")
        for i in range(4):
            a(f"buffer_load_dwordx4 {v(vL16)}, {s(rWS,4)}, {s(sT0)} offen offset:{i*1024} lds")
        if st < 3:
            a(f"s_add_u32 {s(sT0)}, {s(sT0)}, 16384\ns_add_u32 {s(sT1)}, {s(sT1)}, 16384")
    a(f"""
    v_mov_b32 {v(vIdx)}, 0xdddddddd
    s_mov_b32 {s(sMask)}, 0x0000ffff
    s_mov_b32 {s(sMask+1)}, 0x0000ffff
    v_and_b32 {v(vT[0])}, 15, {v(vT[1])}
    v_lshrrev_b32 {v(vT[2])}, 5, {v(vT[1])}
    v_lshlrev_b32 {v(vT[2])}, 8, {v(vT[2])}
    v_lshl_add_u32 {v(vT[2])}, {v(vT[0])}, 4, {v(vT[2])}
    v_add_u32 {v(vT[3])}, 65536, {v(vT[2])}
    v_and_b32 {v(vT[0])}, 27, {v(vT[1])}
    v_cmp_eq_u32 vcc, 16, {v(vT[0])}
    v_mov_b32 {v(vT[2])}, 0x3f803f80
    s_mov_b32 {s(sBar)}, 3
    s_mov_b32 {s(sPass)}, 0
    v_cndmask_b32 {v(vT[2])}, 0, {v(vT[2])}, vcc
    """)
    for i in range(4):
        a(f"v_mov_b32 {v(V1+i)}, {v(vT[2])}\nv_mov_b32 {v(V2+i)}, {v(vT[2])}")
    a(f"""
    """)
    pf.stamp()
    a(f"""
    s_waitcnt vmcnt(12)
    s_barrier
    """)
    pf.stamp()
    a(f"""
    ds_read_b128 {v(K,4)}, {v(vL16)}
    s_waitcnt lgkmcnt(0)
    v_mfma_f32_32x32x16_bf16 {v(SB[0],16)}, {v(K,4)}, {v(Q,4)}, 0
    s_nop 15
    """)
    def rowmax(src, dst, first):
        k = 0
        if first:
            a(f"v_max3_f32 {v(dst)}, {v(src)}, {v(src+1)}, {v(src+2)}"); k = 3
        while k < 16:
            if k + 1 < 16:
                a(f"v_max3_f32 {v(dst)}, {v(dst)}, {v(src+k)}, {v(src+k+1)}"); k += 2
            else:
                a(f"v_max_f32 {v(dst)}, {v(dst)}, {v(src+k)}"); k += 1
    rowmax(SB[0], vT[0], True)
    LSTART = a.label("K2_START"); LOOP = a.label("K2_LOOP"); nob = a.label("K2_nob"); DONE = a.label("K2_DONE")
    a(f"""
    {LSTART}:
    v_mov_b32 {v(vT[1])}, {v(vT[0])}
    s_nop 1
    v_permlane32_swap_b32 {v(vT[0])}, {v(vT[1])}
    v_mov_b32 {v(vKa)}, {v(vL16)}
    v_mov_b32 {v(vVa)}, {v(vT[3])}
    v_max_f32 {v(vT[0])}, {v(vT[0])}, {v(vT[1])}
    """)
    for i in range(16):
        a(f"v_sub_f32 {v(C+i)}, 0, {v(vT[0])}")
    for i in range(16):
        a(f"v_mov_b32 {v(O+i)}, 0")
    for i in range(8, 16):
        a(f"v_mov_b32 {v(SB[1]+i)}, 0")
    a(f"""
    v_mfma_f32_32x32x16_bf16 {v(SB[0],16)}, {v(K,4)}, {v(Q,4)}, {v(C,16)}
    s_mov_b64 exec, {s(sMask,2)}
    ds_read_b128 {v(V2,4)}, {v(vVa)}
    s_mov_b64 exec, -1
    ds_read_b128 {v(K,4)}, {v(vKa)} offset:1024
    s_mov_b64 exec, {s(sMask,2)}
    ds_read_b128 {v(V1,4)}, {v(vVa)}
    s_mov_b64 exec, -1
    s_mov_b32 {s(sIt)}, 0
    s_nop 3
    .p2align 3
    {LOOP}:
    s_cmp_lg_u32 {s(sIt)}, {s(sBar)}
    s_cbranch_scc1 {nob}
    s_waitcnt vmcnt(0)
    s_barrier
    {nob}:
    """)
    U = 4
    for t in range(U):
        cur, oth = SB[t % 2], SB[(t + 1) % 2]
        e = lambda i: a(f"v_exp_f32 {v(cur+i)}, {v(cur+i)}")
        e(0); e(1)
        a(f"s_waitcnt lgkmcnt(2)")
        a(f"v_smfmac_f32_32x32x32_bf16 {v(O,16)}, {v(V2,4)}, {v(oth+8,8)}, {v(vIdx)}")
        e(2)
        a(f"s_mov_b64 exec, {s(sMask,2)}\nds_read_b128 {v(V2,4)}, {v(vVa)} offset:{t*1024 + 512}\ns_mov_b64 exec, -1")
        e(3); e(4); e(5)
        a(f"s_waitcnt lgkmcnt(2)")
        a(f"v_mfma_f32_32x32x16_bf16 {v(oth,16)}, {v(K,4)}, {v(Q,4)}, {v(C,16)}")
        e(6)
        a(f"ds_read_b128 {v(K,4)}, {v(vKa)} offset:{(t+2)*1024}")
        e(7); e(8); e(9); e(10)
        a(f"s_waitcnt lgkmcnt(2)")
        a(f"v_smfmac_f32_32x32x32_bf16 {v(O,16)}, {v(V1,4)}, {v(cur,8)}, {v(vIdx)}")
        e(11)
        a(f"s_mov_b64 exec, {s(sMask,2)}\nds_read_b128 {v(V1,4)}, {v(vVa)} offset:{(t+1)*1024}\ns_mov_b64 exec, -1")
        e(12); e(13)
        if t == U - 1:
            a(f"v_add_u32 {v(vKa)}, {U*1024}, {v(vKa)}\nv_add_u32 {v(vVa)}, {U*1024}, {v(vVa)}")
            a(f"s_add_u32 {s(sIt)}, {s(sIt)}, 1\ns_cmp_lt_u32 {s(sIt)}, {64//U}")
        e(14); e(15)
    a(f"""
    s_cbranch_scc1 {LOOP}
    s_waitcnt lgkmcnt(0)
    s_nop 0
    v_smfmac_f32_32x32x32_bf16 {v(O,16)}, {v(V2,4)}, {v(SB[1]+8,8)}, {v(vIdx)}
    s_mov_b32 {s(sBar)}, -1
    s_cmp_lg_u32 {s(sPass)}, 0
    s_nop 15
    s_cbranch_scc1 {DONE}
    """)
    a.c("stand-in max was the max of the first key tile: verify nothing overflowed, else redo with the true max")
    a(f"""
    v_max3_f32 {v(vT[0])}, |{v(O)}|, |{v(O+1)}|, |{v(O+2)}|
    v_max3_f32 {v(vT[0])}, {v(vT[0])}, |{v(O+3)}|, |{v(O+4)}|
    v_max3_f32 {v(vT[0])}, {v(vT[0])}, |{v(O+5)}|, |{v(O+6)}|
    v_max_f32 {v(vT[0])}, {v(vT[0])}, |{v(O+7)}|
    v_add_f32 {v(vT[1])}, {v(O)}, {v(O+1)}
    v_add_f32 {v(vT[2])}, {v(O+2)}, {v(O+3)}
    v_add_f32 {v(vT[1])}, {v(vT[1])}, {v(O+4)}
    v_add_f32 {v(vT[2])}, {v(vT[2])}, {v(O+5)}
    v_add_f32 {v(vT[1])}, {v(vT[1])}, {v(O+6)}
    v_add_f32 {v(vT[2])}, {v(vT[2])}, {v(O+7)}
    v_add_f32 {v(vT[1])}, {v(vT[1])}, {v(vT[2])}
    s_mov_b32 {s(sT0)}, {f32(2.0**60)}
    s_mov_b32 {s(sT1)}, {f32(2.0**120)}
    v_cmp_nlt_f32 vcc, {v(O+8)}, {s(sT0)}
    v_cmp_nlt_f32 s[4:5], {v(vT[0])}, {s(sT1)}
    s_or_b64 vcc, vcc, s[4:5]
    v_cmp_u_f32 s[4:5], {v(vT[1])}, {v(vT[1])}
    s_or_b64 vcc, vcc, s[4:5]
    s_cbranch_vccz {DONE}
    """)
    ML = a.label("K2_MAXLOOP")
    a(f"""
    s_mov_b32 {s(sPass)}, 1
    v_mov_b32 {v(vKa)}, {v(vL16)}
    v_mov_b32 {v(vT[0])}, 0xff800000
    s_mov_b32 {s(sIt)}, 0
    {ML}:
    ds_read_b128 {v(K,4)}, {v(vKa)}
    v_add_u32 {v(vKa)}, 1024, {v(vKa)}
    s_waitcnt lgkmcnt(0)
    v_mfma_f32_32x32x16_bf16 {v(SB[0],16)}, {v(K,4)}, {v(Q,4)}, 0
    s_nop 15
    """)
    rowmax(SB[0], vT[0], False)
    a(f"""
    s_add_u32 {s(sIt)}, {s(sIt)}, 1
    s_cmp_lt_u32 {s(sIt)}, 64
    s_cbranch_scc1 {ML}
    ds_read_b128 {v(K,4)}, {v(vL16)}
    s_waitcnt lgkmcnt(0)
    s_branch {LSTART}
    {DONE}:
    """)
    pf.stamp()
    a(f"""
    v_rcp_f32 {v(vT[0])}, {v(O+8)}
    s_mul_i32 {s(sT0)}, {s(sTT)}, {A3_TSTRIDE}
    s_lshl_b32 {s(sT1)}, {s(sH)}, 10
    s_add_u32 {s(sT0)}, {s(sT0)}, {s(sT1)}
    s_add_u32 {s(sT0)}, {s(sT0)}, {WS_A3}
    """)
    for i in range(8):
        a(f"v_mul_f32 {v(O+i)}, {v(O+i)}, {v(vT[0])}")
    for i in range(4):
        a(f"v_cvt_pk_bf16_f32 {v(K+i)}, {v(O+2*i)}, {v(O+2*i+1)}")
    a(f"""
    buffer_store_dwordx4 {v(K,4)}, {v(vL16)}, {s(rWS,4)}, {s(sT0)} offen
    """)
    if PROF: a("s_waitcnt vmcnt(0)")
    pf.finish(4, vT[0], vT[1], sW)
    a(f"""
    {END}:
    s_endpgm
    """)
    return V.hi, S.hi

def gen_k3(a, name):
    S = Regs("s", 16, 100); V = Regs("v", 1, 256)
    kernel_header(a, name)
    END = a.label("K3_END")
    pf = Prof(a, S, 2, 12)
    NCH, NSLOT, SLOT = 30, 8, 16384
    EPI = NSLOT * SLOT
    sW, sTM, sTN, sT0, sT1, sIt, sSlotI, sSlotC, sOffA, sOffB, sM0A, sM0B = [S.alloc() for _ in range(12)]
    rWS = S.alloc(4, 4); rB = S.alloc(4, 4); rX = S.alloc(4, 4); rOut = S.alloc(4, 4); rB2 = S.alloc(4, 4)
    vL = V.alloc(); vL16 = V.alloc(); vBo = V.alloc(); vAa = V.alloc(); vBa = V.alloc(); cAa = V.alloc(); cBa = V.alloc()
    vT = [V.alloc() for _ in range(6)]
    vXr = V.alloc(4, 4); vB2 = V.alloc(4, 4)
    FA = [V.alloc(4, 4) for _ in range(2)]; FB = [V.alloc(4, 4) for _ in range(2)]
    ACC = V.alloc(16, 4); R = V.alloc(16, 4)
    a(f"""
    s_cmp_ge_u32 s2, 256
    s_cbranch_scc1 {END}
    """)
    pf.start()
    a(f"""
    s_load_dwordx2 s[4:5], s[0:1], 0
    s_load_dwordx2 s[6:7], s[0:1], 16
    s_load_dwordx4 s[8:11], s[0:1], 48
    s_load_dwordx2 s[12:13], s[0:1], 64
    s_load_dwordx2 s[14:15], s[0:1], 80
    v_lshrrev_b32 {v(vT[0])}, 6, v0
    v_and_b32 {v(vL)}, 63, v0
    v_readfirstlane_b32 {s(sW)}, {v(vT[0])}
    v_lshlrev_b32 {v(vL16)}, 4, {v(vL)}
    s_and_b32 {s(sT0)}, s2, 7
    s_lshr_b32 {s(sT1)}, s2, 3
    s_lshl_b32 {s(sTM)}, {s(sT0)}, 2
    s_and_b32 {s(sT0)}, {s(sT1)}, 3
    s_add_u32 {s(sTM)}, {s(sTM)}, {s(sT0)}
    s_lshr_b32 {s(sTN)}, {s(sT1)}, 2
    """)
    a.c("A source: token tile 2*tm + (w>>2), step w&3 ; B source rows 8w..8w+7 of the chunk, cols 64*tn")
    a(f"""
    s_lshl_b32 {s(sT0)}, {s(sTM)}, 1
    s_lshr_b32 {s(sT1)}, {s(sW)}, 2
    s_add_u32 {s(sT0)}, {s(sT0)}, {s(sT1)}
    s_mul_i32 {s(sOffA)}, {s(sT0)}, {A3_TSTRIDE}
    s_and_b32 {s(sT1)}, {s(sW)}, 3
    s_lshl_b32 {s(sT1)}, {s(sT1)}, 10
    s_add_u32 {s(sOffA)}, {s(sOffA)}, {s(sT1)}
    s_add_u32 {s(sOffA)}, {s(sOffA)}, {WS_A3}
    s_lshl_b32 {s(sOffB)}, {s(sTN)}, 7
    s_lshl_b32 {s(sM0A)}, {s(sW)}, 10
    s_add_u32 {s(sM0B)}, {s(sM0A)}, 8192
    v_lshrrev_b32 {v(vT[0])}, 3, {v(vL)}
    s_lshl_b32 {s(sT1)}, {s(sW)}, 3
    v_add_u32 {v(vT[0])}, {s(sT1)}, {v(vT[0])}
    v_lshrrev_b32 {v(vT[1])}, 4, {v(vL)}
    v_and_b32 {v(vT[1])}, 1, {v(vT[1])}
    v_lshlrev_b32 {v(vT[1])}, 2, {v(vT[1])}
    v_and_b32 {v(vT[2])}, 7, {v(vL)}
    v_xor_b32 {v(vT[1])}, {v(vT[1])}, {v(vT[2])}
    v_lshlrev_b32 {v(vT[1])}, 4, {v(vT[1])}
    v_lshl_add_u32 {v(vBo)}, {v(vT[0])}, 10, {v(vT[1])}
    s_waitcnt lgkmcnt(0)
    """)
    srd(a, rWS, "s14", "s15", WS_END)
    srd(a, rB, "s6", "s7", 512 * 1024)
    srd(a, rX, "s4", "s5", 2048 * 1024)
    srd(a, rOut, "s12", "s13", 2048 * 1024)
    srd(a, rB2, "s10", "s11", 1024)
    a.c("residual x and b2 for the epilogue: thread t -> row t/8, cols 8*(t%8)")
    a(f"""
    v_lshrrev_b32 {v(vT[0])}, 3, v0
    s_lshl_b32 {s(sT0)}, {s(sTM)}, 6
    v_add_u32 {v(vT[0])}, {s(sT0)}, {v(vT[0])}
    v_and_b32 {v(vT[1])}, 7, v0
    v_lshlrev_b32 {v(vT[1])}, 4, {v(vT[1])}
    v_add_u32 {v(vT[1])}, {s(sOffB)}, {v(vT[1])}
    v_lshl_add_u32 {v(vT[5])}, {v(vT[0])}, 10, {v(vT[1])}
    buffer_load_dwordx4 {v(vXr,4)}, {v(vT[5])}, {s(rX,4)}, 0 offen
    buffer_load_dwordx4 {v(vB2,4)}, {v(vT[1])}, {s(rB2,4)}, 0 offen
    """)
    def dma(slot, chunk):
        if chunk == 8:
            a(f"s_mov_b32 {s(rB)}, s8\ns_mov_b32 {s(rB+1)}, s9\ns_mov_b32 {s(rB+2)}, {1376*1024}\ns_lshl_b32 {s(sOffB)}, {s(sTN)}, 7")
        a(f"""
        s_add_u32 m0, {slot}, {s(sM0A)}
        s_nop 0
        buffer_load_dwordx4 {v(vL16)}, {s(rWS,4)}, {s(sOffA)} offen lds
        s_add_u32 m0, {slot}, {s(sM0B)}
        s_add_u32 {s(sOffA)}, {s(sOffA)}, 4096
        buffer_load_dwordx4 {v(vBo)}, {s(rB,4)}, {s(sOffB)} offen lds
        s_add_u32 {s(sOffB)}, {s(sOffB)}, 65536
        """)
    for c in range(NSLOT):
        dma(str(c * SLOT), c)
    a(f"s_mov_b32 {s(rB)}, s8\ns_mov_b32 {s(rB+1)}, s9\ns_mov_b32 {s(rB+2)}, {1376*1024}\ns_lshl_b32 {s(sOffB)}, {s(sTN)}, 7")
    a.c("wave (mt=w&1, nt=(w>>1)&1, kh=w>>2)")
    a(f"""
    s_and_b32 {s(sT0)}, {s(sW)}, 1
    s_lshl_b32 {s(sT0)}, {s(sT0)}, 12
    s_lshr_b32 {s(sT1)}, {s(sW)}, 2
    s_lshl_b32 {s(sT1)}, {s(sT1)}, 11
    s_add_u32 {s(sT0)}, {s(sT0)}, {s(sT1)}
    v_add_u32 {v(vAa)}, {s(sT0)}, {v(vL16)}
    v_lshrrev_b32 {v(vT[0])}, 5, {v(vL)}
    v_and_b32 {v(vT[1])}, 15, {v(vL)}
    v_lshrrev_b32 {v(vT[1])}, 2, {v(vT[1])}
    v_lshl_add_u32 {v(vT[1])}, {v(vT[0])}, 2, {v(vT[1])}
    v_lshlrev_b32 {v(vT[1])}, 7, {v(vT[1])}
    s_lshr_b32 {s(sT0)}, {s(sW)}, 1
    s_and_b32 {s(sT0)}, {s(sT0)}, 1
    v_lshrrev_b32 {v(vT[2])}, 3, {v(vL)}
    v_and_b32 {v(vT[2])}, 1, {v(vT[2])}
    v_xor_b32 {v(vT[2])}, {s(sT0)}, {v(vT[2])}
    v_lshl_add_u32 {v(vT[1])}, {v(vT[2])}, 6, {v(vT[1])}
    v_lshrrev_b32 {v(vT[2])}, 4, {v(vL)}
    v_and_b32 {v(vT[2])}, 1, {v(vT[2])}
    v_lshl_add_u32 {v(vT[1])}, {v(vT[2])}, 5, {v(vT[1])}
    v_and_b32 {v(vT[2])}, 3, {v(vL)}
    v_lshl_add_u32 {v(vT[1])}, {v(vT[2])}, 3, {v(vT[1])}
    s_lshl_b32 {s(sT1)}, {s(sT1)}, 1
    s_add_u32 {s(sT1)}, {s(sT1)}, 8192
    v_add_u32 {v(vBa)}, {s(sT1)}, {v(vT[1])}
    """)
    for i in range(16):
        a(f"v_mov_b32 {v(ACC+i)}, 0")
    def compute(issue):
        a(f"""
        v_add_u32 {v(cAa)}, {s(sSlotC)}, {v(vAa)}
        v_add_u32 {v(cBa)}, {s(sSlotC)}, {v(vBa)}
        """)
        for st in range(2):
            a(f"ds_read_b128 {v(FA[st],4)}, {v(cAa)} offset:{st*1024}")
            for j in range(2):
                a(f"ds_read_b64_tr_b16 {v(FB[st]+2*j,2)}, {v(cBa)} offset:{st*2048 + j*1024}")
        if issue:
            dma(s(sSlotI), None)
        a(f"""
        s_mov_b32 {s(sSlotI)}, {s(sSlotC)}
        s_add_u32 {s(sSlotC)}, {s(sSlotC)}, {SLOT}
        s_and_b32 {s(sSlotC)}, {s(sSlotC)}, {NSLOT*SLOT - 1}
        s_waitcnt lgkmcnt(3)
        v_mfma_f32_32x32x16_bf16 {v(ACC,16)}, {v(FB[0],4)}, {v(FA[0],4)}, {v(ACC,16)}
        s_waitcnt lgkmcnt(0)
        v_mfma_f32_32x32x16_bf16 {v(ACC,16)}, {v(FB[1],4)}, {v(FA[1],4)}, {v(ACC,16)}
        """)
    LOOP = a.label("K3_LOOP")
    pf.stamp()
    a(f"s_mov_b32 {s(sSlotC)}, 0\ns_waitcnt vmcnt({2*(NSLOT-1)})\ns_barrier")
    pf.stamp()
    compute(False)
    a(f"s_mov_b32 {s(sIt)}, 1\n{LOOP}:\ns_waitcnt vmcnt({2*(NSLOT-2)})\ns_barrier")
    compute(True)
    a(f"s_add_u32 {s(sIt)}, {s(sIt)}, 1\ns_cmp_lt_u32 {s(sIt)}, {NCH - NSLOT + 1}\ns_cbranch_scc1 {LOOP}")
    for c in range(NCH - NSLOT + 1, NCH):
        a(f"s_waitcnt vmcnt({2*(NCH-1-c)})\ns_barrier")
        compute(False)
    pf.stamp()
    a.c("epilogue: fp32 tile [kh][64 rows][64 cols] (row stride 272B) through LDS")
    RS = 272
    a(f"""
    s_and_b32 {s(sT0)}, {s(sW)}, 1
    s_lshl_b32 {s(sT0)}, {s(sT0)}, 5
    v_and_b32 {v(vT[0])}, 31, {v(vL)}
    v_add_u32 {v(vT[0])}, {s(sT0)}, {v(vT[0])}
    v_mul_u32_u24 {v(vT[0])}, {RS}, {v(vT[0])}
    v_lshrrev_b32 {v(vT[1])}, 5, {v(vL)}
    v_lshl_add_u32 {v(vT[0])}, {v(vT[1])}, 4, {v(vT[0])}
    s_lshr_b32 {s(sT0)}, {s(sW)}, 1
    s_and_b32 {s(sT0)}, {s(sT0)}, 1
    s_lshl_b32 {s(sT0)}, {s(sT0)}, 7
    s_lshr_b32 {s(sT1)}, {s(sW)}, 2
    s_mul_i32 {s(sT1)}, {s(sT1)}, {64*RS}
    s_add_u32 {s(sT0)}, {s(sT0)}, {s(sT1)}
    v_add_u32 {v(vT[0])}, {s(sT0)}, {v(vT[0])}
    v_lshrrev_b32 {v(vT[1])}, 3, v0
    v_mul_u32_u24 {v(vT[1])}, {RS}, {v(vT[1])}
    v_and_b32 {v(vT[2])}, 7, v0
    v_lshl_add_u32 {v(vT[1])}, {v(vT[2])}, 5, {v(vT[1])}
    s_barrier
    """)
    for g in range(4):
        a(f"ds_write_b128 {v(vT[0])}, {v(ACC+4*g,4)} offset:{g*32}")
    a(f"""
    s_waitcnt lgkmcnt(0)
    s_barrier
    ds_read_b128 {v(R,4)}, {v(vT[1])}
    ds_read_b128 {v(R+4,4)}, {v(vT[1])} offset:16
    ds_read_b128 {v(R+8,4)}, {v(vT[1])} offset:{64*RS}
    ds_read_b128 {v(R+12,4)}, {v(vT[1])} offset:{64*RS+16}
    """)
    for i in range(4):
        a(f"""
        v_lshlrev_b32 {v(ACC+2*i)}, 16, {v(vXr+i)}
        v_and_b32 {v(ACC+2*i+1)}, 0xffff0000, {v(vXr+i)}
        v_lshlrev_b32 {v(ACC+8+2*i)}, 16, {v(vB2+i)}
        v_and_b32 {v(ACC+8+2*i+1)}, 0xffff0000, {v(vB2+i)}
        """)
    for i in range(8):
        a(f"v_add_f32 {v(ACC+i)}, {v(ACC+i)}, {v(ACC+8+i)}")
    a("s_waitcnt lgkmcnt(0)")
    for i in range(8):
        a(f"v_add_f32 {v(R+i)}, {v(R+i)}, {v(R+8+i)}")
    for i in range(8):
        a(f"v_add_f32 {v(R+i)}, {v(R+i)}, {v(ACC+i)}")
    for i in range(4):
        a(f"v_cvt_pk_bf16_f32 {v(R+8+i)}, {v(R+2*i)}, {v(R+2*i+1)}")
    a(f"""
    buffer_store_dwordx4 {v(R+8,4)}, {v(vT[5])}, {s(rOut,4)}, 0 offen
    """)
    if PROF: a("s_waitcnt vmcnt(0)")
    pf.finish(14, vT[0], vT[1], sW)
    a(f"""
    {END}:
    s_endpgm
    """)
    return V.hi, S.hi

def main():
    head = open("cdna_kernels/" + NAME + ".s.ref").read().split("\n")
    hdr = [l for l in head if l.startswith(";") and "@launch" not in l and "Override launch" not in l and "grid=ceil" not in l]
    a = Asm()
    ks = [("k1_kernel", gen_k1, 512, 163840), ("k2_kernel", gen_k2, 512, 131072), ("k3_kernel", gen_k3, 512, 131072)]
    out = "\n".join(hdr) + "\n"
    for n, _, blk, lds in ks:
        out += f"; @launch kernel={n} grid=(256,1,1) block=({blk},1,1) lds={lds}\n"
    out += '.amdgcn_target "amdgcn-amd-amdhsa--gfx950"\n.text\n'
    descs = ""
    for n, g, blk, lds in ks:
        vh, sh = g(a, n)
        descs += kernel_desc(n, vh, sh)
        print(n, "vgpr", vh, "sgpr", sh, file=sys.stderr)
    out += a.text() + '.section .rodata,"a"\n.p2align 6\n' + descs
    args = [x for x in sys.argv[1:] if x.endswith(".s")]
    dst = args[0] if args else "cdna_kernels/" + NAME + ".s"
    open(dst, "w").write(out)

main()
```

```python
import sys, struct
from asmlib import *

NAME = "parallel_sum__softmax_full_mha__dense_activation_gelu__prompt"
KNAME = NAME + "_kernel"
def opt(name, default):
    for x in sys.argv:
        if x.startswith(name + "="): return int(x.split("=")[1], 0)
    return default
WS_BASE = opt("wsbase", 0)
WS_Q, WS_K, WS_V, WS_A3 = WS_BASE, WS_BASE + 0x200000, WS_BASE + 0x400000, WS_BASE + 0x600000
A3_STEPS = 118
A3_TSTRIDE = A3_STEPS * 1024
WS_FLAG = WS_A3 + 64 * A3_TSTRIDE
FLAG_Q, FLAG_H, FLAG_O = WS_FLAG, WS_FLAG + 65536, WS_FLAG + 131072
WS_EPOCH = WS_FLAG + 196608
WS_END = WS_EPOCH + 256
LOG2E = 1.4426950408889634
PROF = "prof" in sys.argv
WS_PROF = 0x2000000
def f32(x): return "0x%08x" % struct.unpack("<I", struct.pack("<f", x))[0]
SC = " sc1"
SCQ = {0: " sc1", 1: "", 2: " nt", 3: " sc0 sc1", 4: " sc1 nt"}[opt("scq", 0)]
SCL = " sc1" if opt("scl", 1) else ""
XNT = " nt" if opt("xnt",0) else ""
WNT = " nt" if opt("wnt",0) else ""

class Cnt:
    def __init__(self, a, name, maxv):
        self.a, self.name, self.maxv, self.q = a, name, maxv, []
    def op(self, tag, n=1):
        self.q += [tag] * n
    def wait(self, *tags):
        idx = max((i for i, t in enumerate(self.q) if t in tags), default=-1)
        if idx < 0: return
        n = len(self.q) - 1 - idx
        self.a(f"s_waitcnt {self.name}({min(n, self.maxv)})")
        self.q = self.q[idx + 1:] if n <= self.maxv else self.q[len(self.q) - self.maxv:]
    def all(self):
        self.a(f"s_waitcnt {self.name}(0)")
        self.q = []

class Prof:
    def __init__(self, a, S, n):
        self.a, self.n = a, n
        if PROF:
            self.t = [S.alloc(2, 2) for _ in range(n)]
            self.rt = [S.alloc(2, 2) for _ in range(2)]
            self.r = S.alloc(4, 4)
    def start(self):
        if PROF:
            self.a(f"s_memrealtime {s(self.rt[0],2)}")
            for t in self.t: self.a(f"s_mov_b64 {s(t,2)}, 0")
            self.stamp(0)
    def stamp(self, i, kind="std"):
        mode = "fine" if "fine" in sys.argv else ("early" if "early" in sys.argv else "std")
        if PROF and (kind == mode or i in (0, self.n - 1)):
            self.a(f"s_memtime {s(self.t[i],2)}")
    def finish(self, vt, vt2, wave_s):
        if not PROF: return
        a = self.a
        a("s_waitcnt vmcnt(0)")
        self.stamp(self.n - 1)
        a(f"s_memrealtime {s(self.rt[1],2)}\ns_waitcnt lgkmcnt(0)")
        a(f"s_load_dwordx2 {s(self.r,2)}, s[0:1], 80\ns_waitcnt lgkmcnt(0)")
        a(f"s_mov_b32 {s(self.r+2)}, 0x4000000\ns_mov_b32 {s(self.r+3)}, 0x00020000")
        o = self.rt[0] + 1
        a(f"s_lshl_b32 {s(o)}, s2, 4\ns_add_u32 {s(o)}, {s(o)}, {s(wave_s)}\ns_lshl_b32 {s(o)}, {s(o)}, 6\ns_add_u32 {s(o)}, {s(o)}, {WS_PROF}")
        a(f"s_mov_b64 exec, 1\nv_mov_b32 {v(vt)}, {s(o)}")
        for j, r in enumerate([self.rt[0], self.rt[1]] + self.t):
            a(f"v_mov_b32 {v(vt2)}, {s(r)}\nbuffer_store_dword {v(vt2)}, {v(vt)}, {s(self.r,4)}, 0 offen offset:{4*j}\ns_nop 1")

def srd(a, d, lo, hi, size):
    a(f"s_mov_b32 {s(d)}, {lo}\ns_mov_b32 {s(d+1)}, {hi}\ns_mov_b32 {s(d+2)}, {size}\ns_mov_b32 {s(d+3)}, 0x00020000")

MFMA = "v_mfma_f32_32x32x16_bf16"
SMF = "v_smfmac_f32_32x32x32_bf16"
RING = 65536; SLOT = 24576
STG = 131072
QFLAG_CHUNK = opt("qflag", 15)

def gen(a):
    S = Regs("s", 24, 102)
    kernel_header(a, KNAME)
    END = a.label("END"); AUX = a.label("AUX")
    pf = Prof(a, S, 14 if not opt("lin", 0) else 14)
    sW, sRB, sCB, sH, sR8, sT0, sT1, sT2, sT3, sIt = [S.alloc() for _ in range(10)]
    rWS = S.alloc(4, 4); rA = S.alloc(4, 4); rB = S.alloc(4, 4); rC = S.alloc(4, 4)
    rL = pf.r if PROF else S.alloc(4, 4)
    sU = [S.alloc() for _ in range(10)]
    sMask = S.alloc(2, 2); sK = S.alloc(2, 2)
    a(f"""
    s_cmp_ge_u32 s2, 256
    s_cbranch_scc1 {END}
    """)
    pf.start()
    a(f"""
    s_load_dwordx4 s[4:7], s[0:1], 0
    s_load_dwordx2 s[8:9], s[0:1], 16
    s_load_dwordx8 s[12:19], s[0:1], 32
    s_load_dwordx4 s[20:23], s[0:1], 64
    s_load_dwordx2 {s(rWS,2)}, s[0:1], 80
    v_lshrrev_b32 v1, 6, v0
    v_and_b32 v2, 63, v0
    v_readfirstlane_b32 {s(sW)}, v1
    s_and_b32 {s(sT0)}, s2, 7
    s_lshr_b32 {s(sT1)}, s2, 3
    s_and_b32 {s(sRB)}, {s(sT0)}, 3
    s_lshl_b32 {s(sRB)}, {s(sRB)}, 3
    s_and_b32 {s(sT2)}, {s(sT1)}, 7
    s_add_u32 {s(sRB)}, {s(sRB)}, {s(sT2)}
    s_and_b32 {s(sCB)}, {s(sT0)}, 4
    s_lshr_b32 {s(sT2)}, {s(sT1)}, 3
    s_add_u32 {s(sCB)}, {s(sCB)}, {s(sT2)}
    s_lshl_b32 {s(sH)}, {s(sT0)}, 2
    s_and_b32 {s(sT2)}, {s(sT1)}, 3
    s_add_u32 {s(sH)}, {s(sH)}, {s(sT2)}
    s_lshr_b32 {s(sR8)}, {s(sT1)}, 2
    s_mov_b32 {s(rWS+2)}, {WS_END}
    s_mov_b32 {s(rWS+3)}, 0x00020000
    """)
    if opt("cpf", 1):
        a.c("pull this kernel's code into L2 (speed only): every wave touches a few lines")
        NL = opt("cpfl", 160)
        a(f"""
        s_getpc_b64 s[10:11]
        s_mul_i32 {s(sT2)}, {s(sT1)}, 12
        s_add_u32 {s(sT2)}, {s(sT2)}, {s(sW)}
        s_mul_i32 {s(sT3)}, {s(sT2)}, {(65536 + NL - 1) // NL}
        s_lshr_b32 {s(sT3)}, {s(sT3)}, 16
        s_mul_i32 {s(sT3)}, {s(sT3)}, {NL}
        s_sub_u32 {s(sT2)}, {s(sT2)}, {s(sT3)}
        s_lshl_b32 {s(sT2)}, {s(sT2)}, 7
        v_mov_b32 v1, {s(sT2)}
        s_mov_b64 exec, 1
        global_load_dword v1, v1, s[10:11]
        s_mov_b64 exec, -1
        """)
    a(f"""
    s_cmp_ge_u32 {s(sW)}, 8
    s_cbranch_scc1 {AUX}
    """)
    vmax = 0
    vmax = max(vmax, gen_main(a, locals()))
    a(f"{AUX}:")
    vmax = max(vmax, gen_aux(a, locals()))
    a(f"{END}:\ns_endpgm")
    a(".fill 512, 4, 0xbf810000")
    return vmax, S.hi

def gen_main(a, G):
    g = lambda n: G[n]
    pf, sW, sRB, sCB, sH, sR8, sT0, sT1, sT2, sT3, sIt = [g(n) for n in "pf sW sRB sCB sH sR8 sT0 sT1 sT2 sT3 sIt".split()]
    rWS, rA, rB, rC, sU, sMask, sK, END = [g(n) for n in "rWS rA rB rC sU sMask sK END".split()]
    V = Regs("v", 3, 168)
    vL = 2
    vm = Cnt(a, "vmcnt", 63); lg = Cnt(a, "lgkmcnt", 15)
    vT = [V.alloc() for _ in range(8)]
    vBias = [V.alloc(4, 4), V.alloc(4, 4)]
    vOneB = V.alloc(4, 4)
    XA = [V.alloc() for _ in range(8)]; WA = [V.alloc(), V.alloc()]
    F = [V.alloc(12, 4) for _ in range(4)]
    ACC1 = [V.alloc(16, 4), V.alloc(16, 4)]; ACC2 = [V.alloc(16, 4), V.alloc(16, 4)]
    P = V.alloc(16, 4)
    vDum = V.alloc(4, 2)
    X = ACC1[0]
    sMT, sNH, sHI = sU[0], sU[1], sU[2]
    a.c("---------------- main waves: x rows -> LayerNorm -> xn in LDS")
    a(f"""
    v_lshrrev_b32 {v(vT[0])}, 3, {v(vL)}
    v_and_b32 {v(vT[1])}, 7, {v(vL)}
    s_lshl_b32 {s(sT0)}, {s(sRB)}, 6
    s_lshl_b32 {s(sT1)}, {s(sW)}, 3
    s_add_u32 {s(sT0)}, {s(sT0)}, {s(sT1)}
    s_lshl_b32 {s(sT0)}, {s(sT0)}, 10
    v_lshlrev_b32 {v(vT[2])}, 10, {v(vT[0])}
    v_lshl_add_u32 {v(vT[2])}, {v(vT[1])}, 4, {v(vT[2])}
    s_and_b32 {s(sMT)}, {s(sW)}, 1
    s_lshr_b32 {s(sNH)}, {s(sW)}, 1
    s_and_b32 {s(sNH)}, {s(sNH)}, 1
    s_lshr_b32 {s(sHI)}, {s(sW)}, 2
    s_mov_b32 {s(rA+2)}, {2048*1024}
    s_mov_b32 {s(rA+3)}, 0x00020000
    s_mov_b32 {s(rB+2)}, 2752
    s_mov_b32 {s(rB+3)}, 0x00020000
    """)
    pf.stamp(1, "early")
    a(f"""
    s_waitcnt lgkmcnt(0)
    s_mov_b32 {s(rA)}, s4
    s_mov_b32 {s(rA+1)}, s5
    s_mov_b32 {s(rB)}, s14
    s_mov_b32 {s(rB+1)}, s15
    """)
    if opt("tlb", 0):
        a.c("one gather that touches every buffer, so that all address translations are fetched together (speed only)")
        TA = P + 12
        a(f"v_mov_b64 {v(TA,2)}, s[4:5]")
        for i, pr in enumerate(["s[6:7]", "s[12:13]", "s[14:15]", s(rWS,2), "s[22:23]", "s[16:17]", "s[8:9]", "s[18:19]", "s[20:21]"]):
            a(f"s_mov_b64 exec, {2 << i}\nv_mov_b64 {v(TA,2)}, {pr}")
        a(f"s_mov_b64 exec, 0x3ff\nglobal_load_dword {v(vDum)}, {v(TA,2)}, off\ns_mov_b64 exec, -1"); vm.op("tlb")
    pf.stamp(2, "early")
    for i in range(8):
        a(f"buffer_load_dwordx4 {v(X+4*i,4)}, {v(vT[2])}, {s(rA,4)}, {s(sT0)} offen offset:{128*i}{XNT}"); vm.op(f"x{i}")
    pf.stamp(3, "early")
    a.c("bias fragments: column = 192cb + 64g + 32nh + l%32 (g = 0,1 for waves 0-3, g = 2 for waves 4-7); upper half-wave reads out of range -> 0")
    a(f"""
    s_mul_i32 {s(sT1)}, {s(sCB)}, 192
    s_lshl_b32 {s(sT2)}, {s(sHI)}, 7
    s_add_u32 {s(sT1)}, {s(sT1)}, {s(sT2)}
    s_lshl_b32 {s(sT2)}, {s(sNH)}, 5
    s_add_u32 {s(sU[3])}, {s(sT1)}, {s(sT2)}
    v_and_b32 {v(vT[3])}, 31, {v(vL)}
    v_and_b32 {v(vT[4])}, 32, {v(vL)}
    v_lshl_add_u32 {v(vT[4])}, {v(vT[4])}, 16, {v(vT[3])}
    v_add_u32 {v(vT[4])}, {s(sU[3])}, {v(vT[4])}
    v_lshlrev_b32 {v(vT[4])}, 1, {v(vT[4])}
    buffer_load_ushort {v(vBias[0])}, {v(vT[4])}, {s(rB,4)}, 0 offen
    buffer_load_ushort {v(vBias[1])}, {v(vT[4])}, {s(rB,4)}, 0 offen offset:128
    """)
    vm.op("b", 2)
    if opt("mpf", 0):
        a.c("cooperative L2 warm-up (speed only): this workgroup touches 1/8 of the weight lines its column block needs")
        a(f"""
        s_mov_b32 {s(rC)}, s6
        s_mov_b32 {s(rC+1)}, s7
        s_mov_b32 {s(rC+2)}, {512*3072}
        s_mov_b32 {s(rC+3)}, 0x00020000
        s_and_b32 {s(sT1)}, {s(sRB)}, 7
        s_lshl_b32 {s(sT1)}, {s(sT1)}, 6
        v_add_u32 {v(P+2)}, {s(sT1)}, {v(vL)}
        v_mul_u32_u24 {v(P+3)}, 3072, {v(P+2)}
        v_mul_u32_u24 {v(P+2)}, 2752, {v(P+2)}
        s_lshl_b32 {s(sT1)}, {s(sCB)}, 7
        s_lshl_b32 {s(sT2)}, {s(sW)}, 10
        s_add_u32 {s(sT1)}, {s(sT1)}, {s(sT2)}
        s_cmp_ge_u32 {s(sW)}, 3
        s_cselect_b32 {s(sT1)}, 0x4000000, {s(sT1)}
        buffer_load_dword {v(vDum)}, {v(P+3)}, {s(rC,4)}, {s(sT1)} offen
        s_mov_b32 {s(rC)}, s12
        s_mov_b32 {s(rC+1)}, s13
        s_mov_b32 {s(rC+2)}, {512*2752}
        s_and_b32 {s(sT1)}, {s(sW)}, 3
        s_lshl_b32 {s(sT1)}, {s(sT1)}, 7
        s_min_u32 {s(sT1)}, {s(sT1)}, 380
        s_mul_i32 {s(sT2)}, {s(sCB)}, 384
        s_add_u32 {s(sT1)}, {s(sT1)}, {s(sT2)}
        s_cmp_lt_u32 {s(sW)}, 4
        s_cselect_b32 {s(sU[9])}, 0x4000000, {s(sT1)}
        """)
        vm.op("pf")
    pf.stamp(4, "early")
    a("s_barrier")
    pf.stamp(5, "early")
    sColF = sU[3]
    a.c("LDS addresses for the GEMM phases")
    a(f"""
    v_lshrrev_b32 {v(vT[4])}, 5, {v(vL)}
    v_and_b32 {v(vT[5])}, 15, {v(vL)}
    v_xor_b32 {v(vT[6])}, {v(vT[5])}, {v(vT[4])}
    s_lshl_b32 {s(sT1)}, {s(sMT)}, 15
    v_lshl_add_u32 {v(vT[7])}, {v(vT[3])}, 10, {s(sT1)}
    v_lshl_add_u32 {v(XA[0])}, {v(vT[6])}, 4, {v(vT[7])}
    """)
    for q in range(1, 8):
        a(f"v_xor_b32 {v(XA[q])}, {32*q}, {v(XA[0])}")
    a(f"""
    v_lshrrev_b32 {v(vT[5])}, 2, {v(vT[5])}
    v_lshl_add_u32 {v(vT[5])}, {v(vT[4])}, 3, {v(vT[5])}
    v_lshlrev_b32 {v(vT[5])}, 7, {v(vT[5])}
    v_and_b32 {v(vT[6])}, 1, {v(vT[0])}
    v_xor_b32 {v(vT[6])}, {s(sNH)}, {v(vT[6])}
    v_lshl_add_u32 {v(vT[5])}, {v(vT[6])}, 6, {v(vT[5])}
    v_bfe_u32 {v(vT[6])}, {v(vL)}, 4, 1
    v_lshl_add_u32 {v(vT[5])}, {v(vT[6])}, 5, {v(vT[5])}
    v_and_b32 {v(vT[6])}, 3, {v(vL)}
    v_lshl_add_u32 {v(vT[5])}, {v(vT[6])}, 3, {v(vT[5])}
    s_lshl_b32 {s(sT1)}, {s(sHI)}, 14
    s_add_u32 {s(sT1)}, {s(sT1)}, {RING}
    v_add_u32 {v(WA[0])}, {s(sT1)}, {v(vT[5])}
    v_add_u32 {v(WA[1])}, {2*SLOT}, {v(WA[0])}
    v_mov_b32 {v(vOneB)}, 0x3f80
    """)
    for r in (vBias[0], vBias[1], vOneB):
        for i in range(1, 4): a(f"v_mov_b32 {v(r+i)}, 0")
    a.c("xn write addresses: row = 8w + l/8")
    vWr = [vT[3], vT[4]]; vS = [F[0], F[0]+1, F[0]+2, F[0]+3]; vOnes = vT[5]; RN = F[0] + 4
    a(f"""
    s_lshl_b32 {s(sT1)}, {s(sW)}, 3
    v_add_u32 {v(vT[6])}, {s(sT1)}, {v(vT[0])}
    v_and_b32 {v(vT[7])}, 15, {v(vT[6])}
    v_xor_b32 {v(vT[7])}, {v(vT[7])}, {v(vT[1])}
    v_lshlrev_b32 {v(vT[7])}, 4, {v(vT[7])}
    v_lshl_add_u32 {v(vWr[0])}, {v(vT[6])}, 10, {v(vT[7])}
    v_xor_b32 {v(vWr[1])}, 128, {v(vWr[0])}
    v_mov_b32 {v(vOnes)}, 0x3f803f80
    """)
    for i in range(4): a(f"v_mov_b32 {v(vS[i])}, 0")
    pf.stamp(1); pf.stamp(6, "early")
    for i in range(8):
        vm.wait(f"x{i}")
        if i == 0: pf.stamp(7, "early")
        if i == 7: pf.stamp(8, "early")
        for d in range(4):
            r = X + 4*i + d
            a(f"v_dot2_f32_bf16 {v(vS[d%2])}, {v(r)}, {v(vOnes)}, {v(vS[d%2])}")
            a(f"v_dot2_f32_bf16 {v(vS[2+d%2])}, {v(r)}, {v(r)}, {v(vS[2+d%2])}")
    pf.stamp(2)
    a(f"""
    s_nop 2
    v_add_f32 {v(vS[0])}, {v(vS[0])}, {v(vS[1])}
    v_add_f32 {v(vS[2])}, {v(vS[2])}, {v(vS[3])}
    """)
    for m in ("quad_perm:[1,0,3,2]", "quad_perm:[2,3,0,1]", "row_half_mirror"):
        a(f"""
        s_nop 1
        v_add_f32_dpp {v(vS[0])}, {v(vS[0])}, {v(vS[0])} {m} row_mask:0xf bank_mask:0xf
        v_add_f32_dpp {v(vS[2])}, {v(vS[2])}, {v(vS[2])} {m} row_mask:0xf bank_mask:0xf
        """)
    vMean, vVar = vS[0], vS[2]
    a(f"""
    v_mul_f32 {v(vMean)}, {f32(1/512)}, {v(vMean)}
    v_mul_f32 {v(vVar)}, {f32(1/512)}, {v(vVar)}
    v_fma_f32 {v(vVar)}, -{v(vMean)}, {v(vMean)}, {v(vVar)}
    v_max_f32 {v(vVar)}, 0, {v(vVar)}
    v_cvt_pk_bf16_f32 {v(vMean)}, -{v(vMean)}, {v(vVar)}
    v_and_b32 {v(vVar)}, 0xffff0000, {v(vMean)}
    v_add_f32 {v(vVar)}, {f32(1e-5)}, {v(vVar)}
    v_cvt_pk_bf16_f32 {v(vVar)}, {v(vVar)}, {v(vVar)}
    v_and_b32 {v(vVar)}, 0xffff0000, {v(vVar)}
    v_sqrt_f32 {v(vVar)}, {v(vVar)}
    v_lshlrev_b32 {v(vMean)}, 16, {v(vMean)}
    v_cvt_pk_bf16_f32 {v(vVar)}, {v(vVar)}, {v(vVar)}
    v_and_b32 {v(vVar)}, 0xffff0000, {v(vVar)}
    v_rcp_f32 {v(RN)}, {v(vVar)}
    s_nop 0
    v_mul_f32 {v(RN+1)}, {v(vMean)}, {v(RN)}
    """)
    if opt("mpf", 0):
        a(f"buffer_load_dword {v(vDum+1)}, {v(P+2)}, {s(rC,4)}, {s(sU[9])} offen"); vm.op("pf")
    TT = F[1]
    for i in range(8):
        for d in range(4):
            r = X + 4*i + d
            a(f"v_lshlrev_b32 {v(TT+2*d)}, 16, {v(r)}\nv_and_b32 {v(TT+2*d+1)}, 0xffff0000, {v(r)}")
        for d in range(4):
            a(f"v_pk_fma_f32 {v(TT+2*d,2)}, {v(TT+2*d,2)}, {v(RN,2)}, {v(RN,2)} op_sel:[0,0,1] op_sel_hi:[1,0,1]")
        for d in range(4):
            a(f"v_cvt_pk_bf16_f32 {v(X+4*i+d)}, {v(TT+2*d)}, {v(TT+2*d+1)}")
        a(f"ds_write_b128 {v(vWr[i%2])}, {v(X+4*i,4)} offset:{(i//2)*256}"); lg.op("w")
    vm.wait("b")
    lg.all()
    pf.stamp(3); pf.stamp(9, "early")
    HI = a.label("M_HI"); JOIN = a.label("M_JOIN")
    a(f"s_cmp_eq_u32 {s(sHI)}, 1\ns_cbranch_scc1 {HI}")
    state = (list(vm.q), list(lg.q))
    def gemm(hi):
        vm.q, lg.q = list(state[0]), list(state[1])
        ng = 1 if hi else 2
        def xread(c, st):
            sidx = (c % 8) * 4 + st
            a(f"ds_read_b128 {v(F[st],4)}, {v(XA[sidx & 7])} offset:{(sidx >> 3) * 256}"); lg.op(("x", c, st))
        def wread(c, st):
            sl = c & 3
            for gi in range(ng):
                for j in range(2):
                    off = (sl & 1) * SLOT + gi * 8192 + st * 2048 + j * 512
                    a(f"ds_read_b64_tr_b16 {v(F[st]+4+4*gi+2*j,2)}, {v(WA[sl >> 1])} offset:{off}"); lg.op(("w", c, st))
        def mf(c, st):
            lg.wait(("x", c, st), ("w", c, st))
            acc = ACC1 if c < 8 else ACC2
            for gi in range(ng):
                w, x = v(F[st]+4+4*gi,4), v(F[st],4)
                cin = "0" if (c == 0 and st == 0) else v(acc[gi],16)
                if hi and c < 8: a(f"{MFMA} {v(acc[gi],16)}, {x}, {w}, {cin}")
                else: a(f"{MFMA} {v(acc[gi],16)}, {w}, {x}, {cin}")
        def qkv_epilogue(part):
            sTT, sO = sU[4], sU[5]
            if part == 0:
                a(f"""
                s_lshl_b32 {s(sTT)}, {s(sRB)}, 1
                s_add_u32 {s(sTT)}, {s(sTT)}, {s(sMT)}
                s_lshl_b32 {s(sO)}, {s(sCB)}, 1
                s_add_u32 {s(sO)}, {s(sO)}, {s(sNH)}
                s_lshl_b32 {s(sO)}, {s(sO)}, 17
                s_lshl_b32 {s(sT0)}, {s(sTT)}, 10
                s_add_u32 {s(sO)}, {s(sO)}, {s(sT0)}
                s_add_u32 {s(sO)}, {s(sO)}, {WS_Q}
                """)
                if not hi:
                    a(f"""
                    v_lshlrev_b32 {v(vT[0])}, 4, {v(vL)}
                    v_lshrrev_b32 {v(vT[1])}, 1, {v(vL)}
                    v_xor_b32 {v(vT[1])}, {v(vT[1])}, {v(vL)}
                    v_and_b32 {v(vT[1])}, 4, {v(vT[1])}
                    v_mul_u32_u24 {v(vT[1])}, 3, {v(vT[1])}
                    v_xor_b32 {v(vT[1])}, {v(vT[1])}, {v(vL)}
                    v_lshlrev_b32 {v(vT[1])}, 4, {v(vT[1])}
                    s_add_u32 {s(sU[6])}, {s(sO)}, 65536
                    s_add_u32 {s(sU[7])}, {s(sO)}, {WS_K - WS_Q}
                    s_add_u32 {s(sU[8])}, {s(sO)}, {WS_K - WS_Q + 65536}
                    """)
                else:
                    a(f"""
                    v_lshlrev_b32 {v(vT[0])}, 4, {v(vL)}
                    v_bfe_u32 {v(vT[1])}, {v(vL)}, 4, 1
                    v_lshlrev_b32 {v(vT[1])}, 16, {v(vT[1])}
                    v_and_b32 {v(vT[2])}, 15, {v(vL)}
                    v_lshl_add_u32 {v(vT[1])}, {v(vT[2])}, 4, {v(vT[1])}
                    v_lshrrev_b32 {v(vT[2])}, 5, {v(vL)}
                    v_lshl_add_u32 {v(vT[1])}, {v(vT[2])}, 8, {v(vT[1])}
                    s_add_u32 {s(sU[7])}, {s(sO)}, {WS_V - WS_Q}
                    """)
            elif hi:
                if part == 1:
                    for i in range(8): a(f"v_cvt_pk_bf16_f32 {v(P+i)}, {v(ACC1[0]+2*i)}, {v(ACC1[0]+2*i+1)}")
            elif part == 1:
                for i in range(8): a(f"v_cvt_pk_bf16_f32 {v(P+8+i)}, {v(ACC1[1]+2*i)}, {v(ACC1[1]+2*i+1)}")
            else:
                for i in range(16): a(f"v_mul_f32 {v(ACC1[0]+i)}, {f32(0.25*LOG2E)}, {v(ACC1[0]+i)}")
                for i in range(8): a(f"v_cvt_pk_bf16_f32 {v(P+i)}, {v(ACC1[0]+2*i)}, {v(ACC1[0]+2*i+1)}")
        def qkv_store(k):
            sO = sU[5]
            if hi:
                t = {0: f"buffer_store_dwordx4 {v(P,4)}, {v(vT[1])}, {s(rWS,4)}, {s(sU[7])} offen{SCQ}",
                     1: f"buffer_store_dwordx4 {v(P+4,4)}, {v(vT[1])}, {s(rWS,4)}, {s(sU[7])} offen offset:512{SCQ}"}[k]
            else:
                t = {0: f"buffer_store_dwordx4 {v(P+8,4)}, {v(vT[1])}, {s(rWS,4)}, {s(sU[7])} offen{SCQ}",
                     1: f"buffer_store_dwordx4 {v(P+12,4)}, {v(vT[1])}, {s(rWS,4)}, {s(sU[8])} offen{SCQ}",
                     2: f"buffer_store_dwordx4 {v(P,4)}, {v(vT[0])}, {s(rWS,4)}, {s(sO)} offen{SCQ}",
                     3: f"buffer_store_dwordx4 {v(P+4,4)}, {v(vT[0])}, {s(rWS,4)}, {s(sU[6])} offen{SCQ}"}[k]
            a(t); vm.op("st")
        ss = opt("ssched", 1)
        if ss == 0: stsched = {8: [0, 1]} if hi else {8: [0, 1, 2, 3]}
        if ss == 1: stsched = {10: [0], 11: [1]} if hi else {8: [0], 9: [1], 12: [2], 13: [3]}
        if ss == 2: stsched = {9: [0], 11: [1]} if hi else {8: [0], 9: [1], 10: [2], 11: [3]}
        if ss == 3: stsched = {9: [0], 10: [1]} if hi else {8: [0], 9: [1], 11: [2], 12: [3]}
        for c in range(16):
            if c == QFLAG_CHUNK: vm.all()
            a("s_barrier")
            if c == QFLAG_CHUNK and not hi:
                nf, ok, pl = a.label("M_noflag"), a.label("M_tokok"), a.label("M_tokpoll")
                a.c("wave 0 publishes Q/K/V: this launch's tag into each of the 32 consumers' flag rows")
                a(f"""
                s_cmp_lg_u32 {s(sW)}, 0
                s_cbranch_scc1 {nf}
                s_mov_b32 {s(sIt)}, 0
                {pl}:
                v_cmp_eq_u32 vcc, 0, {v(vDum)}
                s_cbranch_vccz {ok}
                s_sleep 2
                v_mov_b32 {v(vDum+2)}, 0
                global_load_dwordx2 {v(vDum,2)}, {v(vDum+2)}, s[22:23]{SC}
                s_add_u32 {s(sIt)}, {s(sIt)}, 1
                s_waitcnt vmcnt(0)
                s_cmp_lt_u32 {s(sIt)}, 0x20000
                s_cbranch_scc1 {pl}
                {ok}:
                s_lshl_b32 {s(sT0)}, {s(sCB)}, 13
                s_lshl_b32 {s(sT1)}, {s(sRB)}, 3
                s_add_u32 {s(sT0)}, {s(sT0)}, {s(sT1)}
                s_add_u32 {s(sT0)}, {s(sT0)}, {FLAG_Q}
                v_lshlrev_b32 {v(vDum+2)}, 8, {v(vL)}
                s_mov_b32 exec_hi, 0
                buffer_store_dwordx2 {v(vDum,2)}, {v(vDum+2)}, {s(rWS,4)}, {s(sT0)} offen{SC}
                s_mov_b64 exec, -1
                {nf}:
                """)
            if c == 8 and not hi:
                nf = a.label("M_notokld")
                a(f"""
                s_cmp_lg_u32 {s(sW)}, 0
                s_cbranch_scc1 {nf}
                v_mov_b32 {v(vDum+2)}, 0
                global_load_dwordx2 {v(vDum,2)}, {v(vDum+2)}, s[22:23]{SC}
                {nf}:
                """)
            if c == 0:
                pf.stamp(4); pf.stamp(10, "early")
                xread(0, 0); xread(0, 1)
            if c == 8: pf.stamp(5)
            if c >= 5: pf.stamp(c - 4, "fine")
            wread(c, 0); wread(c, 1)
            if c > 0: mf(c - 1, 3)
            if c == 7:
                qkv_epilogue(0)
            if c == 8:
                for gi in range(ng):
                    a(f"{MFMA} {v(ACC2[gi],16)}, {v(vBias[gi],4)}, {v(vOneB,4)}, 0")
            mf(c, 0)
            xread(c, 2); wread(c, 2)
            mf(c, 1)
            xread(c, 3); wread(c, 3)
            if c == 8:
                if hi: a("s_nop 3")
                qkv_epilogue(1)
            if c < 15: xread(c + 1, 0); xread(c + 1, 1)
            mf(c, 2)
            if c == 8: qkv_epilogue(2)
            for k in stsched.get(c, []): qkv_store(k)
            lg.wait(("w", c, 3))
        a("s_barrier")
        pf.stamp(6); pf.stamp(12, "fine")
        mf(15, 3)
        c1 = -2 * 0.7978845608028654 * LOG2E
        c2 = c1 * 0.044715
        CC = F[0]; T = F[1]
        a(f"""
        v_mov_b32 {v(CC)}, {f32(c2)}
        v_mov_b32 {v(CC+1)}, {f32(c1)}
        s_mul_i32 {s(sT1)}, {s(sMT)}, 12288
        s_lshl_b32 {s(sT0)}, {s(sNH)}, 11
        s_add_u32 {s(sT0)}, {s(sT0)}, {s(sT1)}
        s_add_u32 {s(sT0)}, {s(sT0)}, {STG + 8192 + (8192 if hi else 0)}
        v_add_u32 {v(vT[2])}, {s(sT0)}, {v(vT[0])}
        s_nop 6
        """)
        for gi in range(ng):
            skip = a.label("M_skip")
            A_ = ACC2[gi]; Pg = P + 8*gi
            a(f"s_add_u32 {s(sT1)}, {s(sColF)}, {64*gi}\ns_cmp_ge_u32 {s(sT1)}, 1376\ns_cbranch_scc1 {skip}")
            for i in range(0, 16, 2): a(f"v_pk_mul_f32 {v(T+i,2)}, {v(A_+i,2)}, {v(A_+i,2)}")
            for i in range(0, 16, 2): a(f"v_pk_fma_f32 {v(T+i,2)}, {v(T+i,2)}, {v(CC,2)}, {v(CC,2)} op_sel:[0,0,1] op_sel_hi:[1,0,1]")
            for i in range(0, 16, 2): a(f"v_pk_mul_f32 {v(T+i,2)}, {v(T+i,2)}, {v(A_+i,2)}")
            for i in range(16): a(f"v_exp_f32 {v(T+i)}, {v(T+i)}")
            for i in range(0, 16, 2): a(f"v_pk_add_f32 {v(T+i,2)}, {v(T+i,2)}, 1.0 op_sel_hi:[1,0]")
            for i in range(16): a(f"v_rcp_f32 {v(T+i)}, {v(T+i)}")
            for i in range(0, 16, 2): a(f"v_pk_mul_f32 {v(T+i,2)}, {v(T+i,2)}, {v(A_+i,2)}")
            for i in range(8): a(f"v_cvt_pk_bf16_f32 {v(Pg+i)}, {v(T+2*i)}, {v(T+2*i+1)}")
            a(f"ds_write_b128 {v(vT[2])}, {v(Pg,4)} offset:{4096*gi}")
            a(f"ds_write_b128 {v(vT[2])}, {v(Pg+4,4)} offset:{4096*gi + 1024}")
            a(f"{skip}:")
    gemm(False)
    a(f"s_branch {JOIN}\n{HI}:")
    gemm(True)
    a(f"{JOIN}:")
    vm.q = []; lg.q = []
    pf.stamp(7)
    a.c("Wo fragments for the final projection stay in registers during attention: wave kq = w>>1 holds rows 128kq..128kq+127")
    WFq = list(range(vBias[0], XA[0] + 8, 4)) + list(range(F[0] + 16, ACC1[0], 4)) + [P, P + 4, P + 8]
    assert len(WFq) == 16, WFq
    vWa, vWb = P + 12, P + 13
    a(f"""
    v_lshrrev_b32 {v(vDum)}, 5, {v(vL)}
    v_bfe_u32 {v(vWa)}, {v(vL)}, 2, 2
    v_lshl_add_u32 {v(vWa)}, {v(vDum)}, 2, {v(vWa)}
    v_lshlrev_b32 {v(vWa)}, 7, {v(vWa)}
    v_bfe_u32 {v(vDum)}, {v(vL)}, 3, 1
    v_lshl_add_u32 {v(vWa)}, {v(vDum)}, 6, {v(vWa)}
    v_bfe_u32 {v(vDum)}, {v(vL)}, 4, 1
    v_lshl_add_u32 {v(vWa)}, {v(vDum)}, 5, {v(vWa)}
    v_and_b32 {v(vDum)}, 3, {v(vL)}
    v_lshl_add_u32 {v(vWa)}, {v(vDum)}, 3, {v(vWa)}
    s_lshr_b32 {s(sT0)}, {s(sW)}, 1
    s_and_b32 {s(sT0)}, {s(sT0)}, 1
    s_lshl_b32 {s(sT0)}, {s(sT0)}, 14
    s_lshr_b32 {s(sT1)}, {s(sW)}, 2
    s_lshl_b32 {s(sT1)}, {s(sT1)}, 16
    s_add_u32 {s(sT0)}, {s(sT0)}, {s(sT1)}
    s_add_u32 {s(sT0)}, {s(sT0)}, 16384
    s_waitcnt lgkmcnt(0)
    v_add_u32 {v(vWa)}, {s(sT0)}, {v(vWa)}
    v_xor_b32 {v(vWb)}, 64, {v(vWa)}
    s_barrier
    """)
    for f in range(8):
        for n, va in enumerate((vWa, vWb)):
            for j in range(2):
                a(f"ds_read_b64_tr_b16 {v(WFq[2*f+n]+2*j,2)}, {v(va)} offset:{f*2048 + j*1024}")
        if f % 2 == 1 and f < 7: a("s_waitcnt lgkmcnt(6)")
    vXr, vB2 = P + 12, vDum
    a.c("residual x and b2 of this thread's 8 output columns")
    a(f"""
    s_mov_b32 {s(rB)}, s18
    s_mov_b32 {s(rB+1)}, s19
    s_mov_b32 {s(rB+2)}, 1024
    v_lshrrev_b32 {v(vT[5])}, 3, v0
    s_lshl_b32 {s(sT0)}, {s(sRB)}, 6
    v_add_u32 {v(vT[5])}, {s(sT0)}, {v(vT[5])}
    v_and_b32 {v(vT[6])}, 7, v0
    s_lshl_b32 {s(sT0)}, {s(sCB)}, 7
    v_lshl_add_u32 {v(vT[6])}, {v(vT[6])}, 4, {s(sT0)}
    v_lshl_add_u32 {v(WA[0])}, {v(vT[5])}, 10, {v(vT[6])}
    buffer_load_dwordx4 {v(vXr,4)}, {v(WA[0])}, {s(rA,4)}, 0 offen
    buffer_load_dwordx4 {v(vB2,4)}, {v(vT[6])}, {s(rB,4)}, 0 offen
    """)
    V2 = Regs("v", 3, 168)
    vL16 = V2.alloc(); vKa = V2.alloc(); vVa = V2.alloc(); vIdx = V2.alloc(); vVb = V2.alloc(); t = [V2.alloc() for _ in range(3)]
    assert vL16 == vT[0]
    V2.n = P + 16
    V2.n = ACC1[0]
    Q = V2.alloc(4, 4); K = V2.alloc(4, 4); V1 = V2.alloc(4, 4); Vb = V2.alloc(4, 4)
    C = V2.alloc(16, 4)
    SB = [ACC2[0], ACC2[1]]; O = F[0]
    assert V2.n <= ACC2[0] and F[0] + 16 <= ACC1[0]
    sBar, sPass, sTT = sU[0], sU[1], sU[2]
    a.c("---------------- attention: head h, q tile 8*r8 + w")
    a(f"""
    v_mov_b32 {v(vIdx)}, 0xdddddddd
    s_mov_b32 {s(sMask)}, 0x0000ffff
    s_mov_b32 {s(sMask+1)}, 0x0000ffff
    v_and_b32 {v(t[0])}, 15, {v(vL)}
    v_lshrrev_b32 {v(t[1])}, 5, {v(vL)}
    v_lshlrev_b32 {v(t[1])}, 8, {v(t[1])}
    v_lshl_add_u32 {v(t[1])}, {v(t[0])}, 4, {v(t[1])}
    v_add_u32 {v(vVb)}, 65536, {v(t[1])}
    v_and_b32 {v(t[0])}, 27, {v(vL)}
    v_cmp_eq_u32 vcc, 16, {v(t[0])}
    v_mov_b32 {v(t[2])}, 0x3f803f80
    s_mov_b32 {s(sBar)}, 3
    s_mov_b32 {s(sPass)}, 0
    v_cndmask_b32 {v(t[2])}, 0, {v(t[2])}, vcc
    s_lshl_b32 {s(sTT)}, {s(sR8)}, 3
    s_add_u32 {s(sTT)}, {s(sTT)}, {s(sW)}
    s_lshl_b32 {s(sT0)}, {s(sW)}, 10
    s_add_u32 {s(sT0)}, {s(sT0)}, {STG}
    v_add_u32 {v(t[0])}, {s(sT0)}, {v(vL16)}
    """)
    for i in range(4):
        a(f"v_mov_b32 {v(V1+i)}, {v(t[2])}\nv_mov_b32 {v(Vb+i)}, {v(t[2])}")
    a("s_waitcnt lgkmcnt(0)\ns_barrier")
    pf.stamp(8)
    a(f"""
    ds_read_b128 {v(Q,4)}, {v(t[0])}
    ds_read_b128 {v(K,4)}, {v(vL16)}
    s_waitcnt lgkmcnt(0)
    {MFMA} {v(SB[0],16)}, {v(K,4)}, {v(Q,4)}, 0
    s_nop 11
    """)
    def rowmax(src, dst, first):
        k = 0
        if first:
            a(f"v_max3_f32 {v(dst)}, {v(src)}, {v(src+1)}, {v(src+2)}"); k = 3
        while k < 16:
            if k + 1 < 16:
                a(f"v_max3_f32 {v(dst)}, {v(dst)}, {v(src+k)}, {v(src+k+1)}"); k += 2
            else:
                a(f"v_max_f32 {v(dst)}, {v(dst)}, {v(src+k)}"); k += 1
    rowmax(SB[0], t[0], True)
    LSTART = a.label("AT_START"); LOOP = a.label("AT_LOOP"); nob = a.label("AT_nob"); DONE = a.label("AT_DONE")
    a(f"""
    {LSTART}:
    v_mov_b32 {v(t[1])}, {v(t[0])}
    v_mov_b32 {v(vKa)}, {v(vL16)}
    v_mov_b32 {v(vVa)}, {v(vVb)}
    v_permlane32_swap_b32 {v(t[0])}, {v(t[1])}
    """)
    for i in range(8): a(f"v_mov_b32 {v(O+i)}, 0")
    a(f"v_max_f32 {v(t[0])}, {v(t[0])}, {v(t[1])}")
    for i in range(16): a(f"v_sub_f32 {v(C+i)}, 0, {v(t[0])}")
    for i in range(8, 16): a(f"v_mov_b32 {v(O+i)}, 0")
    a(f"{MFMA} {v(SB[0],16)}, {v(K,4)}, {v(Q,4)}, {v(C,16)}")
    a(f"""
    s_mov_b64 exec, {s(sMask,2)}
    ds_read_b128 {v(Vb,4)}, {v(vVa)}
    s_mov_b64 exec, -1
    ds_read_b128 {v(K,4)}, {v(vKa)} offset:1024
    s_mov_b64 exec, {s(sMask,2)}
    ds_read_b128 {v(V1,4)}, {v(vVa)}
    s_mov_b64 exec, -1
    s_mov_b32 {s(sIt)}, 0
    """)
    for i in range(8, 16): a(f"v_mov_b32 {v(SB[1]+i)}, 0")
    a(f"""
    .p2align 3
    {LOOP}:
    s_cmp_lg_u32 {s(sIt)}, {s(sBar)}
    s_cbranch_scc1 {nob}
    s_barrier
    {nob}:
    """)
    U = 4
    for k in range(U):
        cur, oth = SB[k % 2], SB[(k + 1) % 2]
        e = lambda i: a(f"v_exp_f32 {v(cur+i)}, {v(cur+i)}")
        a(f"s_setprio {2 - (k % 3) if False else 3 - k}")
        e(0); e(1)
        a(f"s_waitcnt lgkmcnt(2)\n{SMF} {v(O,16)}, {v(Vb,4)}, {v(oth+8,8)}, {v(vIdx)}")
        a(f"s_mov_b64 exec, {s(sMask,2)}\nds_read_b128 {v(Vb,4)}, {v(vVa)} offset:{k*1024 + 512}\ns_mov_b64 exec, -1")
        e(2); e(3); e(4); e(5)
        a(f"s_waitcnt lgkmcnt(2)\n{MFMA} {v(oth,16)}, {v(K,4)}, {v(Q,4)}, {v(C,16)}")
        a(f"ds_read_b128 {v(K,4)}, {v(vKa)} offset:{(k+2)*1024}")
        e(6); e(7); e(8); e(9); e(10)
        a(f"s_waitcnt lgkmcnt(2)\n{SMF} {v(O,16)}, {v(V1,4)}, {v(cur,8)}, {v(vIdx)}")
        a(f"s_mov_b64 exec, {s(sMask,2)}\nds_read_b128 {v(V1,4)}, {v(vVa)} offset:{(k+1)*1024}\ns_mov_b64 exec, -1")
        e(11); e(12); e(13)
        if k == U - 1:
            a(f"v_add_u32 {v(vKa)}, {U*1024}, {v(vKa)}\nv_add_u32 {v(vVa)}, {U*1024}, {v(vVa)}")
            a(f"s_add_u32 {s(sIt)}, {s(sIt)}, 1\ns_cmp_lt_u32 {s(sIt)}, {64//U}")
        e(14); e(15)
    a(f"""
    s_cbranch_scc1 {LOOP}
    s_waitcnt lgkmcnt(0)
    s_setprio 3
    {SMF} {v(O,16)}, {v(Vb,4)}, {v(SB[1]+8,8)}, {v(vIdx)}
    s_mov_b32 {s(sBar)}, -1
    s_mov_b32 {s(sT0)}, {f32(2.0**60)}
    s_mov_b32 {s(sT1)}, {f32(2.0**120)}
    s_cmp_lg_u32 {s(sPass)}, 0
    s_nop 7
    s_cbranch_scc1 {DONE}
    """)
    a.c("the stand-in max was the max over the first key tile: check nothing overflowed, otherwise redo with the true row max")
    a(f"""
    v_max3_f32 {v(t[0])}, |{v(O)}|, |{v(O+1)}|, |{v(O+2)}|
    v_add_f32 {v(t[1])}, {v(O)}, {v(O+1)}
    v_add_f32 {v(t[2])}, {v(O+2)}, {v(O+3)}
    v_max3_f32 {v(t[0])}, {v(t[0])}, |{v(O+3)}|, |{v(O+4)}|
    v_add_f32 {v(t[1])}, {v(t[1])}, {v(O+4)}
    v_add_f32 {v(t[2])}, {v(t[2])}, {v(O+5)}
    v_max3_f32 {v(t[0])}, {v(t[0])}, |{v(O+5)}|, |{v(O+6)}|
    v_add_f32 {v(t[1])}, {v(t[1])}, {v(O+6)}
    v_add_f32 {v(t[2])}, {v(t[2])}, {v(O+7)}
    v_max_f32 {v(t[0])}, {v(t[0])}, |{v(O+7)}|
    v_add_f32 {v(t[1])}, {v(t[1])}, {v(t[2])}
    v_cmp_nlt_f32 vcc, {v(O+8)}, {s(sT0)}
    v_cmp_nlt_f32 {s(sK,2)}, {v(t[0])}, {s(sT1)}
    s_or_b64 vcc, vcc, {s(sK,2)}
    v_cmp_u_f32 {s(sK,2)}, {v(t[1])}, {v(t[1])}
    s_or_b64 vcc, vcc, {s(sK,2)}
    s_cbranch_vccz {DONE}
    """)
    ML = a.label("AT_MAXLOOP")
    a(f"""
    s_mov_b32 {s(sPass)}, 1
    v_mov_b32 {v(vKa)}, {v(vL16)}
    v_mov_b32 {v(t[0])}, 0xff800000
    s_mov_b32 {s(sIt)}, 0
    {ML}:
    ds_read_b128 {v(K,4)}, {v(vKa)}
    v_add_u32 {v(vKa)}, 1024, {v(vKa)}
    s_waitcnt lgkmcnt(0)
    {MFMA} {v(SB[0],16)}, {v(K,4)}, {v(Q,4)}, 0
    s_nop 15
    """)
    rowmax(SB[0], t[0], False)
    a(f"""
    s_add_u32 {s(sIt)}, {s(sIt)}, 1
    s_cmp_lt_u32 {s(sIt)}, 64
    s_cbranch_scc1 {ML}
    ds_read_b128 {v(K,4)}, {v(vL16)}
    s_waitcnt lgkmcnt(0)
    s_branch {LSTART}
    {DONE}:
    v_rcp_f32 {v(t[0])}, {v(O+8)}
    s_and_b32 {s(sU[6])}, {s(sW)}, 1
    s_lshr_b32 {s(sU[7])}, {s(sW)}, 1
    s_lshl_b32 {s(sT0)}, {s(sRB)}, 1
    s_add_u32 {s(sT0)}, {s(sT0)}, {s(sU[6])}
    s_mul_i32 {s(sU[5])}, {s(sT0)}, {A3_TSTRIDE}
    s_lshl_b32 {s(sT0)}, {s(sU[7])}, 13
    s_add_u32 {s(sU[5])}, {s(sU[5])}, {s(sT0)}
    s_add_u32 {s(sU[5])}, {s(sU[5])}, {WS_A3}
    s_add_u32 {s(sT3)}, {s(sU[5])}, 4096
    s_lshl_b32 {s(sT0)}, {s(sW)}, 10
    v_add_u32 {v(t[1])}, {s(sT0)}, {v(vL16)}
    """)
    for i in range(8): a(f"v_mul_f32 {v(O+i)}, {v(O+i)}, {v(t[0])}")
    for i in range(4): a(f"v_cvt_pk_bf16_f32 {v(K+i)}, {v(O+2*i)}, {v(O+2*i+1)}")
    pf.stamp(9)
    a("s_barrier")
    a(f"ds_write_b128 {v(t[1])}, {v(K,4)}\ns_waitcnt lgkmcnt(0)\ns_barrier")
    a.c("---------------- final: out tile (tm = rb, tn = cb), wave (mt = w&1, kq = w>>1): heads 8kq..8kq+7, 32 tokens x 64 cols")
    vOa, vAa, vWp, vRp, vLp = WA[0], vVa, vIdx, vVb, vKa
    vBa = WA[1]
    OF = [ACC2[0] + 4*i for i in range(8)]
    ACC = [ACC1[0], ACC1[1]]
    sP, sRdy, sOo, sMTf, sKQ = sU[3], sU[4], sU[5], sU[6], sU[7]
    PART = 65536
    def oload(f):
        a(f"buffer_load_dwordx4 {v(OF[f],4)}, {v(vL16)}, {s(rWS,4)}, {s(sOo if f < 4 else sT3)} offen offset:{(f%4)*1024}{SC}")
    for f in range(8): oload(f)
    a.c("partial tiles [kq][row][chunk ^ (row&15)] fp32: write and read addresses; FFN2 partials [kq][mt][nt][g][lane] as C init")
    a(f"""
    s_mov_b32 {s(rC)}, s20
    s_mov_b32 {s(rC+1)}, s21
    s_mov_b32 {s(rC+2)}, {2048*1024}
    s_mov_b32 {s(rC+3)}, 0x00020000
    s_lshl_b32 {s(sIt)}, {s(sKQ)}, 14
    s_lshl_b32 {s(sT0)}, {s(sMTf)}, 13
    s_add_u32 {s(sT0)}, {s(sT0)}, {s(sIt)}
    s_add_u32 {s(sT0)}, {s(sT0)}, {PART}
    v_add_u32 {v(vAa)}, {s(sT0)}, {v(vL16)}
    s_barrier
    """)
    pf.stamp(10)
    for n in range(2):
        for gq in range(4): a(f"ds_read_b128 {v(ACC[n]+4*gq,4)}, {v(vAa)} offset:{n*4096 + gq*1024}")
    a(f"""
    v_lshrrev_b32 {v(t[0])}, 3, v0
    v_and_b32 {v(t[2])}, 7, v0
    v_and_b32 {v(vWp)}, 31, {v(vL)}
    s_lshl_b32 {s(sT0)}, {s(sMTf)}, 5
    v_add_u32 {v(vWp)}, {s(sT0)}, {v(vWp)}
    v_lshrrev_b32 {v(vBa)}, 5, {v(vL)}
    v_and_b32 {v(t[1])}, 15, {v(vWp)}
    v_xor_b32 {v(vBa)}, {v(vBa)}, {v(t[1])}
    v_lshlrev_b32 {v(vBa)}, 4, {v(vBa)}
    v_lshl_add_u32 {v(vWp)}, {v(vWp)}, 8, {v(vBa)}
    v_add_u32 {v(vWp)}, {s(sIt)}, {v(vWp)}
    v_lshlrev_b32 {v(t[2])}, 1, {v(t[2])}
    v_and_b32 {v(t[1])}, 15, {v(t[0])}
    v_xor_b32 {v(t[2])}, {v(t[2])}, {v(t[1])}
    v_lshlrev_b32 {v(t[2])}, 4, {v(t[2])}
    v_lshl_add_u32 {v(vRp)}, {v(t[0])}, 8, {v(t[2])}
    v_lshlrev_b32 {v(vLp)}, 10, {v(vL)}
    v_add_u32 {v(vLp)}, 1020, {v(vLp)}
    s_mov_b32 {s(sP)}, 255
    s_mov_b32 {s(sIt)}, 0
    s_waitcnt lgkmcnt(0)
    """)
    a.c("O fragments arrive from 32 other workgroups; a slot still holding the all-ones marker has not been written yet")
    def check(f, cond_label):
        tt_ = t[f % 2]
        a(f"""
        v_max3_u32 {v(tt_)}, {v(OF[f])}, {v(OF[f]+1)}, {v(OF[f]+2)}
        v_max_u32 {v(tt_)}, {v(tt_)}, {v(OF[f]+3)}
        v_cmp_eq_u32 vcc, -1, {v(tt_)}
        s_cbranch_vccnz {cond_label}
        """)
    def use(f):
        for n in range(2):
            a(f"{MFMA} {v(ACC[n],16)}, {v(WFq[2*f+n],4)}, {v(OF[f],4)}, {v(ACC[n],16)}")
        a(f"s_bitset0_b32 {s(sP)}, {f}")
    for f in range(8):
        sk = a.label("F_sk")
        a(f"s_waitcnt vmcnt({7 - f})")
        check(f, sk); use(f)
        a(f"{sk}:")
    RL, RD, FORCE = a.label("F_POLL"), a.label("F_DONE"), a.label("F_FORCE")
    a(f"""
    s_cmp_eq_u32 {s(sP)}, 0
    s_cbranch_scc1 {RD}
    {RL}:
    s_mov_b64 exec, 255
    buffer_load_dword {v(t[2])}, {v(vLp)}, {s(rWS,4)}, {s(sOo)} offen{SC}
    s_add_u32 {s(sIt)}, {s(sIt)}, 1
    s_waitcnt vmcnt(0)
    v_cmp_ne_u32 vcc, -1, {v(t[2])}
    s_cmp_ge_u32 {s(sIt)}, 0x10000
    s_cselect_b32 {s(sRdy)}, 255, vcc_lo
    s_cselect_b32 {s(sT0)}, 1, 0
    s_and_b32 {s(sRdy)}, {s(sRdy)}, {s(sP)}
    s_cbranch_scc1 {FORCE}
    s_sleep {opt("osleep", 2)}
    s_branch {RL}
    {FORCE}:
    """)
    for f in range(8):
        a(f"s_bitcmp1_b32 {s(sRdy)}, {f}\ns_cselect_b64 exec, -1, 0")
        oload(f)
    a("s_mov_b64 exec, -1\ns_waitcnt vmcnt(0)")
    for f in range(8):
        sk, go = a.label("F_sk"), a.label("F_go")
        a(f"s_bitcmp1_b32 {s(sRdy)}, {f}\ns_cbranch_scc0 {sk}\ns_cmp_lg_u32 {s(sT0)}, 0\ns_cbranch_scc1 {go}")
        check(f, sk)
        a(f"{go}:")
        use(f)
        a(f"{sk}:")
    a(f"""
    s_cmp_lg_u32 {s(sP)}, 0
    s_cbranch_scc1 {RL}
    {RD}:
    """)
    pf.stamp(11)
    XS = F[0] + 16; R = ACC2[0]
    for i in range(4):
        a(f"v_lshlrev_b32 {v(XS+2*i)}, 16, {v(vXr+i)}\nv_and_b32 {v(XS+2*i+1)}, 0xffff0000, {v(vXr+i)}")
    for i in range(4):
        a(f"v_lshlrev_b32 {v(XS+8+2*i)}, 16, {v(vB2+i)}\nv_and_b32 {v(XS+8+2*i+1)}, 0xffff0000, {v(vB2+i)}")
    for n in range(2):
        for gq in range(4):
            a(f"v_xor_b32 {v(t[gq%2])}, {128*n + 32*gq}, {v(vWp)}\nds_write_b128 {v(t[gq%2])}, {v(ACC[n]+4*gq,4)}")
    for i in range(8): a(f"v_add_f32 {v(XS+i)}, {v(XS+i)}, {v(XS+8+i)}")
    a(f"""
    v_xor_b32 {v(t[1])}, 16, {v(vRp)}
    s_waitcnt lgkmcnt(0)
    s_barrier
    """)
    for k in range(4):
        a(f"ds_read_b128 {v(R+8*k,4)}, {v(vRp)} offset:{16384*k}\nds_read_b128 {v(R+8*k+4,4)}, {v(t[1])} offset:{16384*k}")
    a("s_waitcnt lgkmcnt(4)")
    for i in range(8): a(f"v_add_f32 {v(XS+i)}, {v(XS+i)}, {v(R+i)}")
    for i in range(8): a(f"v_add_f32 {v(XS+i)}, {v(XS+i)}, {v(R+8+i)}")
    a("s_waitcnt lgkmcnt(0)")
    for i in range(8): a(f"v_add_f32 {v(R+16+i)}, {v(R+16+i)}, {v(R+24+i)}")
    for i in range(8): a(f"v_add_f32 {v(XS+i)}, {v(XS+i)}, {v(R+16+i)}")
    for i in range(4): a(f"v_cvt_pk_bf16_f32 {v(R+i)}, {v(XS+2*i)}, {v(XS+2*i+1)}")
    a(f"buffer_store_dwordx4 {v(R,4)}, {v(vOa)}, {s(rC,4)}, 0 offen")
    pf.finish(t[0], t[1], sW)
    a("s_endpgm")
    return V.hi

def gen_aux(a, G):
    g = lambda n: G[n]
    pf, sW, sRB, sCB, sH, sR8, sT0, sT1, sT2, sT3, sIt = [g(n) for n in "pf sW sRB sCB sH sR8 sT0 sT1 sT2 sT3 sIt".split()]
    rWS, rA, rB, rC, sU, sMask, sK, END = [g(n) for n in "rWS rA rB rC sU sMask sK END".split()]
    V = Regs("v", 3, 168)
    vL = 2
    vm = Cnt(a, "vmcnt", 63); lg = Cnt(a, "lgkmcnt", 15)
    vL16 = V.alloc(); vT = [V.alloc() for _ in range(6)]
    vWq = [V.alloc(), V.alloc()]; vW1 = [V.alloc(), V.alloc()]
    vD = V.alloc(4, 4)
    sA = sU[0]; sOff = [sU[1], sU[2], sU[3]]; sM = [sU[4], sU[5], sU[6]]; sI8 = sU[7]
    a.c("---------------- aux waves: weight streaming for the two GEMMs")
    a(f"""
    s_setprio {opt("auxprio", 1)}
    s_sub_u32 {s(sA)}, {s(sW)}, 8
    v_lshlrev_b32 {v(vL16)}, 4, {v(vL)}
    v_lshrrev_b32 {v(vT[0])}, 3, {v(vL)}
    s_lshl_b32 {s(sT0)}, {s(sA)}, 4
    v_add_u32 {v(vT[0])}, {s(sT0)}, {v(vT[0])}
    v_bfe_u32 {v(vT[1])}, {v(vL)}, 4, 1
    v_lshlrev_b32 {v(vT[1])}, 2, {v(vT[1])}
    v_and_b32 {v(vT[2])}, 7, {v(vL)}
    v_xor_b32 {v(vT[1])}, {v(vT[1])}, {v(vT[2])}
    v_lshlrev_b32 {v(vT[1])}, 4, {v(vT[1])}
    v_mul_u32_u24 {v(vT[2])}, 3072, {v(vT[0])}
    v_add_u32 {v(vWq[0])}, {v(vT[2])}, {v(vT[1])}
    v_add_u32 {v(vWq[1])}, {8*3072 - 1024}, {v(vWq[0])}
    v_mul_u32_u24 {v(vT[2])}, 2752, {v(vT[0])}
    v_add_u32 {v(vW1[0])}, {v(vT[2])}, {v(vT[1])}
    v_add_u32 {v(vW1[1])}, {8*2752 - 1024}, {v(vW1[0])}
    s_lshl_b32 {s(sOff[0])}, {s(sCB)}, 7
    s_add_u32 {s(sOff[1])}, {s(sOff[0])}, 1024
    s_add_u32 {s(sOff[2])}, {s(sOff[0])}, 2048
    s_lshl_b32 {s(sM[0])}, {s(sA)}, 11
    s_add_u32 {s(sM[0])}, {s(sM[0])}, {RING}
    s_add_u32 {s(sM[1])}, {s(sM[0])}, 8192
    s_add_u32 {s(sM[2])}, {s(sM[0])}, 16384
    s_and_b32 {s(sI8)}, {s(sRB)}, 7
    s_mov_b32 {s(rA+2)}, {512*3072}
    s_mov_b32 {s(rA+3)}, 0x00020000
    s_mov_b32 {s(rB+2)}, {512*2752}
    s_mov_b32 {s(rB+3)}, 0x00020000
    s_cmp_eq_u32 {s(sCB)}, 7
    s_cselect_b32 {s(rC+2)}, 0, {512*2752}
    s_mov_b32 {s(rC+3)}, 0x00020000
    s_waitcnt lgkmcnt(0)
    s_mov_b32 {s(rA)}, s6
    s_mov_b32 {s(rA+1)}, s7
    s_mov_b32 {s(rB)}, s12
    s_mov_b32 {s(rB+1)}, s13
    s_mov_b32 {s(rC)}, s12
    s_mov_b32 {s(rC+1)}, s13
    """)
    sLQ, sLH = sU[8], sU[9]
    sN = sK
    nn = a.label("X_nonce")
    a(f"""
    s_lshl_b32 {s(sLQ)}, {s(sH)}, 3
    s_add_u32 {s(sLQ)}, {s(sLQ)}, {s(sR8)}
    s_lshl_b32 {s(sLQ)}, {s(sLQ)}, 8
    s_add_u32 {s(sLQ)}, {s(sLQ)}, {FLAG_Q}
    s_lshl_b32 {s(sLH)}, {s(sRB)}, 3
    s_add_u32 {s(sLH)}, {s(sLH)}, {s(sCB)}
    s_lshl_b32 {s(sLH)}, {s(sLH)}, 8
    s_add_u32 {s(sLH)}, {s(sLH)}, {FLAG_H}
    """)
    a.c("workgroup 0, wave 11 picks this launch's tag (previous tag + 1, low word never 0) and publishes it through d_debug")
    a(f"""
    s_cmp_lg_u32 s2, 0
    s_cbranch_scc1 {nn}
    s_cmp_lg_u32 {s(sA)}, 3
    s_cbranch_scc1 {nn}
    v_mov_b32 {v(vT[4])}, 0
    s_mov_b32 {s(sT0)}, {WS_EPOCH}
    s_mov_b64 exec, 1
    buffer_load_dwordx2 {v(vD,2)}, {v(vT[4])}, {s(rWS,4)}, {s(sT0)} offen{SC}
    s_waitcnt vmcnt(0)
    v_add_co_u32 {v(vD)}, vcc, 1, {v(vD)}
    s_nop 1
    v_addc_co_u32 {v(vD+1)}, vcc, 0, {v(vD+1)}, vcc
    v_max_u32 {v(vD)}, 1, {v(vD)}
    buffer_store_dwordx2 {v(vD,2)}, {v(vT[4])}, {s(rWS,4)}, {s(sT0)} offen{SC}
    global_store_dwordx2 {v(vT[4])}, {v(vD,2)}, s[22:23]{SC}
    s_mov_b64 exec, -1
    {nn}:
    """)
    def dma(c):
        sl = c & 3
        if c == 8:
            a(f"""
            s_mul_i32 {s(sOff[0])}, {s(sCB)}, 384
            s_add_u32 {s(sOff[1])}, {s(sOff[0])}, 128
            s_add_u32 {s(sOff[2])}, {s(sOff[0])}, 256
            """)
        for gi in range(3):
            r = rA if c < 8 else (rB if gi == 0 else rC)
            vo = vWq if c < 8 else vW1
            a(f"""
            s_add_u32 m0, {s(sM[gi])}, {sl*SLOT}
            s_nop 0
            buffer_load_dwordx4 {v(vo[0])}, {s(r,4)}, {s(sOff[gi])} offen{WNT} lds
            buffer_load_dwordx4 {v(vo[1])}, {s(r,4)}, {s(sOff[gi])} offen offset:1024{WNT} lds
            s_add_u32 {s(sOff[gi])}, {s(sOff[gi])}, {64*(3072 if c < 8 else 2752)}
            """)
            vm.op(("c", c), 2)
    if opt("lin", 0):
        a.c("linear warm-up of the weights into the memory-side cache: every workgroup touches a contiguous 1/256 of one matrix per wave")
        rL = G["rL"]
        a(f"""
        s_cmp_eq_u32 {s(sA)}, 1
        s_cselect_b32 {s(rL)}, s12, s6
        s_cselect_b32 {s(rL+1)}, s13, s7
        s_movk_i32 {s(sT1)}, 6144
        s_cselect_b32 {s(sT0)}, 5504, {s(sT1)}
        s_cmp_eq_u32 {s(sA)}, 2
        s_cselect_b32 {s(rL)}, s16, {s(rL)}
        s_cselect_b32 {s(rL+1)}, s17, {s(rL+1)}
        s_cselect_b32 {s(sT0)}, 5504, {s(sT0)}
        s_cmp_eq_u32 {s(sA)}, 3
        s_cselect_b32 {s(rL)}, s8, {s(rL)}
        s_cselect_b32 {s(rL+1)}, s9, {s(rL+1)}
        s_cselect_b32 {s(sT0)}, 2048, {s(sT0)}
        s_lshl_b32 {s(rL+2)}, {s(sT0)}, 8
        s_mov_b32 {s(rL+3)}, 0x00020000
        s_mul_i32 {s(sT1)}, {s(sT0)}, s2
        s_sub_u32 {s(sT0)}, {s(sT0)}, 4
        v_lshlrev_b32 {v(vT[4])}, 7, {v(vL)}
        v_min_u32 {v(vT[4])}, {s(sT0)}, {v(vT[4])}
        buffer_load_dword {v(vD+2)}, {v(vT[4])}, {s(rL,4)}, {s(sT1)} offen
        """)
        vm.op("lin")
    if opt("tlbw", 0):
        a(f"""
        v_lshlrev_b32 {v(vT[4])}, 20, {v(vL)}
        v_add_u32 {v(vT[4])}, 0xff000, {v(vT[4])}
        buffer_load_dword {v(vD+3)}, {v(vT[4])}, {s(rWS,4)}, 0 offen
        """)
        vm.op("tlb")
    PFS = SC if opt("pfsc", 0) else (" nt" if opt("pfnt", 0) else "")
    a.c("cooperative L2 warm-up (speed only): this workgroup touches 1/8 of the lines its column block needs")
    a(f"""
    s_lshl_b32 {s(sT0)}, {s(sI8)}, 6
    v_add_u32 {v(vT[1])}, {s(sT0)}, {v(vL)}
    v_mul_u32_u24 {v(vT[0])}, 2752, {v(vT[1])}
    v_mul_u32_u24 {v(vT[1])}, 3072, {v(vT[1])}
    s_lshl_b32 {s(sT0)}, {s(sA)}, 7
    s_min_u32 {s(sT0)}, {s(sT0)}, 380
    s_mul_i32 {s(sT1)}, {s(sCB)}, 384
    s_add_u32 {s(sT0)}, {s(sT0)}, {s(sT1)}
    s_lshl_b32 {s(sT1)}, {s(sCB)}, 7
    s_lshl_b32 {s(sT2)}, {s(sA)}, 10
    s_add_u32 {s(sT1)}, {s(sT1)}, {s(sT2)}
    s_cmp_eq_u32 {s(sA)}, 3
    s_cselect_b32 {s(sT1)}, 0x4000000, {s(sT1)}
    """)
    def pfA(): a(f"buffer_load_dword {v(vD)}, {v(vT[1])}, {s(rA,4)}, {s(sT1)} offen{PFS}"); vm.op("pf")
    def pfB(): a(f"buffer_load_dword {v(vD+1)}, {v(vT[0])}, {s(rB,4)}, {s(sT0)} offen{PFS}"); vm.op("pf")
    order = {0: "X A 0 B 1", 1: "X 0 A 1 B", 2: "A X 0 B 1", 3: "X A B 0 1", 4: "X 0 1 A B", 5: "A B X 0 1", 6: "X 0 1", 7: "X 0 1 A"}[opt("pford", 7)]
    for o in order.split():
        if o == "X": a("s_barrier")
        elif o == "A": pfA()
        elif o == "B": pfB()
        else: dma(int(o))
    def poll(setup, load, nl):
        L = a.label("X_poll"); D = a.label("X_polld")
        a(setup)
        a(f"s_mov_b32 {s(sIt)}, 0\ns_mov_b64 exec, 255")
        if nl == 32: a("s_mov_b32 exec_lo, -1")
        a(f"""
        {L}:
        {load}
        s_add_u32 {s(sIt)}, {s(sIt)}, 1
        s_waitcnt vmcnt(0)
        v_cmp_ne_u64 vcc, {s(sN,2)}, {v(vD,2)}
        s_cbranch_vccz {D}
        s_sleep {opt("pollsleep", 2)}
        s_cmp_lt_u32 {s(sIt)}, 0x20000
        s_cbranch_scc1 {L}
        {D}:
        s_mov_b64 exec, -1
        """)
        vm.q = []
    def setflag(base, sline, lineshift, sslot, nl, allw=False):
        nf = a.label("X_noflag")
        if not allw: a(f"s_cmp_lg_u32 {s(sA)}, 0\ns_cbranch_scc1 {nf}")
        a(f"""
        s_lshl_b32 {s(sT0)}, {s(sline)}, {lineshift + 8}
        s_lshl_b32 {s(sT1)}, {s(sslot)}, 3
        s_add_u32 {s(sT0)}, {s(sT0)}, {s(sT1)}
        s_add_u32 {s(sT0)}, {s(sT0)}, {base}
        v_lshlrev_b32 {v(vT[0])}, 8, {v(vL)}
        v_mov_b64 {v(vD+2,2)}, {s(sN,2)}
        s_mov_b64 exec, 255
        """)
        if nl == 32: a("s_mov_b32 exec_lo, -1")
        a(f"""
        buffer_store_dwordx2 {v(vD+2,2)}, {v(vT[0])}, {s(rWS,4)}, {s(sT0)} offen{SC}
        s_mov_b64 exec, -1
        {nf}:
        """)
    for c in range(16):
        vm.wait(("c", c))
        if c >= 5: pf.stamp(c - 4, "fine")
        a("s_barrier")
        if c == 0: pf.stamp(4)
        if c == 8: pf.stamp(5)
        sched = {0: [2, 3]}
        for k in range(4, 16): sched[k - 3] = [k]
        if opt("dsched", 0) == 1:
            sched[9] = []; sched[10] = [12]; sched[11] = [13, 14]
        if opt("dsched", 0) == 2:
            sched[9] = []; sched[10] = []; sched[11] = [12, 13, 14]
        for k in sched.get(c, []): dma(k)
        if opt("pfsplit", 0):
            if "B" not in order and 0 <= c - opt("pfb", 1) < 4:
                k = c - opt("pfb", 1)
                a(f"s_mov_b32 exec_lo, {[0xffff, 0xffff0000, 0, 0][k]}\ns_mov_b32 exec_hi, {[0, 0, 0xffff, 0xffff0000][k]}")
                pfB(); a("s_mov_b64 exec, -1")
        elif c == opt("pfb", 4) and "B" not in order: pfB()
        if c == opt("pfo", 7):
            rL = G["rL"]
            a.c("L2 warm-up of the Wo column block (1/8 share)")
            a(f"""
            s_mov_b32 {s(rL)}, s8
            s_mov_b32 {s(rL+1)}, s9
            s_mov_b32 {s(rL+2)}, {512*1024}
            s_mov_b32 {s(rL+3)}, 0x00020000
            s_lshl_b32 {s(sT0)}, {s(sI8)}, 6
            s_lshl_b32 {s(sT1)}, {s(sA)}, 4
            s_add_u32 {s(sT0)}, {s(sT0)}, {s(sT1)}
            v_and_b32 {v(vT[1])}, 15, {v(vL)}
            v_add_u32 {v(vT[1])}, {s(sT0)}, {v(vT[1])}
            v_lshlrev_b32 {v(vT[1])}, 10, {v(vT[1])}
            s_lshl_b32 {s(sT1)}, {s(sCB)}, 7
            buffer_load_dword {v(vT[5])}, {v(vT[1])}, {s(rL,4)}, {s(sT1)} offen
            """)
            vm.op("pf")
        if c == 10:
            a(f"s_load_dwordx2 {s(sN,2)}, s[22:23], 0")
        if c == 14:
            tk, tl = a.label("X_tok"), a.label("X_tokl")
            a(f"""
            s_waitcnt lgkmcnt(0)
            s_cmp_lg_u32 {s(sN)}, 0
            s_cbranch_scc1 {tk}
            s_mov_b32 {s(sIt)}, 0
            v_mov_b32 {v(vT[4])}, 0
            {tl}:
            global_load_dwordx2 {v(vD,2)}, {v(vT[4])}, s[22:23]{SC}
            s_add_u32 {s(sIt)}, {s(sIt)}, 1
            s_waitcnt vmcnt(0)
            v_readfirstlane_b32 {s(sN)}, {v(vD)}
            v_readfirstlane_b32 {s(sN+1)}, {v(vD+1)}
            s_cmp_lg_u32 {s(sN)}, 0
            s_cbranch_scc1 {tk}
            s_sleep 2
            s_cmp_lt_u32 {s(sIt)}, 0x20000
            s_cbranch_scc1 {tl}
            {tk}:
            """)
    pf.stamp(1)
    qset = f"""
        v_and_b32 {v(vT[0])}, 31, {v(vL)}
        v_lshlrev_b32 {v(vT[0])}, 3, {v(vT[0])}
        """
    qld = f"buffer_load_dwordx2 {v(vD,2)}, {v(vT[0])}, {s(rWS,4)}, {s(sLQ)} offen{SC}"
    a(qset)
    vWo = [vWq[0], vWq[1]]
    a(f"""
    s_mov_b32 {s(rB)}, s8
    s_mov_b32 {s(rB+1)}, s9
    s_mov_b32 {s(rB+2)}, {512*1024}
    v_lshrrev_b32 {v(vT[4])}, 3, {v(vL)}
    v_bfe_u32 {v(vT[1])}, {v(vL)}, 4, 1
    v_lshlrev_b32 {v(vT[1])}, 2, {v(vT[1])}
    v_and_b32 {v(vT[2])}, 7, {v(vL)}
    v_xor_b32 {v(vT[1])}, {v(vT[1])}, {v(vT[2])}
    v_lshlrev_b32 {v(vT[1])}, 4, {v(vT[1])}
    v_lshl_add_u32 {v(vWo[0])}, {v(vT[4])}, 10, {v(vT[1])}
    v_add_u32 {v(vWo[1])}, {8*1024 - 1024}, {v(vWo[0])}
    s_lshl_b32 {s(sT0)}, {s(sA)}, 17
    s_lshl_b32 {s(sT1)}, {s(sCB)}, 7
    s_add_u32 {s(sT0)}, {s(sT0)}, {s(sT1)}
    s_and_b32 {s(sT1)}, {s(sA)}, 1
    s_lshl_b32 {s(sT1)}, {s(sT1)}, 14
    s_lshr_b32 {s(sT2)}, {s(sA)}, 1
    s_lshl_b32 {s(sT2)}, {s(sT2)}, 16
    s_add_u32 {s(sT1)}, {s(sT1)}, {s(sT2)}
    s_add_u32 {s(sT1)}, {s(sT1)}, 16384
    """)
    a("s_barrier")
    pf.stamp(6)
    a.c("Wo column block -> the K/V slots that are filled last: rows 0..255 at [16K,48K), rows 256..511 at [80K,112K)")
    for i in range(8):
        a(f"""
        s_add_u32 m0, {s(sT1)}, {i*2048}
        s_add_u32 {s(sT2)}, {s(sT0)}, {i*16384}
        buffer_load_dwordx4 {v(vWo[0])}, {s(rB,4)}, {s(sT2)} offen lds
        buffer_load_dwordx4 {v(vWo[1])}, {s(rB,4)}, {s(sT2)} offen offset:1024 lds
        """)
    a(qld)
    a("s_waitcnt vmcnt(1)\ns_barrier\ns_waitcnt vmcnt(0)")
    vm.q = []
    qok = a.label("X_qok")
    a(f"v_cmp_ne_u64 vcc, {s(sN,2)}, {v(vD,2)}\ns_cbranch_vccz {qok}")
    poll("", qld, 32)
    a(f"{qok}:")
    pf.stamp(2)
    a.c("Q tiles -> staging, K/V -> LDS; wave a: matrix (a>>1), tiles 8*(a&1).. of every group of 16")
    a(f"""
    s_lshl_b32 {s(sT0)}, {s(sH)}, 16
    s_lshl_b32 {s(sT1)}, {s(sR8)}, 13
    s_add_u32 {s(sT1)}, {s(sT1)}, {s(sT0)}
    s_lshl_b32 {s(sT2)}, {s(sA)}, 11
    s_add_u32 {s(sT1)}, {s(sT1)}, {s(sT2)}
    s_add_u32 {s(sT1)}, {s(sT1)}, {WS_Q}
    s_add_u32 m0, {s(sT2)}, {STG}
    s_nop 0
    buffer_load_dwordx4 {v(vL16)}, {s(rWS,4)}, {s(sT1)} offen{SCL} lds
    buffer_load_dwordx4 {v(vL16)}, {s(rWS,4)}, {s(sT1)} offen offset:1024{SCL} lds
    s_lshr_b32 {s(sT1)}, {s(sA)}, 1
    s_lshl_b32 {s(sT2)}, {s(sT1)}, 21
    s_add_u32 {s(sT0)}, {s(sT0)}, {s(sT2)}
    s_add_u32 {s(sT0)}, {s(sT0)}, {WS_K}
    s_lshl_b32 {s(sT1)}, {s(sT1)}, 16
    s_and_b32 {s(sT2)}, {s(sA)}, 1
    s_lshl_b32 {s(sT2)}, {s(sT2)}, 13
    s_add_u32 {s(sT0)}, {s(sT0)}, {s(sT2)}
    s_add_u32 {s(sT1)}, {s(sT1)}, {s(sT2)}
    """)
    vm.op("s1", 2)
    for st in range(4):
        for hb in range(2):
            a(f"s_add_u32 m0, {s(sT1)}, {st*16384 + hb*4096}\ns_add_u32 {s(sT2)}, {s(sT0)}, {st*16384 + hb*4096}")
            for i in range(4):
                a(f"buffer_load_dwordx4 {v(vL16)}, {s(rWS,4)}, {s(sT2)} offen offset:{i*1024}{SCL} lds")
            vm.op("s1" if st == 0 else "s2", 4)
        if st == 0 and opt("early1", 1):
            vm.wait("s1"); a("s_barrier"); pf.stamp(8)
    if not opt("early1", 1):
        vm.wait("s1"); a("s_barrier"); pf.stamp(8)
    rL = G["rL"]
    HS = V.alloc(24, 4)
    a.c("all-ones marker into this workgroup's own O slots; H tile SRDs")
    a(f"""
    s_lshl_b32 {s(sT0)}, {s(sR8)}, 3
    s_lshl_b32 {s(sT1)}, {s(sA)}, 1
    s_add_u32 {s(sT0)}, {s(sT0)}, {s(sT1)}
    s_mul_i32 {s(sT0)}, {s(sT0)}, {A3_TSTRIDE}
    s_lshl_b32 {s(sT1)}, {s(sH)}, 10
    s_add_u32 {s(sT0)}, {s(sT0)}, {s(sT1)}
    s_add_u32 {s(sU[5])}, {s(sT0)}, {WS_A3}
    s_add_u32 {s(sU[6])}, {s(sU[5])}, {A3_TSTRIDE}
    """)
    for i in range(4): a(f"v_mov_b32 {v(vD+i)}, -1")
    a(f"""
    buffer_store_dwordx4 {v(vD,4)}, {v(vL16)}, {s(rWS,4)}, {s(sU[5])} offen{SC}
    buffer_store_dwordx4 {v(vD,4)}, {v(vL16)}, {s(rWS,4)}, {s(sU[6])} offen{SC}
    s_mul_i32 {s(sT1)}, {s(sRB)}, {2*A3_TSTRIDE}
    s_add_u32 {s(sT1)}, {s(sT1)}, {WS_A3 + 32*1024}
    s_add_u32 {s(rC)}, {s(rWS)}, {s(sT1)}
    s_addc_u32 {s(rC+1)}, {s(rWS+1)}, 0
    s_mov_b32 {s(rC+2)}, {86*1024}
    s_add_u32 {s(rL)}, {s(rC)}, {A3_TSTRIDE}
    s_addc_u32 {s(rL+1)}, {s(rC+1)}, 0
    s_mov_b32 {s(rL+2)}, {86*1024}
    s_mov_b32 {s(rL+3)}, 0x00020000
    """)
    vm.op("sent", 2)
    a.c("H tiles: staging -> global; wave a: token tile a&1, column steps 6*(a>>1)..")
    a(f"""
    s_and_b32 {s(sT0)}, {s(sA)}, 1
    s_mul_i32 {s(sT1)}, {s(sT0)}, 12288
    s_lshr_b32 {s(sT2)}, {s(sA)}, 1
    s_mul_i32 {s(sT2)}, {s(sT2)}, 6144
    s_add_u32 {s(sT1)}, {s(sT1)}, {s(sT2)}
    s_add_u32 {s(sT1)}, {s(sT1)}, {STG + 8192}
    v_add_u32 {v(vT[0])}, {s(sT1)}, {v(vL16)}
    """)
    for i in range(6): a(f"ds_read_b128 {v(HS+4*i,4)}, {v(vT[0])} offset:{1024*i}")
    a(f"""
    s_mul_i32 {s(sT1)}, {s(sCB)}, 12288
    s_add_u32 {s(sT2)}, {s(sT2)}, {s(sT1)}
    s_mul_i32 {s(sT1)}, {s(sT0)}, {A3_TSTRIDE}
    s_add_u32 {s(rB)}, {s(rC)}, {s(sT1)}
    s_addc_u32 {s(rB+1)}, {s(rC+1)}, 0
    s_mov_b32 {s(rB+2)}, {86*1024}
    s_add_u32 {s(sT1)}, {s(sT2)}, 4096
    s_waitcnt lgkmcnt(0)
    """)
    for i in range(6):
        a(f"buffer_store_dwordx4 {v(HS+4*i,4)}, {v(vL16)}, {s(rB,4)}, {s(sT2 if i < 4 else sT1)} offen offset:{1024*(i%4)}{SC}")
    vm.op("hst", 6)
    a.c("L2 warm-up of W2 / Wo column block (1/8 share)")
    a(f"""
    s_mov_b32 {s(rA)}, s16
    s_mov_b32 {s(rA+1)}, s17
    s_mov_b32 {s(rA+2)}, {1376*1024}
    s_mul_i32 {s(sT0)}, {s(sI8)}, 172
    s_mul_i32 {s(sT1)}, {s(sA)}, 43
    s_add_u32 {s(sT0)}, {s(sT0)}, {s(sT1)}
    v_min_u32 {v(vT[0])}, 42, {v(vL)}
    v_add_u32 {v(vT[0])}, {s(sT0)}, {v(vT[0])}
    v_lshlrev_b32 {v(vT[0])}, 10, {v(vT[0])}
    s_lshl_b32 {s(sT1)}, {s(sCB)}, 7
    buffer_load_dword {v(vT[3])}, {v(vT[0])}, {s(rA,4)}, {s(sT1)} offen
    """)
    vm.op("pf", 1)
    vm.wait("s2", "sent")
    a("s_barrier")
    setflag(FLAG_O, sR8, 5, sH, 32)
    vm.wait("hst")
    a(f"s_lshl_b32 {s(sT3)}, {s(sCB)}, 2\ns_add_u32 {s(sT3)}, {s(sT3)}, {s(sA)}")
    setflag(FLAG_H, sRB, 3, sT3, 8, allw=True)
    pf.stamp(3)
    poll(f"v_lshlrev_b32 {v(vT[0])}, 3, {v(vL)}", f"buffer_load_dwordx2 {v(vD,2)}, {v(vT[0])}, {s(rWS,4)}, {s(sLH)} offen{SC}", 32)
    pf.stamp(7)
    ACC = [[V.alloc(16, 4), V.alloc(16, 4)], [V.alloc(16, 4), V.alloc(16, 4)]]
    HB = [V.alloc(8, 4) for _ in range(4)]; WB = [HS, HS + 8]
    vRa = vW1[0]; vRb = vW1[1]
    sHo, sWo, sSt, sNI = sU[1], sU[2], sU[3], sU[4]
    a.c("---------------- FFN2 in the shadow of attention")
    a(f"""
    s_mul_i32 {s(sHo)}, {s(sA)}, {24*1024}
    s_mul_i32 {s(sWo)}, {s(sA)}, {24*16*1024}
    s_lshl_b32 {s(sT2)}, {s(sCB)}, 7
    s_add_u32 {s(sWo)}, {s(sWo)}, {s(sT2)}
    s_lshl_b32 {s(sSt)}, {s(sA)}, 13
    s_add_u32 {s(sSt)}, {s(sSt)}, {STG}
    s_cmp_eq_u32 {s(sA)}, 3
    s_cselect_b32 {s(sNI)}, {min(4, opt("ffnit", 6))}, {opt("ffnit", 6)}
    v_lshrrev_b32 {v(vT[0])}, 5, {v(vL)}
    v_bfe_u32 {v(vT[1])}, {v(vL)}, 2, 2
    v_lshl_add_u32 {v(vT[1])}, {v(vT[0])}, 2, {v(vT[1])}
    v_lshlrev_b32 {v(vT[1])}, 7, {v(vT[1])}
    v_bfe_u32 {v(vT[0])}, {v(vL)}, 3, 1
    v_lshl_add_u32 {v(vT[1])}, {v(vT[0])}, 6, {v(vT[1])}
    v_bfe_u32 {v(vT[0])}, {v(vL)}, 4, 1
    v_lshl_add_u32 {v(vT[1])}, {v(vT[0])}, 5, {v(vT[1])}
    v_and_b32 {v(vT[0])}, 3, {v(vL)}
    v_lshl_add_u32 {v(vT[1])}, {v(vT[0])}, 3, {v(vT[1])}
    v_add_u32 {v(vRa)}, {s(sSt)}, {v(vT[1])}
    v_xor_b32 {v(vRb)}, 64, {v(vRa)}
    """)
    def f_issue(sl):
        a(f"""
        s_add_u32 m0, {s(sSt)}, {sl*2048}
        buffer_load_dwordx4 {v(HB[sl],4)}, {v(vL16)}, {s(rC,4)}, {s(sHo)} offen{SCL}
        buffer_load_dwordx4 {v(HB[sl]+4,4)}, {v(vL16)}, {s(rL,4)}, {s(sHo)} offen{SCL}
        buffer_load_dwordx4 {v(vWo[0])}, {s(rA,4)}, {s(sWo)} offen lds
        buffer_load_dwordx4 {v(vWo[1])}, {s(rA,4)}, {s(sWo)} offen offset:1024 lds
        s_add_u32 {s(sHo)}, {s(sHo)}, 1024
        s_add_u32 {s(sWo)}, {s(sWo)}, 16384
        """)
    for sl in range(3): f_issue(sl)
    for m in range(2):
        for n in range(2):
            for i in range(16): a(f"v_mov_b32 {v(ACC[m][n]+i)}, 0")
    FL = a.label("X_FFN2")
    a(f"s_mov_b32 {s(sIt)}, 0\n{FL}:")
    for sl in range(4):
        a("s_waitcnt vmcnt(8)")
        w = WB[sl % 2]
        for n, va in enumerate((vRa, vRb)):
            for j in range(2):
                a(f"ds_read_b64_tr_b16 {v(w+4*n+2*j,2)}, {v(va)} offset:{sl*2048 + j*1024}")
        f_issue((sl + 3) % 4)
        a("s_waitcnt lgkmcnt(0)")
        for m in range(2):
            for n in range(2):
                a(f"{MFMA} {v(ACC[m][n],16)}, {v(w+4*n,4)}, {v(HB[sl]+4*m,4)}, {v(ACC[m][n],16)}")
    a(f"""
    s_add_u32 {s(sIt)}, {s(sIt)}, 1
    s_cmp_lt_u32 {s(sIt)}, {s(sNI)}
    s_cbranch_scc1 {FL}
    """)
    a.c("every producer of this tile's O slots has put its markers in place")
    poll(f"v_lshlrev_b32 {v(vT[0])}, 3, {v(vL)}\ns_add_u32 {s(sT0)}, {s(sLH)}, 65536", f"buffer_load_dwordx2 {v(vD,2)}, {v(vT[0])}, {s(rWS,4)}, {s(sT0)} offen{SC}", 32)
    a(f"""
    s_lshl_b32 {s(sT1)}, {s(sA)}, 14
    s_add_u32 {s(sT2)}, {s(sT1)}, 65536
    v_add_u32 {v(vT[0])}, {s(sT2)}, {v(vL16)}
    s_lshl_b32 {s(sT1)}, {s(sA)}, 11
    v_add_u32 {v(vT[1])}, {s(sT1)}, {v(vL16)}
    s_setprio 3
    """)
    pf.stamp(9)
    a("s_barrier\ns_barrier")
    a.c("publish this workgroup's O fragments")
    a(f"""
    ds_read_b128 {v(HB[0],4)}, {v(vT[1])}
    ds_read_b128 {v(HB[0]+4,4)}, {v(vT[1])} offset:1024
    s_waitcnt lgkmcnt(1)
    buffer_store_dwordx4 {v(HB[0],4)}, {v(vL16)}, {s(rWS,4)}, {s(sU[5])} offen{SC}
    s_waitcnt lgkmcnt(0)
    buffer_store_dwordx4 {v(HB[0]+4,4)}, {v(vL16)}, {s(rWS,4)}, {s(sU[6])} offen{SC}
    """)
    a.c("FFN2 partials -> [64K,128K)")
    for m in range(2):
        for n in range(2):
            for gq in range(4):
                a(f"ds_write_b128 {v(vT[0])}, {v(ACC[m][n]+4*gq,4)} offset:{m*8192 + n*4096 + gq*1024}")
    a("s_waitcnt lgkmcnt(0)\ns_barrier")
    pf.stamp(10)
    pf.finish(vT[0], vT[1], sW)
    return V.hi

def main():
    head = open("cdna_kernels/" + NAME + ".s.ref").read().split("\n")
    hdr = [l for l in head if l.startswith(";") and "@launch" not in l and "Override launch" not in l and "grid=ceil" not in l]
    a = Asm()
    out = "\n".join(hdr) + "\n; @launch grid=(256,1,1) block=(768,1,1) lds=163840\n"
    out += '.amdgcn_target "amdgcn-amd-amdhsa--gfx950"\n.text\n'
    vh, sh = gen(a)
    print("vgpr", vh, "sgpr", sh, file=sys.stderr)
    out += a.text() + '.section .rodata,"a"\n.p2align 6\n' + kernel_desc(KNAME, vh, sh)
    args = [x for x in sys.argv[1:] if x.endswith(".s")]
    dst = args[0] if args else "cdna_kernels/" + NAME + ".s"
    open(dst, "w").write(out)

main()
```

```python
import sys, struct
from asmlib import *

NAME = "parallel_sum__softmax_full_mha__dense_activation_gelu__prompt"
KNAME = NAME + "_kernel"
def opt(name, default):
    for x in sys.argv:
        if x.startswith(name + "="): return int(x.split("=")[1], 0)
    return default
WS_BASE = opt("wsbase", 0)
WS_Q, WS_K, WS_V, WS_A3 = WS_BASE, WS_BASE + 0x200000, WS_BASE + 0x400000, WS_BASE + 0x600000
A3_STEPS = 118
A3_TSTRIDE = A3_STEPS * 1024
WS_FLAG = WS_A3 + 64 * A3_TSTRIDE
FLAG_Q, FLAG_H, FLAG_O = WS_FLAG, WS_FLAG + 65536, WS_FLAG + 131072
WS_EPOCH = WS_FLAG + 196608
WS_END = WS_EPOCH + 256
LOG2E = 1.4426950408889634
PROF = "prof" in sys.argv
WS_PROF = 0x2000000
def f32(x): return "0x%08x" % struct.unpack("<I", struct.pack("<f", x))[0]
SC = " sc1"
SCQ = {0: " sc1", 1: "", 2: " nt", 3: " sc0 sc1", 4: " sc1 nt"}[opt("scq", 0)]
SCL = " sc1" if opt("scl", 1) else ""
XNT = " nt" if opt("xnt",0) else ""
WNT = " nt" if opt("wnt",0) else ""

class Cnt:
    def __init__(self, a, name, maxv):
        self.a, self.name, self.maxv, self.q = a, name, maxv, []
    def op(self, tag, n=1):
        self.q += [tag] * n
    def wait(self, *tags):
        idx = max((i for i, t in enumerate(self.q) if t in tags), default=-1)
        if idx < 0: return
        n = len(self.q) - 1 - idx
        self.a(f"s_waitcnt {self.name}({min(n, self.maxv)})")
        self.q = self.q[idx + 1:] if n <= self.maxv else self.q[len(self.q) - self.maxv:]
    def all(self):
        self.a(f"s_waitcnt {self.name}(0)")
        self.q = []

class Prof:
    def __init__(self, a, S, n):
        self.a, self.n = a, n
        if PROF:
            self.t = [S.alloc(2, 2) for _ in range(n)]
            self.rt = [S.alloc(2, 2) for _ in range(2)]
            self.r = S.alloc(4, 4)
    def start(self):
        if PROF:
            self.a(f"s_memrealtime {s(self.rt[0],2)}")
            for t in self.t: self.a(f"s_mov_b64 {s(t,2)}, 0")
            self.stamp(0)
    def stamp(self, i, kind="std"):
        mode = "fine" if "fine" in sys.argv else ("early" if "early" in sys.argv else ("tail" if "tail" in sys.argv else "std"))
        if PROF and (kind == mode or i in (0, self.n - 1)):
            self.a(f"s_memtime {s(self.t[i],2)}")
    def finish(self, vt, vt2, wave_s):
        if not PROF: return
        a = self.a
        a("s_waitcnt vmcnt(0)")
        self.stamp(self.n - 1)
        a(f"s_memrealtime {s(self.rt[1],2)}\ns_waitcnt lgkmcnt(0)")
        a(f"s_load_dwordx2 {s(self.r,2)}, s[0:1], 80\ns_waitcnt lgkmcnt(0)")
        a(f"s_mov_b32 {s(self.r+2)}, 0x4000000\ns_mov_b32 {s(self.r+3)}, 0x00020000")
        o = self.rt[0] + 1
        a(f"s_lshl_b32 {s(o)}, s2, 4\ns_add_u32 {s(o)}, {s(o)}, {s(wave_s)}\ns_lshl_b32 {s(o)}, {s(o)}, 6\ns_add_u32 {s(o)}, {s(o)}, {WS_PROF}")
        a(f"s_mov_b64 exec, 1\nv_mov_b32 {v(vt)}, {s(o)}")
        for j, r in enumerate([self.rt[0], self.rt[1]] + self.t):
            a(f"v_mov_b32 {v(vt2)}, {s(r)}\nbuffer_store_dword {v(vt2)}, {v(vt)}, {s(self.r,4)}, 0 offen offset:{4*j}\ns_nop 1")

def srd(a, d, lo, hi, size):
    a(f"s_mov_b32 {s(d)}, {lo}\ns_mov_b32 {s(d+1)}, {hi}\ns_mov_b32 {s(d+2)}, {size}\ns_mov_b32 {s(d+3)}, 0x00020000")

MFMA = "v_mfma_f32_32x32x16_bf16"
SMF = "v_smfmac_f32_32x32x32_bf16"
RING = 65536; SLOT = 24576
ROT = 2
DPOS = opt("dpos", 8)
SEQ = [("c", k) for k in range(8)]
SEQ = SEQ[:DPOS] + [("d", 0)] + SEQ[DPOS:] + [("d", k) for k in range(1, 8)]
if DPOS >= 8: SEQ = [("c", k) for k in range(8)] + [("d", k) for k in range(8)]
LASTC = max(p for p, it in enumerate(SEQ) if it[0] == "c")
FIRSTD = min(p for p, it in enumerate(SEQ) if it[0] == "d")
def plan():
    slot, issue = {}, {}
    free = {0: -1, 1: -1, 2: -1, 3: -1}
    order = list(range(16))
    if DPOS < 8:
        order = [0, 1, 2, FIRSTD] + [p for p in range(3, 16) if p != FIRSTD]
    for n, p in enumerate(order):
        sl = min(free, key=lambda k: (free[k], k))
        slot[p] = sl
        issue[p] = free[sl] if n >= opt("ninit", 2) else -2
        if issue[p] == -1: issue[p] = 0
        assert issue[p] < p, (p, issue[p])
        free[sl] = p + 1
    return slot, issue, order
SLOTOF, ISSUE, IORDER = plan()
BASE = 40960
STG = 131072
QFLAG_CHUNK = opt("qflag", 12)

def gen(a):
    S = Regs("s", 24, 102)
    kernel_header(a, KNAME)
    END = a.label("END"); AUX = a.label("AUX")
    pf = Prof(a, S, 14 if not opt("lin", 0) else 14)
    sW, sRB, sCB, sH, sR8, sT0, sT1, sT2, sT3, sIt = [S.alloc() for _ in range(10)]
    rWS = S.alloc(4, 4); rA = S.alloc(4, 4); rB = S.alloc(4, 4); rC = S.alloc(4, 4)
    rL = pf.r if PROF else S.alloc(4, 4)
    sU = [S.alloc() for _ in range(10)]
    sMask = S.alloc(2, 2); sK = S.alloc(2, 2)
    a(f"""
    s_cmp_ge_u32 s2, 256
    s_cbranch_scc1 {END}
    """)
    pf.start()
    a(f"""
    s_load_dwordx4 s[4:7], s[0:1], 0
    s_load_dwordx2 s[8:9], s[0:1], 16
    s_load_dwordx8 s[12:19], s[0:1], 32
    s_load_dwordx4 s[20:23], s[0:1], 64
    s_load_dwordx2 {s(rWS,2)}, s[0:1], 80
    v_lshrrev_b32 v1, 6, v0
    v_and_b32 v2, 63, v0
    v_readfirstlane_b32 {s(sW)}, v1
    s_and_b32 {s(sT0)}, s2, 7
    s_lshr_b32 {s(sT1)}, s2, 3
    s_and_b32 {s(sRB)}, {s(sT0)}, 3
    s_lshl_b32 {s(sRB)}, {s(sRB)}, 3
    s_and_b32 {s(sT2)}, {s(sT1)}, 7
    s_add_u32 {s(sRB)}, {s(sRB)}, {s(sT2)}
    s_and_b32 {s(sCB)}, {s(sT0)}, 4
    s_lshr_b32 {s(sT2)}, {s(sT1)}, 3
    s_add_u32 {s(sCB)}, {s(sCB)}, {s(sT2)}
    s_lshl_b32 {s(sH)}, {s(sT0)}, 2
    s_and_b32 {s(sT2)}, {s(sT1)}, 3
    s_add_u32 {s(sH)}, {s(sH)}, {s(sT2)}
    s_lshr_b32 {s(sR8)}, {s(sT1)}, 2
    s_mov_b32 {s(rWS+2)}, {WS_END}
    s_mov_b32 {s(rWS+3)}, 0x00020000
    """)
    if opt("cpf", 1):
        a.c("pull this kernel's code into L2 (speed only): every wave touches a few lines")
        NL = opt("cpfl", 160)
        a(f"""
        s_getpc_b64 s[10:11]
        s_mul_i32 {s(sT2)}, {s(sT1)}, 12
        s_add_u32 {s(sT2)}, {s(sT2)}, {s(sW)}
        s_mul_i32 {s(sT3)}, {s(sT2)}, {(65536 + NL - 1) // NL}
        s_lshr_b32 {s(sT3)}, {s(sT3)}, 16
        s_mul_i32 {s(sT3)}, {s(sT3)}, {NL}
        s_sub_u32 {s(sT2)}, {s(sT2)}, {s(sT3)}
        s_lshl_b32 {s(sT2)}, {s(sT2)}, 7
        v_mov_b32 v1, {s(sT2)}
        s_mov_b64 exec, 1
        global_load_dword v1, v1, s[10:11]
        s_mov_b64 exec, -1
        """)
    a(f"""
    s_cmp_ge_u32 {s(sW)}, 8
    s_cbranch_scc1 {AUX}
    """)
    vmax = 0
    vmax = max(vmax, gen_main(a, locals()))
    a(f"{AUX}:")
    vmax = max(vmax, gen_aux(a, locals()))
    a(f"{END}:\ns_endpgm")
    a(".fill 512, 4, 0xbf810000")
    return vmax, S.hi

def gen_main(a, G):
    g = lambda n: G[n]
    pf, sW, sRB, sCB, sH, sR8, sT0, sT1, sT2, sT3, sIt = [g(n) for n in "pf sW sRB sCB sH sR8 sT0 sT1 sT2 sT3 sIt".split()]
    rWS, rA, rB, rC, sU, sMask, sK, END = [g(n) for n in "rWS rA rB rC sU sMask sK END".split()]
    V = Regs("v", 3, 168)
    vL = 2
    vm = Cnt(a, "vmcnt", 63); lg = Cnt(a, "lgkmcnt", 15)
    vT = [V.alloc() for _ in range(8)]
    vBias = [V.alloc(4, 4), V.alloc(4, 4)]
    vOneB = V.alloc(4, 4)
    XA = [V.alloc() for _ in range(8)]; WA = [V.alloc(), V.alloc()]
    F = [V.alloc(12, 4) for _ in range(4)]
    ACC1 = [V.alloc(16, 4), V.alloc(16, 4)]; ACC2 = [V.alloc(16, 4), V.alloc(16, 4)]
    P = V.alloc(16, 4)
    vDum = V.alloc(4, 2)
    X = ACC1[0]
    sMT, sNH, sHI = sU[0], sU[1], sU[2]
    a.c("---------------- main waves: x rows -> LayerNorm -> xn in LDS")
    a(f"""
    v_lshrrev_b32 {v(vT[0])}, 3, {v(vL)}
    v_and_b32 {v(vT[1])}, 7, {v(vL)}
    s_lshl_b32 {s(sT0)}, {s(sRB)}, 6
    s_lshl_b32 {s(sT1)}, {s(sW)}, 3
    s_add_u32 {s(sT0)}, {s(sT0)}, {s(sT1)}
    s_lshl_b32 {s(sT0)}, {s(sT0)}, 10
    v_lshlrev_b32 {v(vT[2])}, 10, {v(vT[0])}
    v_lshl_add_u32 {v(vT[2])}, {v(vT[1])}, 4, {v(vT[2])}
    s_and_b32 {s(sMT)}, {s(sW)}, 1
    s_lshr_b32 {s(sNH)}, {s(sW)}, 1
    s_and_b32 {s(sNH)}, {s(sNH)}, 1
    s_lshr_b32 {s(sHI)}, {s(sW)}, 2
    s_mov_b32 {s(rA+2)}, {2048*1024}
    s_mov_b32 {s(rA+3)}, 0x00020000
    s_mov_b32 {s(rB+2)}, 2752
    s_mov_b32 {s(rB+3)}, 0x00020000
    """)
    pf.stamp(1, "early")
    a(f"""
    s_waitcnt lgkmcnt(0)
    s_mov_b32 {s(rA)}, s4
    s_mov_b32 {s(rA+1)}, s5
    s_mov_b32 {s(rB)}, s14
    s_mov_b32 {s(rB+1)}, s15
    """)
    if opt("tlb", 0):
        a.c("one gather that touches every buffer, so that all address translations are fetched together (speed only)")
        TA = P + 12
        a(f"v_mov_b64 {v(TA,2)}, s[4:5]")
        for i, pr in enumerate(["s[6:7]", "s[12:13]", "s[14:15]", s(rWS,2), "s[22:23]", "s[16:17]", "s[8:9]", "s[18:19]", "s[20:21]"]):
            a(f"s_mov_b64 exec, {2 << i}\nv_mov_b64 {v(TA,2)}, {pr}")
        a(f"s_mov_b64 exec, 0x3ff\nglobal_load_dword {v(vDum)}, {v(TA,2)}, off\ns_mov_b64 exec, -1"); vm.op("tlb")
    pf.stamp(2, "early")
    for i in range(8):
        a(f"buffer_load_dwordx4 {v(X+4*i,4)}, {v(vT[2])}, {s(rA,4)}, {s(sT0)} offen offset:{128*i}{XNT}"); vm.op(f"x{i}")
    pf.stamp(3, "early")
    a.c("bias fragments: column = 192cb + 64g + 32nh + l%32 (g = 0,1 for waves 0-3, g = 2 for waves 4-7); upper half-wave reads out of range -> 0")
    a(f"""
    s_mul_i32 {s(sT1)}, {s(sCB)}, 192
    s_lshl_b32 {s(sT2)}, {s(sHI)}, 7
    s_add_u32 {s(sT1)}, {s(sT1)}, {s(sT2)}
    s_lshl_b32 {s(sT2)}, {s(sNH)}, 5
    s_add_u32 {s(sU[3])}, {s(sT1)}, {s(sT2)}
    v_and_b32 {v(vT[3])}, 31, {v(vL)}
    v_and_b32 {v(vT[4])}, 32, {v(vL)}
    v_lshl_add_u32 {v(vT[4])}, {v(vT[4])}, 16, {v(vT[3])}
    v_add_u32 {v(vT[4])}, {s(sU[3])}, {v(vT[4])}
    v_lshlrev_b32 {v(vT[4])}, 1, {v(vT[4])}
    buffer_load_ushort {v(vBias[0])}, {v(vT[4])}, {s(rB,4)}, 0 offen
    buffer_load_ushort {v(vBias[1])}, {v(vT[4])}, {s(rB,4)}, 0 offen offset:128
    """)
    vm.op("b", 2)
    pf.stamp(4, "early")
    a("s_barrier")
    pf.stamp(5, "early")
    sColF = sU[3]
    a.c("LDS addresses for the GEMM phases")
    a(f"""
    v_lshrrev_b32 {v(vT[4])}, 5, {v(vL)}
    v_and_b32 {v(vT[5])}, 15, {v(vL)}
    v_xor_b32 {v(vT[6])}, {v(vT[5])}, {v(vT[4])}
    s_lshl_b32 {s(sT1)}, {s(sMT)}, 15
    v_lshl_add_u32 {v(vT[7])}, {v(vT[3])}, 10, {s(sT1)}
    v_lshl_add_u32 {v(XA[0])}, {v(vT[6])}, 4, {v(vT[7])}
    """)
    for q in range(1, 4 if ROT else 8):
        a(f"v_xor_b32 {v(XA[q])}, {32*q}, {v(XA[0])}")
    sKc = sU[9]
    if ROT:
        a.c("k-chunks are visited in an order rotated by workgroup, so that neighbours fetch different weight rows first")
        a(f"s_and_b32 {s(sKc)}, {s(sRB)}, 7\ns_lshl_b32 {s(sKc)}, {s(sKc)}, 7")
    a(f"""
    v_lshrrev_b32 {v(vT[5])}, 2, {v(vT[5])}
    v_lshl_add_u32 {v(vT[5])}, {v(vT[4])}, 3, {v(vT[5])}
    v_lshlrev_b32 {v(vT[5])}, 7, {v(vT[5])}
    v_and_b32 {v(vT[6])}, 1, {v(vT[0])}
    v_xor_b32 {v(vT[6])}, {s(sNH)}, {v(vT[6])}
    v_lshl_add_u32 {v(vT[5])}, {v(vT[6])}, 6, {v(vT[5])}
    v_bfe_u32 {v(vT[6])}, {v(vL)}, 4, 1
    v_lshl_add_u32 {v(vT[5])}, {v(vT[6])}, 5, {v(vT[5])}
    v_and_b32 {v(vT[6])}, 3, {v(vL)}
    v_lshl_add_u32 {v(vT[5])}, {v(vT[6])}, 3, {v(vT[5])}
    s_lshl_b32 {s(sT1)}, {s(sHI)}, 14
    s_add_u32 {s(sT1)}, {s(sT1)}, {RING}
    v_add_u32 {v(WA[0])}, {s(sT1)}, {v(vT[5])}
    v_add_u32 {v(WA[1])}, {2*SLOT}, {v(WA[0])}
    v_mov_b32 {v(vOneB)}, 0x3f80
    """)
    for r in (vBias[0], vBias[1], vOneB):
        for i in range(1, 4): a(f"v_mov_b32 {v(r+i)}, 0")
    a.c("xn write addresses: row = 8w + l/8")
    vWr = [vT[3], vT[4]]; vS = [F[0], F[0]+1, F[0]+2, F[0]+3]; vOnes = vT[5]; RN = F[0] + 4
    a(f"""
    s_lshl_b32 {s(sT1)}, {s(sW)}, 3
    v_add_u32 {v(vT[6])}, {s(sT1)}, {v(vT[0])}
    v_and_b32 {v(vT[7])}, 15, {v(vT[6])}
    v_xor_b32 {v(vT[7])}, {v(vT[7])}, {v(vT[1])}
    v_lshlrev_b32 {v(vT[7])}, 4, {v(vT[7])}
    v_lshl_add_u32 {v(vWr[0])}, {v(vT[6])}, 10, {v(vT[7])}
    v_xor_b32 {v(vWr[1])}, 128, {v(vWr[0])}
    v_mov_b32 {v(vOnes)}, 0x3f803f80
    """)
    for i in range(4): a(f"v_mov_b32 {v(vS[i])}, 0")
    pf.stamp(1); pf.stamp(6, "early")
    for i in range(8):
        vm.wait(f"x{i}")
        if i == 0: pf.stamp(7, "early")
        if i == 7: pf.stamp(8, "early")
        for d in range(4):
            r = X + 4*i + d
            a(f"v_dot2_f32_bf16 {v(vS[d%2])}, {v(r)}, {v(vOnes)}, {v(vS[d%2])}")
            a(f"v_dot2_f32_bf16 {v(vS[2+d%2])}, {v(r)}, {v(r)}, {v(vS[2+d%2])}")
    pf.stamp(2)
    a(f"""
    s_nop 2
    v_add_f32 {v(vS[0])}, {v(vS[0])}, {v(vS[1])}
    v_add_f32 {v(vS[2])}, {v(vS[2])}, {v(vS[3])}
    """)
    for m in ("quad_perm:[1,0,3,2]", "quad_perm:[2,3,0,1]", "row_half_mirror"):
        a(f"""
        s_nop 1
        v_add_f32_dpp {v(vS[0])}, {v(vS[0])}, {v(vS[0])} {m} row_mask:0xf bank_mask:0xf
        v_add_f32_dpp {v(vS[2])}, {v(vS[2])}, {v(vS[2])} {m} row_mask:0xf bank_mask:0xf
        """)
    vMean, vVar = vS[0], vS[2]
    a(f"""
    v_mul_f32 {v(vMean)}, {f32(1/512)}, {v(vMean)}
    v_mul_f32 {v(vVar)}, {f32(1/512)}, {v(vVar)}
    v_fma_f32 {v(vVar)}, -{v(vMean)}, {v(vMean)}, {v(vVar)}
    v_max_f32 {v(vVar)}, 0, {v(vVar)}
    v_cvt_pk_bf16_f32 {v(vMean)}, -{v(vMean)}, {v(vVar)}
    v_and_b32 {v(vVar)}, 0xffff0000, {v(vMean)}
    v_add_f32 {v(vVar)}, {f32(1e-5)}, {v(vVar)}
    v_cvt_pk_bf16_f32 {v(vVar)}, {v(vVar)}, {v(vVar)}
    v_and_b32 {v(vVar)}, 0xffff0000, {v(vVar)}
    v_sqrt_f32 {v(vVar)}, {v(vVar)}
    v_lshlrev_b32 {v(vMean)}, 16, {v(vMean)}
    v_cvt_pk_bf16_f32 {v(vVar)}, {v(vVar)}, {v(vVar)}
    v_and_b32 {v(vVar)}, 0xffff0000, {v(vVar)}
    v_rcp_f32 {v(RN)}, {v(vVar)}
    s_nop 0
    v_mul_f32 {v(RN+1)}, {v(vMean)}, {v(RN)}
    """)
    TT = F[1]
    for i in range(8):
        for d in range(4):
            r = X + 4*i + d
            a(f"v_lshlrev_b32 {v(TT+2*d)}, 16, {v(r)}\nv_and_b32 {v(TT+2*d+1)}, 0xffff0000, {v(r)}")
        for d in range(4):
            a(f"v_pk_fma_f32 {v(TT+2*d,2)}, {v(TT+2*d,2)}, {v(RN,2)}, {v(RN,2)} op_sel:[0,0,1] op_sel_hi:[1,0,1]")
        for d in range(4):
            a(f"v_cvt_pk_bf16_f32 {v(X+4*i+d)}, {v(TT+2*d)}, {v(TT+2*d+1)}")
        a(f"ds_write_b128 {v(vWr[i%2])}, {v(X+4*i,4)} offset:{(i//2)*256}"); lg.op("w")
    vm.wait("b")
    lg.all()
    pf.stamp(3); pf.stamp(9, "early")
    HI = a.label("M_HI"); JOIN = a.label("M_JOIN")
    a(f"s_cmp_eq_u32 {s(sHI)}, 1\ns_cbranch_scc1 {HI}")
    state = (list(vm.q), list(lg.q))
    def gemm(hi):
        vm.q, lg.q = list(state[0]), list(state[1])
        ng = 1 if hi else 2
        def xread(c, st):
            sx = sT3 if c % 2 else sT2
            if st == 0: a(f"s_add_u32 {s(sx)}, {s(sKc)}, {SEQ[c][1] << 7}\ns_and_b32 {s(sx)}, {s(sx)}, 0x380")
            a(f"v_xor_b32 {v(XA[4+st])}, {s(sx)}, {v(XA[st])}")
            a(f"ds_read_b128 {v(F[st],4)}, {v(XA[4+st])}"); lg.op(("x", c, st))
        def wread(c, st):
            sl = SLOTOF[c]
            for gi in range(ng):
                for j in range(2):
                    off = (sl & 1) * SLOT + gi * 8192 + st * 2048 + j * 512
                    a(f"ds_read_b64_tr_b16 {v(F[st]+4+4*gi+2*j,2)}, {v(WA[sl >> 1])} offset:{off}"); lg.op(("w", c, st))
        def mf(c, st):
            lg.wait(("x", c, st), ("w", c, st))
            isq = SEQ[c][0] == "c"
            acc = ACC1 if isq else ACC2
            for gi in range(ng):
                w, x = v(F[st]+4+4*gi,4), v(F[st],4)
                cin = "0" if (c == 0 and st == 0) else v(acc[gi],16)
                if hi and isq: a(f"{MFMA} {v(acc[gi],16)}, {x}, {w}, {cin}")
                else: a(f"{MFMA} {v(acc[gi],16)}, {w}, {x}, {cin}")
        def qkv_epilogue(part):
            sTT, sO = sU[4], sU[5]
            if part == 0:
                a(f"""
                s_lshl_b32 {s(sTT)}, {s(sRB)}, 1
                s_add_u32 {s(sTT)}, {s(sTT)}, {s(sMT)}
                s_lshl_b32 {s(sO)}, {s(sCB)}, 1
                s_add_u32 {s(sO)}, {s(sO)}, {s(sNH)}
                s_lshl_b32 {s(sO)}, {s(sO)}, 17
                s_lshl_b32 {s(sT0)}, {s(sTT)}, 10
                s_add_u32 {s(sO)}, {s(sO)}, {s(sT0)}
                s_add_u32 {s(sO)}, {s(sO)}, {WS_Q}
                """)
                if not hi:
                    a(f"""
                    v_lshlrev_b32 {v(vT[0])}, 4, {v(vL)}
                    v_lshrrev_b32 {v(vT[1])}, 1, {v(vL)}
                    v_xor_b32 {v(vT[1])}, {v(vT[1])}, {v(vL)}
                    v_and_b32 {v(vT[1])}, 4, {v(vT[1])}
                    v_mul_u32_u24 {v(vT[1])}, 3, {v(vT[1])}
                    v_xor_b32 {v(vT[1])}, {v(vT[1])}, {v(vL)}
                    v_lshlrev_b32 {v(vT[1])}, 4, {v(vT[1])}
                    s_add_u32 {s(sU[6])}, {s(sO)}, 65536
                    s_add_u32 {s(sU[7])}, {s(sO)}, {WS_K - WS_Q}
                    s_add_u32 {s(sU[8])}, {s(sO)}, {WS_K - WS_Q + 65536}
                    """)
                else:
                    a(f"""
                    v_lshlrev_b32 {v(vT[0])}, 4, {v(vL)}
                    v_bfe_u32 {v(vT[1])}, {v(vL)}, 4, 1
                    v_lshlrev_b32 {v(vT[1])}, 16, {v(vT[1])}
                    v_and_b32 {v(vT[2])}, 15, {v(vL)}
                    v_lshl_add_u32 {v(vT[1])}, {v(vT[2])}, 4, {v(vT[1])}
                    v_lshrrev_b32 {v(vT[2])}, 5, {v(vL)}
                    v_lshl_add_u32 {v(vT[1])}, {v(vT[2])}, 8, {v(vT[1])}
                    s_add_u32 {s(sU[7])}, {s(sO)}, {WS_V - WS_Q}
                    """)
            elif hi:
                if part == 1:
                    for i in range(8): a(f"v_cvt_pk_bf16_f32 {v(P+i)}, {v(ACC1[0]+2*i)}, {v(ACC1[0]+2*i+1)}")
            elif part == 1:
                for i in range(8): a(f"v_cvt_pk_bf16_f32 {v(P+8+i)}, {v(ACC1[1]+2*i)}, {v(ACC1[1]+2*i+1)}")
            else:
                for i in range(16): a(f"v_mul_f32 {v(ACC1[0]+i)}, {f32(0.25*LOG2E)}, {v(ACC1[0]+i)}")
                for i in range(8): a(f"v_cvt_pk_bf16_f32 {v(P+i)}, {v(ACC1[0]+2*i)}, {v(ACC1[0]+2*i+1)}")
        def qkv_store(k):
            sO = sU[5]
            if hi:
                t = {0: f"buffer_store_dwordx4 {v(P,4)}, {v(vT[1])}, {s(rWS,4)}, {s(sU[7])} offen{SCQ}",
                     1: f"buffer_store_dwordx4 {v(P+4,4)}, {v(vT[1])}, {s(rWS,4)}, {s(sU[7])} offen offset:512{SCQ}"}[k]
            else:
                t = {0: f"buffer_store_dwordx4 {v(P+8,4)}, {v(vT[1])}, {s(rWS,4)}, {s(sU[7])} offen{SCQ}",
                     1: f"buffer_store_dwordx4 {v(P+12,4)}, {v(vT[1])}, {s(rWS,4)}, {s(sU[8])} offen{SCQ}",
                     2: f"buffer_store_dwordx4 {v(P,4)}, {v(vT[0])}, {s(rWS,4)}, {s(sO)} offen{SCQ}",
                     3: f"buffer_store_dwordx4 {v(P+4,4)}, {v(vT[0])}, {s(rWS,4)}, {s(sU[6])} offen{SCQ}"}[k]
            a(t); vm.op("st")
        ss = opt("ssched", 0)
        E = LASTC + 1
        if ss == 0: stsched = {E: [0, 1]} if hi else {E: [0, 1, 2, 3]}
        if ss == 1: stsched = {E+2: [0], E+3: [1]} if hi else {E: [0], E+1: [1], E+4: [2], E+5: [3]}
        if ss == 2: stsched = {E+1: [0], E+3: [1]} if hi else {E: [0], E+1: [1], E+2: [2], E+3: [3]}
        if ss == 3: stsched = {E: [0], E+1: [1]} if hi else {E: [0, 1], E+1: [2, 3]}
        if ss == 4: stsched = {E+1: [0], E+2: [1]} if hi else {E: [0], E+1: [1], E+2: [2], E+3: [3]}
        for c in range(16):
            if c == QFLAG_CHUNK: vm.all()
            a("s_barrier")
            if c == QFLAG_CHUNK and not hi:
                nf, ok, pl = a.label("M_noflag"), a.label("M_tokok"), a.label("M_tokpoll")
                a.c("wave 0 publishes Q/K/V: this launch's tag into each of the 32 consumers' flag rows")
                a(f"""
                s_cmp_lg_u32 {s(sW)}, 0
                s_cbranch_scc1 {nf}
                s_mov_b32 {s(sIt)}, 0
                {pl}:
                v_cmp_eq_u32 vcc, 0, {v(vDum)}
                s_cbranch_vccz {ok}
                s_sleep 2
                v_mov_b32 {v(vDum+2)}, 0
                global_load_dwordx2 {v(vDum,2)}, {v(vDum+2)}, s[22:23]{SC}
                s_add_u32 {s(sIt)}, {s(sIt)}, 1
                s_waitcnt vmcnt(0)
                s_cmp_lt_u32 {s(sIt)}, 0x20000
                s_cbranch_scc1 {pl}
                {ok}:
                s_lshl_b32 {s(sT0)}, {s(sCB)}, 13
                s_lshl_b32 {s(sT1)}, {s(sRB)}, 3
                s_add_u32 {s(sT0)}, {s(sT0)}, {s(sT1)}
                s_add_u32 {s(sT0)}, {s(sT0)}, {FLAG_Q}
                v_lshlrev_b32 {v(vDum+2)}, 8, {v(vL)}
                s_mov_b32 exec_hi, 0
                buffer_store_dwordx2 {v(vDum,2)}, {v(vDum+2)}, {s(rWS,4)}, {s(sT0)} offen{SC}
                s_mov_b64 exec, -1
                {nf}:
                """)
            if c == 8 and not hi:
                nf = a.label("M_notokld")
                a(f"""
                s_cmp_lg_u32 {s(sW)}, 0
                s_cbranch_scc1 {nf}
                v_mov_b32 {v(vDum+2)}, 0
                global_load_dwordx2 {v(vDum,2)}, {v(vDum+2)}, s[22:23]{SC}
                {nf}:
                """)
            if c == 0:
                pf.stamp(4); pf.stamp(10, "early")
                xread(0, 0); xread(0, 1)
            if c == E: pf.stamp(5)
            if c >= 5: pf.stamp(c - 4, "fine")
            wread(c, 0); wread(c, 1)
            if c > 0: mf(c - 1, 3)
            if c == E - 1: qkv_epilogue(0)
            if c == FIRSTD:
                for gi in range(ng):
                    a(f"{MFMA} {v(ACC2[gi],16)}, {v(vBias[gi],4)}, {v(vOneB,4)}, 0")
            mf(c, 0)
            xread(c, 2); wread(c, 2)
            mf(c, 1)
            xread(c, 3); wread(c, 3)
            if c == E:
                if hi: a("s_nop 3")
                qkv_epilogue(1)
            if c < 15: xread(c + 1, 0); xread(c + 1, 1)
            mf(c, 2)
            if c == E: qkv_epilogue(2)
            for k in stsched.get(c, []): qkv_store(k)
            lg.wait(("w", c, 3))
        a("s_barrier")
        pf.stamp(6); pf.stamp(12, "fine")
        mf(15, 3)
        c1 = -2 * 0.7978845608028654 * LOG2E
        c2 = c1 * 0.044715
        CC = F[0]; T = F[1]
        a(f"""
        v_mov_b32 {v(CC)}, {f32(c2)}
        v_mov_b32 {v(CC+1)}, {f32(c1)}
        s_mul_i32 {s(sT1)}, {s(sMT)}, 12288
        s_lshl_b32 {s(sT0)}, {s(sNH)}, 11
        s_add_u32 {s(sT0)}, {s(sT0)}, {s(sT1)}
        s_add_u32 {s(sT0)}, {s(sT0)}, {STG + 8192 + (8192 if hi else 0)}
        v_add_u32 {v(vT[2])}, {s(sT0)}, {v(vT[0])}
        s_nop 6
        """)
        for gi in range(ng):
            skip = a.label("M_skip")
            A_ = ACC2[gi]; Pg = P + 8*gi
            a(f"s_add_u32 {s(sT1)}, {s(sColF)}, {64*gi}\ns_cmp_ge_u32 {s(sT1)}, 1376\ns_cbranch_scc1 {skip}")
            for i in range(0, 16, 2): a(f"v_pk_mul_f32 {v(T+i,2)}, {v(A_+i,2)}, {v(A_+i,2)}")
            for i in range(0, 16, 2): a(f"v_pk_fma_f32 {v(T+i,2)}, {v(T+i,2)}, {v(CC,2)}, {v(CC,2)} op_sel:[0,0,1] op_sel_hi:[1,0,1]")
            for i in range(0, 16, 2): a(f"v_pk_mul_f32 {v(T+i,2)}, {v(T+i,2)}, {v(A_+i,2)}")
            for i in range(16): a(f"v_exp_f32 {v(T+i)}, {v(T+i)}")
            for i in range(0, 16, 2): a(f"v_pk_add_f32 {v(T+i,2)}, {v(T+i,2)}, 1.0 op_sel_hi:[1,0]")
            for i in range(16): a(f"v_rcp_f32 {v(T+i)}, {v(T+i)}")
            for i in range(0, 16, 2): a(f"v_pk_mul_f32 {v(T+i,2)}, {v(T+i,2)}, {v(A_+i,2)}")
            for i in range(8): a(f"v_cvt_pk_bf16_f32 {v(Pg+i)}, {v(T+2*i)}, {v(T+2*i+1)}")
            a(f"ds_write_b128 {v(vT[2])}, {v(Pg,4)} offset:{4096*gi}")
            a(f"ds_write_b128 {v(vT[2])}, {v(Pg+4,4)} offset:{4096*gi + 1024}")
            a(f"{skip}:")
    gemm(False)
    a(f"s_branch {JOIN}\n{HI}:")
    gemm(True)
    a(f"{JOIN}:")
    vm.q = []; lg.q = []
    pf.stamp(7)
    WFq = list(range(vBias[0], XA[0] + 8, 4)) + list(range(F[0] + 16, ACC1[0], 4)) + [P, P + 4, P + 8]
    assert len(WFq) == 16, WFq
    a("s_waitcnt lgkmcnt(0)")
    vXr, vB2 = P + 12, vDum
    a.c("residual x and b2 of this thread's 8 output columns")
    a(f"""
    s_mov_b32 {s(rB)}, s18
    s_mov_b32 {s(rB+1)}, s19
    s_mov_b32 {s(rB+2)}, 1024
    v_lshrrev_b32 {v(vT[5])}, 3, v0
    s_lshl_b32 {s(sT0)}, {s(sRB)}, 6
    v_add_u32 {v(vT[5])}, {s(sT0)}, {v(vT[5])}
    v_and_b32 {v(vT[6])}, 7, v0
    s_lshl_b32 {s(sT0)}, {s(sCB)}, 7
    v_lshl_add_u32 {v(vT[6])}, {v(vT[6])}, 4, {s(sT0)}
    v_lshl_add_u32 {v(WA[0])}, {v(vT[5])}, 10, {v(vT[6])}
    buffer_load_dwordx4 {v(vXr,4)}, {v(WA[0])}, {s(rA,4)}, 0 offen
    buffer_load_dwordx4 {v(vB2,4)}, {v(vT[6])}, {s(rB,4)}, 0 offen
    """)
    vWa, vWp, vRp, vLp = WA[1], WA[1] + 1, WA[1] + 2, 1
    assert vRp < F[0]
    a.c("addresses of the closing phase: wave (mt = w&1, kq = w>>1)")
    a(f"""
    s_and_b32 {s(sU[6])}, {s(sW)}, 1
    s_lshr_b32 {s(sU[7])}, {s(sW)}, 1
    s_lshl_b32 {s(sT0)}, {s(sRB)}, 1
    s_add_u32 {s(sT0)}, {s(sT0)}, {s(sU[6])}
    s_mul_i32 {s(sU[5])}, {s(sT0)}, {A3_TSTRIDE}
    s_lshl_b32 {s(sT0)}, {s(sU[7])}, 13
    s_add_u32 {s(sU[5])}, {s(sU[5])}, {s(sT0)}
    s_add_u32 {s(sU[5])}, {s(sU[5])}, {WS_A3}
    s_add_u32 {s(sT3)}, {s(sU[5])}, 4096
    s_lshl_b32 {s(sT0)}, {s(sR8)}, 3
    s_add_u32 {s(sT0)}, {s(sT0)}, {s(sW)}
    s_mul_i32 {s(sT0)}, {s(sT0)}, {A3_TSTRIDE}
    s_lshl_b32 {s(sT1)}, {s(sH)}, 10
    s_add_u32 {s(sT0)}, {s(sT0)}, {s(sT1)}
    s_add_u32 {s(sU[8])}, {s(sT0)}, {WS_A3}
    v_lshlrev_b32 {v(vLp)}, 10, {v(vL)}
    v_add_u32 {v(vLp)}, 1020, {v(vLp)}
    v_lshrrev_b32 {v(vT[5])}, 5, {v(vL)}
    v_bfe_u32 {v(vWa)}, {v(vL)}, 2, 2
    v_lshl_add_u32 {v(vWa)}, {v(vT[5])}, 2, {v(vWa)}
    v_lshlrev_b32 {v(vWa)}, 7, {v(vWa)}
    v_bfe_u32 {v(vT[6])}, {v(vL)}, 3, 1
    v_lshl_add_u32 {v(vWa)}, {v(vT[6])}, 6, {v(vWa)}
    v_bfe_u32 {v(vT[6])}, {v(vL)}, 4, 1
    v_lshl_add_u32 {v(vWa)}, {v(vT[6])}, 5, {v(vWa)}
    v_and_b32 {v(vT[6])}, 3, {v(vL)}
    v_lshl_add_u32 {v(vWa)}, {v(vT[6])}, 3, {v(vWa)}
    s_and_b32 {s(sT1)}, {s(sU[7])}, 1
    s_lshl_b32 {s(sT1)}, {s(sT1)}, 14
    s_add_u32 {s(sT0)}, {s(sT1)}, {STG}
    s_cmp_lt_u32 {s(sU[7])}, 2
    s_cselect_b32 {s(sT1)}, {s(sT0)}, {s(sT1)}
    v_add_u32 {v(vWa)}, {s(sT1)}, {v(vWa)}
    v_and_b32 {v(vWp)}, 31, {v(vL)}
    s_lshl_b32 {s(sT0)}, {s(sU[6])}, 5
    v_add_u32 {v(vWp)}, {s(sT0)}, {v(vWp)}
    v_and_b32 {v(vT[6])}, 15, {v(vWp)}
    v_xor_b32 {v(vT[5])}, {v(vT[5])}, {v(vT[6])}
    v_lshlrev_b32 {v(vT[5])}, 4, {v(vT[5])}
    v_lshl_add_u32 {v(vWp)}, {v(vWp)}, 8, {v(vT[5])}
    v_add_u32 {v(vWp)}, {s(sT1)}, {v(vWp)}
    v_lshrrev_b32 {v(vT[5])}, 3, v0
    v_and_b32 {v(vRp)}, 7, v0
    v_lshlrev_b32 {v(vRp)}, 1, {v(vRp)}
    v_and_b32 {v(vT[6])}, 15, {v(vT[5])}
    v_xor_b32 {v(vRp)}, {v(vRp)}, {v(vT[6])}
    v_lshlrev_b32 {v(vRp)}, 4, {v(vRp)}
    v_lshl_add_u32 {v(vRp)}, {v(vT[5])}, 8, {v(vRp)}
    s_mov_b32 {s(rC)}, s20
    s_mov_b32 {s(rC+1)}, s21
    s_mov_b32 {s(rC+2)}, {2048*1024}
    s_mov_b32 {s(rC+3)}, 0x00020000
    """)
    V2 = Regs("v", 3, 168)
    vL16 = V2.alloc(); vKa = V2.alloc(); vVa = V2.alloc(); vIdx = V2.alloc(); vVb = V2.alloc(); t = [V2.alloc() for _ in range(3)]
    assert vL16 == vT[0]
    V2.n = P + 16
    V2.n = ACC1[0]
    Q = V2.alloc(4, 4); K = V2.alloc(4, 4); V1 = V2.alloc(4, 4); Vb = V2.alloc(4, 4)
    C = V2.alloc(16, 4)
    SB = [ACC2[0], ACC2[1]]; O = F[0]
    assert V2.n <= ACC2[0] and F[0] + 16 <= ACC1[0]
    sBar, sPass, sTT = sU[0], sU[1], sU[2]
    a.c("---------------- attention: head h, q tile 8*r8 + w")
    a(f"""
    v_mov_b32 {v(vIdx)}, 0xdddddddd
    s_mov_b32 {s(sMask)}, 0x0000ffff
    s_mov_b32 {s(sMask+1)}, 0x0000ffff
    v_and_b32 {v(t[0])}, 15, {v(vL)}
    v_lshrrev_b32 {v(t[1])}, 5, {v(vL)}
    v_lshlrev_b32 {v(t[1])}, 8, {v(t[1])}
    v_lshl_add_u32 {v(t[1])}, {v(t[0])}, 4, {v(t[1])}
    v_add_u32 {v(vVb)}, 65536, {v(t[1])}
    v_and_b32 {v(t[0])}, 27, {v(vL)}
    v_cmp_eq_u32 vcc, 16, {v(t[0])}
    v_mov_b32 {v(t[2])}, 0x3f803f80
    s_mov_b32 {s(sBar)}, 3
    v_cndmask_b32 {v(t[2])}, 0, {v(t[2])}, vcc
    s_lshl_b32 {s(sTT)}, {s(sR8)}, 3
    s_add_u32 {s(sTT)}, {s(sTT)}, {s(sW)}
    s_lshl_b32 {s(sT0)}, {s(sW)}, 10
    s_add_u32 {s(sT0)}, {s(sT0)}, {STG}
    v_add_u32 {v(t[0])}, {s(sT0)}, {v(vL16)}
    """)
    for i in range(4):
        a(f"v_mov_b32 {v(V1+i)}, {v(t[2])}\nv_mov_b32 {v(Vb+i)}, {v(t[2])}")
    a("s_waitcnt lgkmcnt(0)\ns_barrier")
    pf.stamp(8)
    a(f"""
    ds_read_b128 {v(Q,4)}, {v(t[0])}
    ds_read_b128 {v(K,4)}, {v(vL16)}
    s_waitcnt lgkmcnt(0)
    {MFMA} {v(SB[0],16)}, {v(K,4)}, {v(Q,4)}, 0
    s_nop 11
    """)
    def rowmax(src, dst, first):
        k = 0
        if first:
            a(f"v_max3_f32 {v(dst)}, {v(src)}, {v(src+1)}, {v(src+2)}"); k = 3
        while k < 16:
            if k + 1 < 16:
                a(f"v_max3_f32 {v(dst)}, {v(dst)}, {v(src+k)}, {v(src+k+1)}"); k += 2
            else:
                a(f"v_max_f32 {v(dst)}, {v(dst)}, {v(src+k)}"); k += 1
    rowmax(SB[0], t[0], True)
    LSTART = a.label("AT_START"); LOOP = a.label("AT_LOOP"); nob = a.label("AT_nob"); DONE = a.label("AT_DONE")
    a(f"""
    v_mov_b32 {v(t[1])}, {v(t[0])}
    v_mov_b32 {v(vKa)}, {v(vL16)}
    v_mov_b32 {v(vVa)}, {v(vVb)}
    v_permlane32_swap_b32 {v(t[0])}, {v(t[1])}
    """)
    for i in range(8): a(f"v_mov_b32 {v(O+i)}, 0")
    a(f"v_max_f32 {v(t[0])}, {v(t[0])}, {v(t[1])}")
    for i in range(16): a(f"v_sub_f32 {v(C+i)}, 0, {v(t[0])}")
    for i in range(8, 16): a(f"v_mov_b32 {v(O+i)}, 0")
    a(f"{MFMA} {v(SB[0],16)}, {v(K,4)}, {v(Q,4)}, {v(C,16)}")
    a(f"""
    s_mov_b64 exec, {s(sMask,2)}
    ds_read_b128 {v(Vb,4)}, {v(vVa)}
    s_mov_b64 exec, -1
    ds_read_b128 {v(K,4)}, {v(vKa)} offset:1024
    s_mov_b64 exec, {s(sMask,2)}
    ds_read_b128 {v(V1,4)}, {v(vVa)}
    s_mov_b64 exec, -1
    s_mov_b32 {s(sIt)}, 0
    """)
    for i in range(8, 16): a(f"v_mov_b32 {v(SB[1]+i)}, 0")
    a(f"""
    .p2align 3
    {LOOP}:
    s_cmp_lg_u32 {s(sIt)}, {s(sBar)}
    s_cbranch_scc1 {nob}
    s_barrier
    {nob}:
    """)
    U = 4
    for k in range(U):
        cur, oth = SB[k % 2], SB[(k + 1) % 2]
        e = lambda i: a(f"v_exp_f32 {v(cur+i)}, {v(cur+i)}")
        a(f"s_setprio {2 - (k % 3) if False else 3 - k}")
        e(0); e(1)
        a(f"s_waitcnt lgkmcnt(2)\n{SMF} {v(O,16)}, {v(Vb,4)}, {v(oth+8,8)}, {v(vIdx)}")
        a(f"s_mov_b64 exec, {s(sMask,2)}\nds_read_b128 {v(Vb,4)}, {v(vVa)} offset:{k*1024 + 512}\ns_mov_b64 exec, -1")
        e(2); e(3); e(4); e(5)
        a(f"s_waitcnt lgkmcnt(2)\n{MFMA} {v(oth,16)}, {v(K,4)}, {v(Q,4)}, {v(C,16)}")
        a(f"ds_read_b128 {v(K,4)}, {v(vKa)} offset:{(k+2)*1024}")
        e(6); e(7); e(8); e(9); e(10)
        a(f"s_waitcnt lgkmcnt(2)\n{SMF} {v(O,16)}, {v(V1,4)}, {v(cur,8)}, {v(vIdx)}")
        a(f"s_mov_b64 exec, {s(sMask,2)}\nds_read_b128 {v(V1,4)}, {v(vVa)} offset:{(k+1)*1024}\ns_mov_b64 exec, -1")
        e(11); e(12); e(13)
        if k == U - 1:
            a(f"v_add_u32 {v(vKa)}, {U*1024}, {v(vKa)}\nv_add_u32 {v(vVa)}, {U*1024}, {v(vVa)}")
            a(f"s_add_u32 {s(sIt)}, {s(sIt)}, 1\ns_cmp_lt_u32 {s(sIt)}, {64//U}")
        e(14); e(15)
    a(f"""
    s_cbranch_scc1 {LOOP}
    M_TAIL:
    s_waitcnt lgkmcnt(0)
    s_setprio 3
    {SMF} {v(O,16)}, {v(Vb,4)}, {v(SB[1]+8,8)}, {v(vIdx)}
    s_mov_b32 {s(sT0)}, {f32(2.0**60)}
    s_mov_b32 {s(sT1)}, {f32(2.0**120)}
    s_barrier
    s_nop 8
    """)
    a.c("the stand-in max was the max over the first key tile: check nothing overflowed, otherwise redo with the true row max")
    a(f"""
    v_max3_f32 {v(t[0])}, |{v(O)}|, |{v(O+1)}|, |{v(O+2)}|
    v_add_f32 {v(t[1])}, {v(O)}, {v(O+1)}
    v_add_f32 {v(t[2])}, {v(O+2)}, {v(O+3)}
    v_max3_f32 {v(t[0])}, {v(t[0])}, |{v(O+3)}|, |{v(O+4)}|
    v_add_f32 {v(t[1])}, {v(t[1])}, {v(O+4)}
    v_add_f32 {v(t[2])}, {v(t[2])}, {v(O+5)}
    v_max3_f32 {v(t[0])}, {v(t[0])}, |{v(O+5)}|, |{v(O+6)}|
    v_add_f32 {v(t[1])}, {v(t[1])}, {v(O+6)}
    v_add_f32 {v(t[2])}, {v(t[2])}, {v(O+7)}
    v_max_f32 {v(t[0])}, {v(t[0])}, |{v(O+7)}|
    v_add_f32 {v(t[1])}, {v(t[1])}, {v(t[2])}
    v_cmp_nlt_f32 vcc, {v(O+8)}, {s(sT0)}
    v_cmp_nlt_f32 {s(sK,2)}, {v(t[0])}, {s(sT1)}
    s_or_b64 vcc, vcc, {s(sK,2)}
    v_cmp_u_f32 {s(sK,2)}, {v(t[1])}, {v(t[1])}
    s_or_b64 vcc, vcc, {s(sK,2)}
    s_cbranch_vccz {DONE}
    """)
    ML, ML2 = a.label("AT_MAXLOOP"), a.label("AT_REDO")
    a.c("rare path: true row max, then the whole row block again, K/V straight from global memory")
    a(f"""
    s_lshl_b32 {s(sT0)}, {s(sH)}, 16
    s_add_u32 {s(sT0)}, {s(sT0)}, {WS_K}
    v_mov_b32 {v(t[0])}, 0xff800000
    s_mov_b32 {s(sIt)}, 0
    {ML}:
    buffer_load_dwordx4 {v(K,4)}, {v(vL16)}, {s(rWS,4)}, {s(sT0)} offen{SC}
    s_add_u32 {s(sT0)}, {s(sT0)}, 1024
    s_waitcnt vmcnt(0)
    {MFMA} {v(SB[0],16)}, {v(K,4)}, {v(Q,4)}, 0
    s_nop 15
    """)
    rowmax(SB[0], t[0], False)
    a(f"""
    s_add_u32 {s(sIt)}, {s(sIt)}, 1
    s_cmp_lt_u32 {s(sIt)}, 64
    s_cbranch_scc1 {ML}
    v_mov_b32 {v(t[1])}, {v(t[0])}
    v_subrev_u32 {v(vVa)}, 65536, {v(vVb)}
    s_sub_u32 {s(sT0)}, {s(sT0)}, 65536
    v_permlane32_swap_b32 {v(t[0])}, {v(t[1])}
    s_add_u32 {s(sT1)}, {s(sT0)}, {WS_V - WS_K}
    s_mov_b32 {s(sIt)}, 0
    v_max_f32 {v(t[0])}, {v(t[0])}, {v(t[1])}
    """)
    for i in range(16): a(f"v_sub_f32 {v(C+i)}, 0, {v(t[0])}\nv_mov_b32 {v(O+i)}, 0")
    a(f"""
    {ML2}:
    buffer_load_dwordx4 {v(K,4)}, {v(vL16)}, {s(rWS,4)}, {s(sT0)} offen{SC}
    s_mov_b64 exec, {s(sMask,2)}
    buffer_load_dwordx4 {v(V1,4)}, {v(vVa)}, {s(rWS,4)}, {s(sT1)} offen{SC}
    buffer_load_dwordx4 {v(Vb,4)}, {v(vVa)}, {s(rWS,4)}, {s(sT1)} offen offset:512{SC}
    s_mov_b64 exec, -1
    s_add_u32 {s(sT0)}, {s(sT0)}, 1024
    s_add_u32 {s(sT1)}, {s(sT1)}, 1024
    s_waitcnt vmcnt(0)
    {MFMA} {v(SB[0],16)}, {v(K,4)}, {v(Q,4)}, {v(C,16)}
    s_nop 15
    """)
    for i in range(16): a(f"v_exp_f32 {v(SB[0]+i)}, {v(SB[0]+i)}")
    a(f"""
    s_nop 1
    {SMF} {v(O,16)}, {v(V1,4)}, {v(SB[0],8)}, {v(vIdx)}
    {SMF} {v(O,16)}, {v(Vb,4)}, {v(SB[0]+8,8)}, {v(vIdx)}
    s_add_u32 {s(sIt)}, {s(sIt)}, 1
    s_nop 15
    s_cmp_lt_u32 {s(sIt)}, 64
    s_cbranch_scc1 {ML2}
    {DONE}:
    """)
    pf.stamp(1, "tail")
    a(f"""
    v_rcp_f32 {v(t[0])}, {v(O+8)}
    s_nop 0
    """)
    for i in range(8): a(f"v_mul_f32 {v(O+i)}, {v(O+i)}, {v(t[0])}")
    for i in range(4): a(f"v_cvt_pk_bf16_f32 {v(K+i)}, {v(O+2*i)}, {v(O+2*i+1)}")
    a(f"buffer_store_dwordx4 {v(K,4)}, {v(vL16)}, {s(rWS,4)}, {s(sU[8])} offen{SC}")
    pf.stamp(9)
    pf.stamp(2, "tail")
    a.c("---------------- final: out tile (tm = rb, tn = cb), wave (mt = w&1, kq = w>>1): heads 8kq..8kq+7, 32 tokens x 64 cols")
    vOa = WA[0]
    vBa = vVb
    OF = [ACC2[0] + 4*i for i in range(8)]
    ACC = [ACC1[0], ACC1[1]]
    sP, sRdy, sOo, sMTf, sKQ = sU[3], sU[4], sU[5], sU[6], sU[7]
    PART = 65536
    def oload(f):
        a(f"buffer_load_dwordx4 {v(OF[f],4)}, {v(vL16)}, {s(rWS,4)}, {s(sOo if f < 4 else sT3)} offen offset:{(f%4)*1024}{SC}")
    vHint = t[2]; vWb = vVa
    def cinit():
        pf.stamp(5, "tail")
        a(f"v_xor_b32 {v(vWb)}, 64, {v(vWa)}\ns_barrier")
        for f in range(8):
            for n, va in enumerate((vWa, vWb)):
                for j in range(2):
                    a(f"ds_read_b64_tr_b16 {v(WFq[2*f+n]+2*j,2)}, {v(va)} offset:{f*2048 + j*1024}")
            if f % 2 == 1 and f < 7:
                for i in range(8): a(f"v_mov_b32 {v(ACC[0] + 8*(f//2) + i)}, 0")
                a("s_waitcnt lgkmcnt(6)")
        for i in range(8): a(f"v_mov_b32 {v(ACC[0] + 24 + i)}, 0")
        a("s_waitcnt lgkmcnt(0)\ns_barrier")
        pf.stamp(6, "tail")
    def tree(body, mask_s):
        for h in range(2):
            skh = a.label("F_skh")
            a(f"s_and_b32 {s(sT0)}, {s(mask_s)}, {0xf << (4*h)}\ns_cbranch_scc0 {skh}")
            for f in range(4*h, 4*h + 4):
                sk = a.label("F_sk")
                a(f"s_bitcmp1_b32 {s(mask_s)}, {f}\ns_cbranch_scc0 {sk}")
                body(f, sk)
                a(f"{sk}:")
            a(f"{skh}:")
    def consume(f, sk):
        tt_ = t[f % 2]
        a(f"""
        v_max3_u32 {v(tt_)}, {v(OF[f])}, {v(OF[f]+1)}, {v(OF[f]+2)}
        v_max_u32 {v(tt_)}, {v(tt_)}, {v(OF[f]+3)}
        v_cmp_eq_u32 vcc, -1, {v(tt_)}
        s_and_b64 vcc, vcc, {s(sK,2)}
        s_cbranch_vccnz {sk}
        """)
        for n in range(2):
            a(f"{MFMA} {v(ACC[n],16)}, {v(WFq[2*f+n],4)}, {v(OF[f],4)}, {v(ACC[n],16)}")
        a(f"s_bitset0_b32 {s(sP)}, {f}")
    a.c("O fragments arrive from 32 other workgroups; a slot still holding the all-ones marker has not been written yet")
    SLOW, PH2, PH2B, RD = a.label("F_SLOW"), a.label("F_PH2"), a.label("F_PH2B"), a.label("F_DONE")
    a(f"""
    s_mov_b32 {s(sP)}, 255
    s_mov_b32 {s(sIt)}, 0
    s_mov_b64 {s(sK,2)}, -1
    """)
    cinit()
    a("s_waitcnt vmcnt(0)")
    if opt("d1", 0): a(f"s_sleep {opt('d1', 0)}")
    pf.stamp(4, "tail")
    if opt("first", 0) == 1:
        a(f"""
        s_mov_b64 exec, 255
        buffer_load_dword {v(vHint)}, {v(vLp)}, {s(rWS,4)}, {s(sOo)} offen{SC}
        s_mov_b64 exec, -1
        s_waitcnt vmcnt(0)
        v_cmp_ne_u32 vcc, -1, {v(vHint)}
        s_and_b32 {s(sRdy)}, vcc_lo, 255
        s_cmp_lg_u32 {s(sRdy)}, 255
        s_cbranch_scc1 {SLOW}
        """)
    for f in range(8): oload(f)
    for f in range(8):
        sk = a.label("F_sk")
        a(f"s_waitcnt vmcnt({7 - f})")
        consume(f, sk)
        a(f"{sk}:")
    a(f"s_branch {PH2}\n{SLOW}:")
    tree(lambda f, sk: oload(f), sRdy)
    a(f"{PH2B}:\ns_waitcnt vmcnt(0)")
    pf.stamp(8, "tail")
    tree(consume, sRdy)
    PL = a.label("F_PL"); GO = a.label("F_GO")
    a(f"""
    {PH2}:
    s_cmp_eq_u32 {s(sP)}, 0
    s_cbranch_scc1 {RD}
    s_mov_b32 {s(sRdy)}, {s(sP)}
    s_add_u32 {s(sIt)}, {s(sIt)}, 1
    s_bcnt1_i32_b32 {s(sT0)}, {s(sP)}
    s_cmp_le_u32 {s(sT0)}, {opt("few", 8)}
    s_cbranch_scc1 {GO}S
    s_mov_b64 exec, 255
    {PL}:
    s_sleep {opt("psleep", 6)}
    buffer_load_dword {v(vHint)}, {v(vLp)}, {s(rWS,4)}, {s(sOo)} offen{SC}
    s_add_u32 {s(sIt)}, {s(sIt)}, 1
    s_waitcnt vmcnt(0)
    v_cmp_eq_u32 vcc, -1, {v(vHint)}
    s_and_b32 {s(sT0)}, vcc_lo, {s(sP)}
    s_cbranch_scc0 {GO}
    s_cmp_lt_u32 {s(sIt)}, 0x8000
    s_cbranch_scc1 {PL}
    s_branch {GO}
    {GO}S:
    s_sleep {opt("psleep", 6)}
    {GO}:
    """)
    pf.stamp(7, "tail")
    a(f"""
    s_mov_b64 exec, -1
    s_cmp_lt_u32 {s(sIt)}, 0x8000
    s_cselect_b64 {s(sK,2)}, -1, 0
    """)
    tree(lambda f, sk: oload(f), sRdy)
    a(f"s_branch {PH2B}\n{RD}:")
    a("s_nop 3")
    pf.stamp(11); pf.stamp(9, "tail")
    if PROF and "tail" in sys.argv:
        a(f"s_waitcnt lgkmcnt(0)\ns_add_u32 {s(pf.t[12])}, {s(pf.t[0])}, {s(sIt)}\ns_add_u32 {s(pf.t[12])}, {s(pf.t[12])}, 1")
    XS = F[0] + 16; R = ACC2[0]
    for i in range(4):
        a(f"v_lshlrev_b32 {v(XS+2*i)}, 16, {v(vXr+i)}\nv_and_b32 {v(XS+2*i+1)}, 0xffff0000, {v(vXr+i)}")
    for i in range(4):
        a(f"v_lshlrev_b32 {v(XS+8+2*i)}, 16, {v(vB2+i)}\nv_and_b32 {v(XS+8+2*i+1)}, 0xffff0000, {v(vB2+i)}")
    for n in range(2):
        for gq in range(4):
            a(f"v_xor_b32 {v(t[gq%2])}, {128*n + 32*gq}, {v(vWp)}\nds_write_b128 {v(t[gq%2])}, {v(ACC[n]+4*gq,4)}")
    for i in range(8): a(f"v_add_f32 {v(XS+i)}, {v(XS+i)}, {v(XS+8+i)}")
    a(f"""
    v_xor_b32 {v(t[1])}, 16, {v(vRp)}
    v_add_u32 {v(vBa)}, {STG}, {v(vRp)}
    v_add_u32 {v(t[0])}, {STG}, {v(t[1])}
    s_waitcnt lgkmcnt(0)
    """)
    pf.stamp(10, "tail")
    a("s_barrier")
    pf.stamp(11, "tail")
    R2 = ACC1[0]
    for k, (a0_, a1_, off) in enumerate([(vRp, t[1], 0), (vRp, t[1], 16384), (vRp, t[1], BASE), (vBa, t[0], 0), (vBa, t[0], 16384)]):
        d = R + 8*k if k < 4 else R2
        a(f"ds_read_b128 {v(d,4)}, {v(a0_)} offset:{off}\nds_read_b128 {v(d+4,4)}, {v(a1_)} offset:{off}")
    a("s_waitcnt lgkmcnt(6)")
    for i in range(8): a(f"v_add_f32 {v(XS+i)}, {v(XS+i)}, {v(R+i)}")
    for i in range(8): a(f"v_add_f32 {v(XS+i)}, {v(XS+i)}, {v(R+8+i)}")
    a("s_waitcnt lgkmcnt(2)")
    for i in range(8): a(f"v_add_f32 {v(R+16+i)}, {v(R+16+i)}, {v(R+24+i)}")
    for i in range(8): a(f"v_add_f32 {v(XS+i)}, {v(XS+i)}, {v(R+16+i)}")
    a("s_waitcnt lgkmcnt(0)")
    for i in range(8): a(f"v_add_f32 {v(XS+i)}, {v(XS+i)}, {v(R2+i)}")
    for i in range(4): a(f"v_cvt_pk_bf16_f32 {v(R+i)}, {v(XS+2*i)}, {v(XS+2*i+1)}")
    a(f"buffer_store_dwordx4 {v(R,4)}, {v(vOa)}, {s(rC,4)}, 0 offen")
    pf.finish(t[0], t[1], sW)
    a("s_endpgm")
    return V.hi

def gen_aux(a, G):
    g = lambda n: G[n]
    pf, sW, sRB, sCB, sH, sR8, sT0, sT1, sT2, sT3, sIt = [g(n) for n in "pf sW sRB sCB sH sR8 sT0 sT1 sT2 sT3 sIt".split()]
    rWS, rA, rB, rC, sU, sMask, sK, END = [g(n) for n in "rWS rA rB rC sU sMask sK END".split()]
    V = Regs("v", 3, 168)
    vL = 2
    vm = Cnt(a, "vmcnt", 63); lg = Cnt(a, "lgkmcnt", 15)
    vL16 = V.alloc(); vT = [V.alloc() for _ in range(6)]
    vWq = [V.alloc(), V.alloc()]; vW1 = [V.alloc(), V.alloc()]
    vD = V.alloc(4, 4)
    sA = sU[0]; sOff = [sU[1], sU[2], sU[3]]; sM = [sU[4], sU[5], sU[6]]; sI8 = sU[7]
    a.c("---------------- aux waves: weight streaming for the two GEMMs")
    a(f"""
    s_setprio {opt("auxprio", 1)}
    s_sub_u32 {s(sA)}, {s(sW)}, 8
    v_lshlrev_b32 {v(vL16)}, 4, {v(vL)}
    v_lshrrev_b32 {v(vT[0])}, 3, {v(vL)}
    v_bfe_u32 {v(vT[1])}, {v(vL)}, 4, 1
    v_lshlrev_b32 {v(vT[1])}, 2, {v(vT[1])}
    v_and_b32 {v(vT[2])}, 7, {v(vL)}
    v_xor_b32 {v(vT[1])}, {v(vT[1])}, {v(vT[2])}
    v_lshlrev_b32 {v(vT[1])}, 4, {v(vT[1])}
    v_mul_u32_u24 {v(vT[2])}, 3072, {v(vT[0])}
    v_add_u32 {v(vWq[0])}, {v(vT[2])}, {v(vT[1])}
    v_add_u32 {v(vWq[1])}, {8*3072 - 1024}, {v(vWq[0])}
    v_mul_u32_u24 {v(vT[2])}, 2752, {v(vT[0])}
    v_add_u32 {v(vW1[0])}, {v(vT[2])}, {v(vT[1])}
    v_add_u32 {v(vW1[1])}, {8*2752 - 1024}, {v(vW1[0])}
    s_lshl_b32 {s(sOff[0])}, {s(sCB)}, 7
    s_lshl_b32 {s(sT0)}, {s(sA)}, 10
    s_add_u32 {s(sOff[0])}, {s(sOff[0])}, {s(sT0)}
    s_mul_i32 {s(sOff[1])}, {s(sCB)}, 384
    s_lshl_b32 {s(sT0)}, {s(sA)}, 7
    s_add_u32 {s(sOff[2])}, {s(sOff[1])}, {s(sT0)}
    s_lshl_b32 {s(sM[0])}, {s(sA)}, 13
    s_add_u32 {s(sM[0])}, {s(sM[0])}, {RING}
    s_and_b32 {s(sI8)}, {s(sRB)}, 7
    s_mov_b32 {s(rA+2)}, {512*3072}
    s_mov_b32 {s(rA+3)}, 0x00020000
    s_mov_b32 {s(rB+2)}, {512*2752}
    s_mov_b32 {s(rB+3)}, 0x00020000
    s_cmp_eq_u32 {s(sCB)}, 7
    s_cselect_b32 {s(sT0)}, 0, {512*2752}
    s_cmp_eq_u32 {s(sA)}, 0
    s_cselect_b32 {s(rC+2)}, {512*2752}, {s(sT0)}
    s_mov_b32 {s(sM[1])}, {s(sT0)}
    s_mov_b32 {s(rC+3)}, 0x00020000
    s_waitcnt lgkmcnt(0)
    s_mov_b32 {s(rA)}, s6
    s_mov_b32 {s(rA+1)}, s7
    s_mov_b32 {s(rB)}, s12
    s_mov_b32 {s(rB+1)}, s13
    s_mov_b32 {s(rC)}, s12
    s_mov_b32 {s(rC+1)}, s13
    """)
    sLQ, sLH = sU[8], sU[9]
    sN = sK
    nn = a.label("X_nonce")
    a(f"""
    s_lshl_b32 {s(sLQ)}, {s(sH)}, 3
    s_add_u32 {s(sLQ)}, {s(sLQ)}, {s(sR8)}
    s_lshl_b32 {s(sLQ)}, {s(sLQ)}, 8
    s_add_u32 {s(sLQ)}, {s(sLQ)}, {FLAG_Q}
    s_lshl_b32 {s(sLH)}, {s(sRB)}, 3
    s_add_u32 {s(sLH)}, {s(sLH)}, {s(sCB)}
    s_lshl_b32 {s(sLH)}, {s(sLH)}, 8
    s_add_u32 {s(sLH)}, {s(sLH)}, {FLAG_H}
    """)
    a.c("workgroup 0, wave 11 picks this launch's tag (previous tag + 1, low word never 0) and publishes it through d_debug")
    a(f"""
    s_cmp_lg_u32 s2, 0
    s_cbranch_scc1 {nn}
    s_cmp_lg_u32 {s(sA)}, 3
    s_cbranch_scc1 {nn}
    v_mov_b32 {v(vT[4])}, 0
    s_mov_b32 {s(sT0)}, {WS_EPOCH}
    s_mov_b64 exec, 1
    buffer_load_dwordx2 {v(vD,2)}, {v(vT[4])}, {s(rWS,4)}, {s(sT0)} offen{SC}
    s_waitcnt vmcnt(0)
    v_add_co_u32 {v(vD)}, vcc, 1, {v(vD)}
    s_nop 1
    v_addc_co_u32 {v(vD+1)}, vcc, 0, {v(vD+1)}, vcc
    v_max_u32 {v(vD)}, 1, {v(vD)}
    buffer_store_dwordx2 {v(vD,2)}, {v(vT[4])}, {s(rWS,4)}, {s(sT0)} offen{SC}
    global_store_dwordx2 {v(vT[4])}, {v(vD,2)}, s[22:23]{SC}
    s_mov_b64 exec, -1
    {nn}:
    """)
    sKr = sMask
    a(f"s_and_b32 {s(sKr)}, {s(sRB)}, 7")
    def group(r, vo, stride, scol, m0base, m0imm):
        for q in range(4):
            a(f"""
            s_add_u32 m0, {m0base}, {m0imm + q*2048}
            s_add_u32 {s(sIt)}, {s(scol)}, {q*16*stride}
            buffer_load_dwordx4 {v(vo[0])}, {s(r,4)}, {s(sIt)} offen{WNT} lds
            buffer_load_dwordx4 {v(vo[1])}, {s(r,4)}, {s(sIt)} offen offset:1024{WNT} lds
            """)
    def dma(c):
        sl = SLOTOF[c]; isq = SEQ[c][0] == "c"
        st = 3072 if isq else 2752
        a(f"""
        s_add_u32 {s(sT3)}, {s(sKr)}, {SEQ[c][1]}
        s_and_b32 {s(sT3)}, {s(sT3)}, 7
        s_mul_i32 {s(sT3)}, {s(sT3)}, {64*st}
        s_add_u32 {s(sT3)}, {s(sT3)}, {s(sOff[0] if isq else sOff[2])}
        """)
        group(rA if isq else rC, vWq if isq else vW1, st, sT3, s(sM[0]), sl*SLOT)
        vm.op(("c", c), 8)
    def dma_lone(c):
        sl = SLOTOF[c]
        a(f"s_mul_i32 {s(sT3)}, {s(sKr)}, {64*2752}\ns_add_u32 {s(sT3)}, {s(sT3)}, {s(sOff[1])}\ns_mov_b32 {s(sT2)}, {RING}")
        for gi in range(3):
            group(rB, vW1, 2752, sT3, s(sT2), sl*SLOT + gi*8192)
            if gi == 0: a(f"s_mov_b32 {s(rB+2)}, {s(sM[1])}")
            a(f"s_add_u32 {s(sT3)}, {s(sT3)}, 128")
    W11, WJ = a.label("X_W11"), a.label("X_WJ")
    a("s_barrier")
    a(f"s_cmp_eq_u32 {s(sA)}, 3\ns_cbranch_scc1 {W11}")
    LONE = FIRSTD if DPOS < 8 else -1
    for p in IORDER:
        if ISSUE[p] == -2 and p != LONE: dma(p)
    def poll(setup, load, nl):
        L = a.label("X_poll"); D = a.label("X_polld")
        a(setup)
        a(f"s_mov_b32 {s(sIt)}, 0\ns_mov_b64 exec, 255")
        if nl == 32: a("s_mov_b32 exec_lo, -1")
        a(f"""
        {L}:
        {load}
        s_add_u32 {s(sIt)}, {s(sIt)}, 1
        s_waitcnt vmcnt(0)
        v_cmp_ne_u64 vcc, {s(sN,2)}, {v(vD,2)}
        s_cbranch_vccz {D}
        s_sleep {opt("pollsleep", 2)}
        s_cmp_lt_u32 {s(sIt)}, 0x20000
        s_cbranch_scc1 {L}
        {D}:
        s_mov_b64 exec, -1
        """)
        vm.q = []
    def setflag(base, sline, lineshift, sslot, nl, allw=False):
        nf = a.label("X_noflag")
        if not allw: a(f"s_cmp_lg_u32 {s(sA)}, 0\ns_cbranch_scc1 {nf}")
        a(f"""
        s_lshl_b32 {s(sT0)}, {s(sline)}, {lineshift + 8}
        s_lshl_b32 {s(sT1)}, {s(sslot)}, 3
        s_add_u32 {s(sT0)}, {s(sT0)}, {s(sT1)}
        s_add_u32 {s(sT0)}, {s(sT0)}, {base}
        v_lshlrev_b32 {v(vT[0])}, 8, {v(vL)}
        v_mov_b64 {v(vD+2,2)}, {s(sN,2)}
        s_mov_b64 exec, 255
        """)
        if nl == 32: a("s_mov_b32 exec_lo, -1")
        a(f"""
        buffer_store_dwordx2 {v(vD+2,2)}, {v(vT[0])}, {s(rWS,4)}, {s(sT0)} offen{SC}
        s_mov_b64 exec, -1
        {nf}:
        """)
    def tokwait():
        tk, tl = a.label("X_tok"), a.label("X_tokl")
        a(f"""
        s_waitcnt lgkmcnt(0)
        s_cmp_lg_u32 {s(sN)}, 0
        s_cbranch_scc1 {tk}
        s_mov_b32 {s(sIt)}, 0
        v_mov_b32 {v(vT[4])}, 0
        {tl}:
        global_load_dwordx2 {v(vD,2)}, {v(vT[4])}, s[22:23]{SC}
        s_add_u32 {s(sIt)}, {s(sIt)}, 1
        s_waitcnt vmcnt(0)
        v_readfirstlane_b32 {s(sN)}, {v(vD)}
        v_readfirstlane_b32 {s(sN+1)}, {v(vD+1)}
        s_cmp_lg_u32 {s(sN)}, 0
        s_cbranch_scc1 {tk}
        s_sleep 2
        s_cmp_lt_u32 {s(sIt)}, 0x20000
        s_cbranch_scc1 {tl}
        {tk}:
        """)
    for c in range(16):
        vm.wait(("c", c))
        if c >= 5: pf.stamp(c - 4, "fine")
        a("s_barrier")
        if c == 0: pf.stamp(4)
        if c == LASTC + 1: pf.stamp(5)
        for p in IORDER:
            if ISSUE[p] == c and p != LONE: dma(p)
        if c == 10: a(f"s_load_dwordx2 {s(sN,2)}, s[22:23], 0")
    a(f"s_branch {WJ}\n{W11}:")
    LAT = opt("loneat", -1)
    if LONE >= 0 and LAT < 0: dma_lone(LONE)
    for c in range(16):
        if c == LONE: a("s_waitcnt vmcnt(0)")
        a("s_barrier")
        if LONE >= 0 and c == LAT: dma_lone(LONE)
        P11 = opt("pf11", 99)
        if c == P11:
            a.c("warm-up of this workgroup's first W1 chunk, one line column per step")
            a(f"""
            s_lshl_b32 {s(sT0)}, {s(sKr)}, 6
            v_add_u32 {v(vT[0])}, {s(sT0)}, {v(vL)}
            v_mul_u32_u24 {v(vT[0])}, 2752, {v(vT[0])}
            """)
        if 0 <= c - P11 < 4:
            a(f"buffer_load_dword {v(vD + c - P11)}, {v(vT[0])}, {s(rB,4)}, {s(sOff[1])} offen offset:{[0,128,256,380][c - P11]}")
        if c == 10: a(f"s_load_dwordx2 {s(sN,2)}, s[22:23], 0")
    a(f"{WJ}:")
    tokwait()
    pf.stamp(1)
    qset = f"""
        v_and_b32 {v(vT[0])}, 31, {v(vL)}
        v_lshlrev_b32 {v(vT[0])}, 3, {v(vT[0])}
        """
    qld = f"buffer_load_dwordx2 {v(vD,2)}, {v(vT[0])}, {s(rWS,4)}, {s(sLQ)} offen{SC}"
    a(qset)
    vWo = [vWq[0], vWq[1]]
    a(f"""
    v_lshrrev_b32 {v(vT[4])}, 3, {v(vL)}
    v_bfe_u32 {v(vT[1])}, {v(vL)}, 4, 1
    v_lshlrev_b32 {v(vT[1])}, 2, {v(vT[1])}
    v_and_b32 {v(vT[2])}, 7, {v(vL)}
    v_xor_b32 {v(vT[1])}, {v(vT[1])}, {v(vT[2])}
    v_lshlrev_b32 {v(vT[1])}, 4, {v(vT[1])}
    v_lshl_add_u32 {v(vWo[0])}, {v(vT[4])}, 10, {v(vT[1])}
    v_add_u32 {v(vWo[1])}, {8*1024 - 1024}, {v(vWo[0])}
    """)
    sKV, sKL = sU[1], sU[2]
    a(f"""
    s_lshl_b32 {s(sKV)}, {s(sH)}, 16
    s_lshl_b32 {s(sU[3])}, {s(sR8)}, 13
    s_add_u32 {s(sU[3])}, {s(sU[3])}, {s(sKV)}
    s_lshl_b32 {s(sU[4])}, {s(sA)}, 11
    s_add_u32 {s(sU[3])}, {s(sU[3])}, {s(sU[4])}
    s_add_u32 {s(sU[3])}, {s(sU[3])}, {WS_Q}
    s_lshr_b32 {s(sKL)}, {s(sA)}, 1
    s_lshl_b32 {s(sT2)}, {s(sKL)}, 21
    s_add_u32 {s(sKV)}, {s(sKV)}, {s(sT2)}
    s_add_u32 {s(sKV)}, {s(sKV)}, {WS_K}
    s_lshl_b32 {s(sKL)}, {s(sKL)}, 16
    s_and_b32 {s(sT2)}, {s(sA)}, 1
    s_lshl_b32 {s(sT2)}, {s(sT2)}, 13
    s_add_u32 {s(sKV)}, {s(sKV)}, {s(sT2)}
    s_add_u32 {s(sKL)}, {s(sKL)}, {s(sT2)}
    """)
    def kv(st):
        for hb in range(2):
            a(f"s_add_u32 m0, {s(sKL)}, {st*16384 + hb*4096}\ns_add_u32 {s(sT2)}, {s(sKV)}, {st*16384 + hb*4096}")
            for i in range(4):
                a(f"buffer_load_dwordx4 {v(vL16)}, {s(rWS,4)}, {s(sT2)} offen offset:{i*1024}{SCL} lds")
    def stage1():
        a.c("Q tiles -> staging, K/V -> LDS; wave a: matrix (a>>1), tiles 8*(a&1).. of every group of 16")
        a(f"""
        s_add_u32 m0, {s(sU[4])}, {STG}
        s_nop 0
        buffer_load_dwordx4 {v(vL16)}, {s(rWS,4)}, {s(sU[3])} offen{SCL} lds
        buffer_load_dwordx4 {v(vL16)}, {s(rWS,4)}, {s(sU[3])} offen offset:1024{SCL} lds
        """)
        kv(0)
    def wo():
        a.c("Wo column block -> the K/V slots that are filled last: rows 0..255 at [16K,48K), rows 256..511 at [80K,112K)")
        for i in range(8):
            a(f"""
            s_add_u32 m0, {s(sT1)}, {i*2048}
            s_add_u32 {s(sT2)}, {s(sT0)}, {i*16384}
            buffer_load_dwordx4 {v(vWo[0])}, {s(rB,4)}, {s(sT2)} offen lds
            buffer_load_dwordx4 {v(vWo[1])}, {s(rB,4)}, {s(sT2)} offen offset:1024 lds
            """)
    a(qld)
    a("s_barrier")
    pf.stamp(6)
    qok = a.label("X_qok")
    a(f"s_waitcnt vmcnt(0)\nv_cmp_ne_u64 vcc, {s(sN,2)}, {v(vD,2)}\ns_cbranch_vccz {qok}")
    poll("", qld, 32)
    a(f"{qok}:")
    vm.q = []
    stage1()
    pf.stamp(2)
    a("s_waitcnt vmcnt(0)\ns_barrier")
    pf.stamp(8)
    for st in range(1, 4):
        kv(st); vm.op("s2", 8)
    rL = G["rL"]
    HS = V.alloc(24, 4)
    a.c("all-ones marker into this workgroup's own O slots; H tile SRDs")
    a(f"""
    s_lshl_b32 {s(sT0)}, {s(sR8)}, 3
    s_lshl_b32 {s(sT1)}, {s(sA)}, 1
    s_add_u32 {s(sT0)}, {s(sT0)}, {s(sT1)}
    s_mul_i32 {s(sT0)}, {s(sT0)}, {A3_TSTRIDE}
    s_lshl_b32 {s(sT1)}, {s(sH)}, 10
    s_add_u32 {s(sT0)}, {s(sT0)}, {s(sT1)}
    s_add_u32 {s(sU[5])}, {s(sT0)}, {WS_A3}
    s_add_u32 {s(sU[6])}, {s(sU[5])}, {A3_TSTRIDE}
    """)
    for i in range(4): a(f"v_mov_b32 {v(vD+i)}, -1")
    a(f"""
    buffer_store_dwordx4 {v(vD,4)}, {v(vL16)}, {s(rWS,4)}, {s(sU[5])} offen{SC}
    buffer_store_dwordx4 {v(vD,4)}, {v(vL16)}, {s(rWS,4)}, {s(sU[6])} offen{SC}
    s_mul_i32 {s(sT1)}, {s(sRB)}, {2*A3_TSTRIDE}
    s_add_u32 {s(sT1)}, {s(sT1)}, {WS_A3 + 32*1024}
    s_add_u32 {s(rC)}, {s(rWS)}, {s(sT1)}
    s_addc_u32 {s(rC+1)}, {s(rWS+1)}, 0
    s_mov_b32 {s(rC+2)}, {86*1024}
    s_add_u32 {s(rL)}, {s(rC)}, {A3_TSTRIDE}
    s_addc_u32 {s(rL+1)}, {s(rC+1)}, 0
    s_mov_b32 {s(rL+2)}, {86*1024}
    s_mov_b32 {s(rL+3)}, 0x00020000
    """)
    vm.op("sent", 2)
    a.c("H tiles: staging -> global; wave a: token tile a&1, column steps 6*(a>>1)..")
    a(f"""
    s_and_b32 {s(sT0)}, {s(sA)}, 1
    s_mul_i32 {s(sT1)}, {s(sT0)}, 12288
    s_lshr_b32 {s(sT2)}, {s(sA)}, 1
    s_mul_i32 {s(sT2)}, {s(sT2)}, 6144
    s_add_u32 {s(sT1)}, {s(sT1)}, {s(sT2)}
    s_add_u32 {s(sT1)}, {s(sT1)}, {STG + 8192}
    v_add_u32 {v(vT[0])}, {s(sT1)}, {v(vL16)}
    """)
    for i in range(6): a(f"ds_read_b128 {v(HS+4*i,4)}, {v(vT[0])} offset:{1024*i}")
    a(f"""
    s_mul_i32 {s(sT1)}, {s(sCB)}, 12288
    s_add_u32 {s(sT2)}, {s(sT2)}, {s(sT1)}
    s_mul_i32 {s(sT1)}, {s(sT0)}, {A3_TSTRIDE}
    s_add_u32 {s(rB)}, {s(rC)}, {s(sT1)}
    s_addc_u32 {s(rB+1)}, {s(rC+1)}, 0
    s_mov_b32 {s(rB+2)}, {86*1024}
    s_add_u32 {s(sT1)}, {s(sT2)}, 4096
    s_waitcnt lgkmcnt(0)
    """)
    for i in range(6):
        a(f"buffer_store_dwordx4 {v(HS+4*i,4)}, {v(vL16)}, {s(rB,4)}, {s(sT2 if i < 4 else sT1)} offen offset:{1024*(i%4)}{SC}")
    vm.op("hst", 6)
    a.c("L2 warm-up of W2 / Wo column block (1/8 share)")
    a(f"""
    s_mov_b32 {s(rA)}, s16
    s_mov_b32 {s(rA+1)}, s17
    s_mov_b32 {s(rA+2)}, {1376*1024}
    s_mul_i32 {s(sT0)}, {s(sI8)}, 172
    s_mul_i32 {s(sT1)}, {s(sA)}, 43
    s_add_u32 {s(sT0)}, {s(sT0)}, {s(sT1)}
    v_min_u32 {v(vT[0])}, 42, {v(vL)}
    v_add_u32 {v(vT[0])}, {s(sT0)}, {v(vT[0])}
    v_lshlrev_b32 {v(vT[0])}, 10, {v(vT[0])}
    s_lshl_b32 {s(sT1)}, {s(sCB)}, 7
    buffer_load_dword {v(vT[3])}, {v(vT[0])}, {s(rA,4)}, {s(sT1)} offen
    """)
    vm.op("pf", 1)
    vm.wait("s2", "sent")
    a("s_barrier")
    setflag(FLAG_O, sR8, 5, sH, 32)
    vm.wait("hst")
    a(f"s_lshl_b32 {s(sT3)}, {s(sCB)}, 2\ns_add_u32 {s(sT3)}, {s(sT3)}, {s(sA)}")
    setflag(FLAG_H, sRB, 3, sT3, 8, allw=True)
    pf.stamp(3)
    poll(f"v_lshlrev_b32 {v(vT[0])}, 3, {v(vL)}", f"buffer_load_dwordx2 {v(vD,2)}, {v(vT[0])}, {s(rWS,4)}, {s(sLH)} offen{SC}", 32)
    pf.stamp(7)
    ACC = [[V.alloc(16, 4), V.alloc(16, 4)], [V.alloc(16, 4), V.alloc(16, 4)]]
    HB = [V.alloc(8, 4) for _ in range(4)]; WB = [HS, HS + 8]
    vRa = vW1[0]; vRb = vW1[1]
    sHo, sWo, sSt, sNI = sU[1], sU[2], sU[3], sU[4]
    a.c("---------------- FFN2 in the shadow of attention")
    a(f"""
    s_mul_i32 {s(sHo)}, {s(sA)}, {24*1024}
    s_mul_i32 {s(sWo)}, {s(sA)}, {24*16*1024}
    s_lshl_b32 {s(sT2)}, {s(sCB)}, 7
    s_add_u32 {s(sWo)}, {s(sWo)}, {s(sT2)}
    s_lshl_b32 {s(sSt)}, {s(sA)}, 13
    s_add_u32 {s(sSt)}, {s(sSt)}, {STG}
    s_cmp_eq_u32 {s(sA)}, 3
    s_cselect_b32 {s(sNI)}, {min(4, opt("ffnit", 6))}, {opt("ffnit", 6)}
    v_lshrrev_b32 {v(vT[0])}, 5, {v(vL)}
    v_bfe_u32 {v(vT[1])}, {v(vL)}, 2, 2
    v_lshl_add_u32 {v(vT[1])}, {v(vT[0])}, 2, {v(vT[1])}
    v_lshlrev_b32 {v(vT[1])}, 7, {v(vT[1])}
    v_bfe_u32 {v(vT[0])}, {v(vL)}, 3, 1
    v_lshl_add_u32 {v(vT[1])}, {v(vT[0])}, 6, {v(vT[1])}
    v_bfe_u32 {v(vT[0])}, {v(vL)}, 4, 1
    v_lshl_add_u32 {v(vT[1])}, {v(vT[0])}, 5, {v(vT[1])}
    v_and_b32 {v(vT[0])}, 3, {v(vL)}
    v_lshl_add_u32 {v(vT[1])}, {v(vT[0])}, 3, {v(vT[1])}
    v_add_u32 {v(vRa)}, {s(sSt)}, {v(vT[1])}
    v_xor_b32 {v(vRb)}, 64, {v(vRa)}
    """)
    def f_issue(sl):
        a(f"""
        s_add_u32 m0, {s(sSt)}, {sl*2048}
        buffer_load_dwordx4 {v(HB[sl],4)}, {v(vL16)}, {s(rC,4)}, {s(sHo)} offen{SCL}
        buffer_load_dwordx4 {v(HB[sl]+4,4)}, {v(vL16)}, {s(rL,4)}, {s(sHo)} offen{SCL}
        buffer_load_dwordx4 {v(vWo[0])}, {s(rA,4)}, {s(sWo)} offen lds
        buffer_load_dwordx4 {v(vWo[1])}, {s(rA,4)}, {s(sWo)} offen offset:1024 lds
        s_add_u32 {s(sHo)}, {s(sHo)}, 1024
        s_add_u32 {s(sWo)}, {s(sWo)}, 16384
        """)
    for sl in range(3): f_issue(sl)
    for m in range(2):
        for n in range(2):
            for i in range(16): a(f"v_mov_b32 {v(ACC[m][n]+i)}, 0")
    FL = a.label("X_FFN2")
    a(f"s_mov_b32 {s(sIt)}, 0\n{FL}:")
    for sl in range(4):
        a("s_waitcnt vmcnt(8)")
        w = WB[sl % 2]
        for n, va in enumerate((vRa, vRb)):
            for j in range(2):
                a(f"ds_read_b64_tr_b16 {v(w+4*n+2*j,2)}, {v(va)} offset:{sl*2048 + j*1024}")
        f_issue((sl + 3) % 4)
        a("s_waitcnt lgkmcnt(0)")
        for m in range(2):
            for n in range(2):
                a(f"{MFMA} {v(ACC[m][n],16)}, {v(w+4*n,4)}, {v(HB[sl]+4*m,4)}, {v(ACC[m][n],16)}")
    a(f"""
    s_add_u32 {s(sIt)}, {s(sIt)}, 1
    s_cmp_lt_u32 {s(sIt)}, {s(sNI)}
    s_cbranch_scc1 {FL}
    """)
    if opt("tpf", 1):
        a.c("refresh the closing code in L2 (speed only)")
        a(f"""
        s_getpc_b64 s[10:11]
        X_here:
        s_add_u32 s10, s10, M_TAIL-X_here
        s_addc_u32 s11, s11, -1
        v_lshlrev_b32 {v(vT[0])}, 7, {v(vL)}
        s_mov_b64 exec, {(1 << opt("tpfl", 28)) - 1}
        global_load_dword {v(vT[1])}, {v(vT[0])}, s[10:11]
        s_mov_b64 exec, -1
        """)
    a.c("every producer of this tile's O slots has put its markers in place")
    poll(f"v_lshlrev_b32 {v(vT[0])}, 3, {v(vL)}\ns_add_u32 {s(sT0)}, {s(sLH)}, 65536", f"buffer_load_dwordx2 {v(vD,2)}, {v(vT[0])}, {s(rWS,4)}, {s(sT0)} offen{SC}", 32)
    a.c("FFN2 partial a lives at 40K (a = 0) or 48K + 16K*a, as [row][chunk ^ (row&15)] fp32")
    a(f"""
    s_lshl_b32 {s(sT1)}, {s(sA)}, 14
    s_add_u32 {s(sT2)}, {s(sT1)}, 49152
    s_cmp_eq_u32 {s(sA)}, 0
    s_cselect_b32 {s(sT2)}, {BASE}, {s(sT2)}
    v_and_b32 {v(vT[0])}, 31, {v(vL)}
    v_lshrrev_b32 {v(vT[2])}, 5, {v(vL)}
    v_and_b32 {v(vT[3])}, 15, {v(vL)}
    v_xor_b32 {v(vT[2])}, {v(vT[2])}, {v(vT[3])}
    v_lshlrev_b32 {v(vT[2])}, 4, {v(vT[2])}
    v_lshl_add_u32 {v(vT[0])}, {v(vT[0])}, 8, {v(vT[2])}
    v_add_u32 {v(vT[0])}, {s(sT2)}, {v(vT[0])}
    s_mov_b32 {s(rB)}, s8
    s_mov_b32 {s(rB+1)}, s9
    s_mov_b32 {s(rB+2)}, {512*1024}
    s_lshl_b32 {s(sT0)}, {s(sA)}, 16
    s_lshl_b32 {s(sT2)}, {s(sCB)}, 7
    s_add_u32 {s(sT0)}, {s(sT0)}, {s(sT2)}
    s_lshl_b32 {s(sT1)}, {s(sA)}, 13
    v_add_u32 {v(vT[1])}, {s(sT1)}, {v(vL16)}
    """)
    a.c("Wo column block: rows 0..255 -> staging now, rows 256..511 wait in registers until the K area is free")
    for i in range(4):
        a(f"""
        s_add_u32 m0, {s(sSt)}, {i*2048}
        s_add_u32 {s(sT2)}, {s(sT0)}, {i*16384}
        buffer_load_dwordx4 {v(vWo[0])}, {s(rB,4)}, {s(sT2)} offen lds
        buffer_load_dwordx4 {v(vWo[1])}, {s(rB,4)}, {s(sT2)} offen offset:1024 lds
        s_add_u32 {s(sT2)}, {s(sT2)}, {256*1024}
        buffer_load_dwordx4 {v(HB[i],4)}, {v(vWo[0])}, {s(rB,4)}, {s(sT2)} offen
        buffer_load_dwordx4 {v(HB[i]+4,4)}, {v(vWo[1])}, {s(rB,4)}, {s(sT2)} offen offset:1024
        """)
    a("s_waitcnt vmcnt(0)")
    pf.stamp(9)
    CTR = 32768
    a(f"v_mov_b32 {v(vT[4])}, {CTR}\nv_mov_b32 {v(vT[5])}, 0\ns_setprio 3\ns_barrier")
    pf.stamp(5, "tail")
    a(f"ds_write_b32 {v(vT[4])}, {v(vT[5])}")
    for i in range(8):
        a(f"ds_write_b128 {v(vT[1])}, {v(HB[i//2]+4*(i%2),4)} offset:{i*1024}")
    a("s_waitcnt lgkmcnt(0)\ns_barrier\ns_setprio 1")
    if opt("prw", 1): a("s_barrier")
    for n in range(2):
        for gq in range(4):
            a(f"v_xor_b32 {v(vT[2 + gq%2])}, {128*n + 32*gq}, {v(vT[0])}")
            for m in range(2):
                a(f"ds_write_b128 {v(vT[2 + gq%2])}, {v(ACC[m][n]+4*gq,4)} offset:{m*8192}")
    a.c("sum of the four partials: wave a rows 16a..16a+15, lane -> row l/4, chunks 4*(l&3)..")
    a(f"""
    v_lshrrev_b32 {v(vT[0])}, 2, {v(vL)}
    v_and_b32 {v(vT[1])}, 3, {v(vL)}
    v_lshlrev_b32 {v(vT[1])}, 2, {v(vT[1])}
    v_xor_b32 {v(vT[1])}, {v(vT[1])}, {v(vT[0])}
    v_lshlrev_b32 {v(vT[1])}, 4, {v(vT[1])}
    v_lshl_add_u32 {v(vT[0])}, {v(vT[0])}, 8, {v(vT[1])}
    s_lshl_b32 {s(sT1)}, {s(sA)}, 12
    s_add_u32 {s(sT1)}, {s(sT1)}, {BASE}
    v_add_u32 {v(vT[0])}, {s(sT1)}, {v(vT[0])}
    v_xor_b32 {v(vT[1])}, 16, {v(vT[0])}
    v_xor_b32 {v(vT[2])}, 32, {v(vT[0])}
    v_xor_b32 {v(vT[3])}, 48, {v(vT[0])}
    s_waitcnt lgkmcnt(0)
    """)
    pf.stamp(6, "tail")
    SP = a.label("X_sp")
    a(f"""
    v_mov_b32 {v(vT[5])}, 1
    s_mov_b64 exec, 1
    ds_add_u32 {v(vT[4])}, {v(vT[5])}
    {SP}:
    ds_read_b32 {v(vT[5])}, {v(vT[4])}
    s_waitcnt lgkmcnt(0)
    v_cmp_ne_u32 vcc, 4, {v(vT[5])}
    s_cbranch_vccnz {SP}
    s_mov_b64 exec, -1
    """)
    Z = ACC[0][0]
    for p, off in enumerate((0, 65536 - BASE, 81920 - BASE, 98304 - BASE)):
        for i in range(4):
            a(f"ds_read_b128 {v(Z + 16*p + 4*i,4)}, {v(vT[i])} offset:{off}")
        if p == 2: a("s_waitcnt lgkmcnt(4)")
    for i in range(16): a(f"v_add_f32 {v(Z+i)}, {v(Z+i)}, {v(Z+16+i)}")
    a("s_waitcnt lgkmcnt(0)")
    for i in range(16): a(f"v_add_f32 {v(Z+32+i)}, {v(Z+32+i)}, {v(Z+48+i)}")
    for i in range(16): a(f"v_add_f32 {v(Z+i)}, {v(Z+i)}, {v(Z+32+i)}")
    for i in range(4): a(f"ds_write_b128 {v(vT[i])}, {v(Z+4*i,4)}")
    a("s_waitcnt lgkmcnt(0)\ns_barrier")
    pf.finish(vT[0], vT[1], sW)
    return V.hi

def main():
    head = open("cdna_kernels/" + NAME + ".s.ref").read().split("\n")
    hdr = [l for l in head if l.startswith(";") and "@launch" not in l and "Override launch" not in l and "grid=ceil" not in l]
    a = Asm()
    out = "\n".join(hdr) + "\n; @launch grid=(256,1,1) block=(768,1,1) lds=163840\n"
    out += '.amdgcn_target "amdgcn-amd-amdhsa--gfx950"\n.text\n'
    vh, sh = gen(a)
    print("vgpr", vh, "sgpr", sh, file=sys.stderr)
    out += a.text() + '.section .rodata,"a"\n.p2align 6\n' + kernel_desc(KNAME, vh, sh)
    args = [x for x in sys.argv[1:] if x.endswith(".s")]
    dst = args[0] if args else "cdna_kernels/" + NAME + ".s"
    open(dst, "w").write(out)

main()
```

```python
import sys, struct
from asmlib import *

NAME = "parallel_sum__softmax_full_mha__dense_activation_gelu__prompt"
KNAME = NAME + "_kernel"
def opt(name, default):
    for x in sys.argv:
        if x.startswith(name + "="): return int(x.split("=")[1], 0)
    return default
WS_BASE = opt("wsbase", 0)
WS_Q, WS_K, WS_V, WS_A3 = WS_BASE, WS_BASE + 0x200000, WS_BASE + 0x400000, WS_BASE + 0x600000
A3_STEPS = 118
A3_TSTRIDE = A3_STEPS * 1024
WS_FLAG = WS_A3 + 64 * A3_TSTRIDE
FLAG_Q, FLAG_H, FLAG_O = WS_FLAG, WS_FLAG + 65536, WS_FLAG + 131072
WS_EPOCH = WS_FLAG + 196608
WS_END = WS_EPOCH + 256
LOG2E = 1.4426950408889634
PROF = "prof" in sys.argv
WS_PROF = 0x2000000
def f32(x): return "0x%08x" % struct.unpack("<I", struct.pack("<f", x))[0]
SC = " sc1"
SCQ = {0: " sc1", 1: "", 2: " nt", 3: " sc0 sc1", 4: " sc1 nt"}[opt("scq", 0)]
SCL = " sc1" if opt("scl", 1) else ""
XNT = " nt" if opt("xnt",0) else ""
WNT = " nt" if opt("wnt",0) else ""

class Cnt:
    def __init__(self, a, name, maxv):
        self.a, self.name, self.maxv, self.q = a, name, maxv, []
    def op(self, tag, n=1):
        self.q += [tag] * n
    def wait(self, *tags):
        idx = max((i for i, t in enumerate(self.q) if t in tags), default=-1)
        if idx < 0: return
        n = len(self.q) - 1 - idx
        self.a(f"s_waitcnt {self.name}({min(n, self.maxv)})")
        self.q = self.q[idx + 1:] if n <= self.maxv else self.q[len(self.q) - self.maxv:]
    def all(self):
        self.a(f"s_waitcnt {self.name}(0)")
        self.q = []

class Prof:
    def __init__(self, a, S, n):
        self.a, self.n = a, n
        if PROF:
            self.t = [S.alloc(2, 2) for _ in range(n)]
            self.rt = [S.alloc(2, 2) for _ in range(2)]
            self.r = S.alloc(4, 4)
    def start(self):
        if PROF:
            self.a(f"s_memrealtime {s(self.rt[0],2)}")
            for t in self.t: self.a(f"s_mov_b64 {s(t,2)}, 0")
            self.stamp(0)
    def stamp(self, i, kind="std"):
        mode = "fine" if "fine" in sys.argv else ("early" if "early" in sys.argv else ("tail" if "tail" in sys.argv else "std"))
        if PROF and (kind == mode or i in (0, self.n - 1)):
            self.a(f"s_memtime {s(self.t[i],2)}")
    def finish(self, vt, vt2, wave_s):
        if not PROF: return
        a = self.a
        a("s_waitcnt vmcnt(0)")
        self.stamp(self.n - 1)
        a(f"s_memrealtime {s(self.rt[1],2)}\ns_waitcnt lgkmcnt(0)")
        a(f"s_load_dwordx2 {s(self.r,2)}, s[0:1], 80\ns_waitcnt lgkmcnt(0)")
        a(f"s_mov_b32 {s(self.r+2)}, 0x4000000\ns_mov_b32 {s(self.r+3)}, 0x00020000")
        o = self.rt[0] + 1
        a(f"s_lshl_b32 {s(o)}, s2, 4\ns_add_u32 {s(o)}, {s(o)}, {s(wave_s)}\ns_lshl_b32 {s(o)}, {s(o)}, 6\ns_add_u32 {s(o)}, {s(o)}, {WS_PROF}")
        a(f"s_mov_b64 exec, 1\nv_mov_b32 {v(vt)}, {s(o)}")
        for j, r in enumerate([self.rt[0], self.rt[1]] + self.t):
            a(f"v_mov_b32 {v(vt2)}, {s(r)}\nbuffer_store_dword {v(vt2)}, {v(vt)}, {s(self.r,4)}, 0 offen offset:{4*j}\ns_nop 1")

def srd(a, d, lo, hi, size):
    a(f"s_mov_b32 {s(d)}, {lo}\ns_mov_b32 {s(d+1)}, {hi}\ns_mov_b32 {s(d+2)}, {size}\ns_mov_b32 {s(d+3)}, 0x00020000")

MFMA = "v_mfma_f32_32x32x16_bf16"
SMF = "v_smfmac_f32_32x32x32_bf16"
RING = 65536; SLOT = 24576
ROT = 2
DPOS = opt("dpos", 8)
SEQ = [("c", k) for k in range(8)]
SEQ = SEQ[:DPOS] + [("d", 0)] + SEQ[DPOS:] + [("d", k) for k in range(1, 8)]
if DPOS >= 8: SEQ = [("c", k) for k in range(8)] + [("d", k) for k in range(8)]
LASTC = max(p for p, it in enumerate(SEQ) if it[0] == "c")
FIRSTD = min(p for p, it in enumerate(SEQ) if it[0] == "d")
def plan():
    slot, issue = {}, {}
    free = {0: -1, 1: -1, 2: -1, 3: -1}
    order = list(range(16))
    if DPOS < 8:
        order = [0, 1, 2, FIRSTD] + [p for p in range(3, 16) if p != FIRSTD]
    for n, p in enumerate(order):
        sl = min(free, key=lambda k: (free[k], k))
        slot[p] = sl
        issue[p] = free[sl] if n >= opt("ninit", 2) else -2
        if issue[p] == -1: issue[p] = 0
        assert issue[p] < p, (p, issue[p])
        free[sl] = p + 1
    return slot, issue, order
SLOTOF, ISSUE, IORDER = plan()
BASE = 40960
STG = 131072
QFLAG_CHUNK = opt("qflag", 13)

def gen(a):
    S = Regs("s", 24, 102)
    kernel_header(a, KNAME)
    END = a.label("END"); AUX = a.label("AUX")
    pf = Prof(a, S, 14 if not opt("lin", 0) else 14)
    sW, sRB, sCB, sH, sR8, sT0, sT1, sT2, sT3, sIt = [S.alloc() for _ in range(10)]
    rWS = S.alloc(4, 4); rA = S.alloc(4, 4); rB = S.alloc(4, 4); rC = S.alloc(4, 4)
    rL = pf.r if PROF else S.alloc(4, 4)
    sU = [S.alloc() for _ in range(10)]
    sMask = S.alloc(2, 2); sK = S.alloc(2, 2)
    a(f"""
    s_cmp_ge_u32 s2, 256
    s_cbranch_scc1 {END}
    """)
    pf.start()
    if opt("dbgclk", 0): a("s_memtime s[96:97]\ns_memrealtime s[98:99]")
    a(f"""
    s_load_dwordx4 s[4:7], s[0:1], 0
    s_load_dwordx2 s[8:9], s[0:1], 16
    s_load_dwordx8 s[12:19], s[0:1], 32
    s_load_dwordx4 s[20:23], s[0:1], 64
    s_load_dwordx2 {s(rWS,2)}, s[0:1], 80
    v_lshrrev_b32 v1, 6, v0
    v_and_b32 v2, 63, v0
    v_readfirstlane_b32 {s(sW)}, v1
    s_and_b32 {s(sT0)}, s2, 7
    s_lshr_b32 {s(sT1)}, s2, 3
    s_and_b32 {s(sRB)}, {s(sT0)}, 3
    s_lshl_b32 {s(sRB)}, {s(sRB)}, 3
    s_and_b32 {s(sT2)}, {s(sT1)}, 7
    s_add_u32 {s(sRB)}, {s(sRB)}, {s(sT2)}
    s_and_b32 {s(sCB)}, {s(sT0)}, 4
    s_lshr_b32 {s(sT2)}, {s(sT1)}, 3
    s_add_u32 {s(sCB)}, {s(sCB)}, {s(sT2)}
    s_lshl_b32 {s(sH)}, {s(sT0)}, 2
    s_and_b32 {s(sT2)}, {s(sT1)}, 3
    s_add_u32 {s(sH)}, {s(sH)}, {s(sT2)}
    s_lshr_b32 {s(sR8)}, {s(sT1)}, 2
    s_mov_b32 {s(rWS+2)}, {WS_END}
    s_mov_b32 {s(rWS+3)}, 0x00020000
    """)
    if opt("cpf", 1):
        a.c("pull this kernel's code into L2 (speed only): every wave touches a few lines")
        NL = opt("cpfl", 160)
        a(f"""
        s_getpc_b64 s[10:11]
        s_mul_i32 {s(sT2)}, {s(sT1)}, 12
        s_add_u32 {s(sT2)}, {s(sT2)}, {s(sW)}
        s_mul_i32 {s(sT3)}, {s(sT2)}, {(65536 + NL - 1) // NL}
        s_lshr_b32 {s(sT3)}, {s(sT3)}, 16
        s_mul_i32 {s(sT3)}, {s(sT3)}, {NL}
        s_sub_u32 {s(sT2)}, {s(sT2)}, {s(sT3)}
        s_lshl_b32 {s(sT2)}, {s(sT2)}, 7
        v_mov_b32 v1, {s(sT2)}
        s_mov_b64 exec, 1
        global_load_dword v1, v1, s[10:11]
        s_mov_b64 exec, -1
        """)
    a(f"""
    s_cmp_ge_u32 {s(sW)}, 8
    s_cbranch_scc1 {AUX}
    """)
    vmax = 0
    vmax = max(vmax, gen_main(a, locals()))
    a(f"{AUX}:")
    vmax = max(vmax, gen_aux(a, locals()))
    a(f"{END}:\ns_endpgm")
    a(".fill 512, 4, 0xbf810000")
    return vmax, (102 if opt("dbgclk", 0) else S.hi)

def gen_main(a, G):
    g = lambda n: G[n]
    pf, sW, sRB, sCB, sH, sR8, sT0, sT1, sT2, sT3, sIt = [g(n) for n in "pf sW sRB sCB sH sR8 sT0 sT1 sT2 sT3 sIt".split()]
    rWS, rA, rB, rC, sU, sMask, sK, END = [g(n) for n in "rWS rA rB rC sU sMask sK END".split()]
    V = Regs("v", 3, 168)
    vL = 2
    vm = Cnt(a, "vmcnt", 63); lg = Cnt(a, "lgkmcnt", 15)
    vT = [V.alloc() for _ in range(8)]
    vBias = [V.alloc(4, 4), V.alloc(4, 4)]
    vOneB = V.alloc(4, 4)
    XA = [V.alloc() for _ in range(8)]; WA = [V.alloc(), V.alloc()]
    F = [V.alloc(12, 4) for _ in range(4)]
    ACC1 = [V.alloc(16, 4), V.alloc(16, 4)]; ACC2 = [V.alloc(16, 4), V.alloc(16, 4)]
    P = V.alloc(16, 4)
    vDum = V.alloc(4, 2)
    X = ACC1[0]
    sMT, sNH, sHI = sU[0], sU[1], sU[2]
    a.c("---------------- main waves: x rows -> LayerNorm -> xn in LDS")
    a(f"""
    v_lshrrev_b32 {v(vT[0])}, 3, {v(vL)}
    v_and_b32 {v(vT[1])}, 7, {v(vL)}
    s_lshl_b32 {s(sT0)}, {s(sRB)}, 6
    s_lshl_b32 {s(sT1)}, {s(sW)}, 3
    s_add_u32 {s(sT0)}, {s(sT0)}, {s(sT1)}
    s_lshl_b32 {s(sT0)}, {s(sT0)}, 10
    v_lshlrev_b32 {v(vT[2])}, 10, {v(vT[0])}
    v_lshl_add_u32 {v(vT[2])}, {v(vT[1])}, 4, {v(vT[2])}
    s_and_b32 {s(sMT)}, {s(sW)}, 1
    s_lshr_b32 {s(sNH)}, {s(sW)}, 1
    s_and_b32 {s(sNH)}, {s(sNH)}, 1
    s_lshr_b32 {s(sHI)}, {s(sW)}, 2
    s_mov_b32 {s(rA+2)}, {2048*1024}
    s_mov_b32 {s(rA+3)}, 0x00020000
    s_mov_b32 {s(rB+2)}, 2752
    s_mov_b32 {s(rB+3)}, 0x00020000
    """)
    pf.stamp(1, "early")
    a(f"""
    s_waitcnt lgkmcnt(0)
    s_mov_b32 {s(rA)}, s4
    s_mov_b32 {s(rA+1)}, s5
    s_mov_b32 {s(rB)}, s14
    s_mov_b32 {s(rB+1)}, s15
    """)
    if opt("tlb", 0):
        a.c("one gather that touches every buffer, so that all address translations are fetched together (speed only)")
        TA = P + 12
        a(f"v_mov_b64 {v(TA,2)}, s[4:5]")
        for i, pr in enumerate(["s[6:7]", "s[12:13]", "s[14:15]", s(rWS,2), "s[22:23]", "s[16:17]", "s[8:9]", "s[18:19]", "s[20:21]"]):
            a(f"s_mov_b64 exec, {2 << i}\nv_mov_b64 {v(TA,2)}, {pr}")
        a(f"s_mov_b64 exec, 0x3ff\nglobal_load_dword {v(vDum)}, {v(TA,2)}, off\ns_mov_b64 exec, -1"); vm.op("tlb")
    pf.stamp(2, "early")
    for i in range(8):
        a(f"buffer_load_dwordx4 {v(X+4*i,4)}, {v(vT[2])}, {s(rA,4)}, {s(sT0)} offen offset:{128*i}{XNT}"); vm.op(f"x{i}")
    pf.stamp(3, "early")
    a.c("bias fragments: column = 192cb + 64g + 32nh + l%32 (g = 0,1 for waves 0-3, g = 2 for waves 4-7); upper half-wave reads out of range -> 0")
    a(f"""
    s_mul_i32 {s(sT1)}, {s(sCB)}, 192
    s_lshl_b32 {s(sT2)}, {s(sHI)}, 7
    s_add_u32 {s(sT1)}, {s(sT1)}, {s(sT2)}
    s_lshl_b32 {s(sT2)}, {s(sNH)}, 5
    s_add_u32 {s(sU[3])}, {s(sT1)}, {s(sT2)}
    v_and_b32 {v(vT[3])}, 31, {v(vL)}
    v_and_b32 {v(vT[4])}, 32, {v(vL)}
    v_lshl_add_u32 {v(vT[4])}, {v(vT[4])}, 16, {v(vT[3])}
    v_add_u32 {v(vT[4])}, {s(sU[3])}, {v(vT[4])}
    v_lshlrev_b32 {v(vT[4])}, 1, {v(vT[4])}
    buffer_load_ushort {v(vBias[0])}, {v(vT[4])}, {s(rB,4)}, 0 offen
    buffer_load_ushort {v(vBias[1])}, {v(vT[4])}, {s(rB,4)}, 0 offen offset:128
    """)
    vm.op("b", 2)
    pf.stamp(4, "early")
    a("s_barrier")
    pf.stamp(5, "early")
    sColF = sU[3]
    a.c("LDS addresses for the GEMM phases")
    a(f"""
    v_lshrrev_b32 {v(vT[4])}, 5, {v(vL)}
    v_and_b32 {v(vT[5])}, 15, {v(vL)}
    v_xor_b32 {v(vT[6])}, {v(vT[5])}, {v(vT[4])}
    s_lshl_b32 {s(sT1)}, {s(sMT)}, 15
    v_lshl_add_u32 {v(vT[7])}, {v(vT[3])}, 10, {s(sT1)}
    v_lshl_add_u32 {v(XA[0])}, {v(vT[6])}, 4, {v(vT[7])}
    """)
    for q in range(1, 4 if ROT else 8):
        a(f"v_xor_b32 {v(XA[q])}, {32*q}, {v(XA[0])}")
    sKc = sU[9]
    if ROT:
        a.c("k-chunks are visited in an order rotated by workgroup, so that neighbours fetch different weight rows first")
        a(f"s_and_b32 {s(sKc)}, {s(sRB)}, 7\ns_lshl_b32 {s(sKc)}, {s(sKc)}, 7")
    a(f"""
    v_lshrrev_b32 {v(vT[5])}, 2, {v(vT[5])}
    v_lshl_add_u32 {v(vT[5])}, {v(vT[4])}, 3, {v(vT[5])}
    v_lshlrev_b32 {v(vT[5])}, 7, {v(vT[5])}
    v_and_b32 {v(vT[6])}, 1, {v(vT[0])}
    v_xor_b32 {v(vT[6])}, {s(sNH)}, {v(vT[6])}
    v_lshl_add_u32 {v(vT[5])}, {v(vT[6])}, 6, {v(vT[5])}
    v_bfe_u32 {v(vT[6])}, {v(vL)}, 4, 1
    v_lshl_add_u32 {v(vT[5])}, {v(vT[6])}, 5, {v(vT[5])}
    v_and_b32 {v(vT[6])}, 3, {v(vL)}
    v_lshl_add_u32 {v(vT[5])}, {v(vT[6])}, 3, {v(vT[5])}
    s_lshl_b32 {s(sT1)}, {s(sHI)}, 14
    s_add_u32 {s(sT1)}, {s(sT1)}, {RING}
    v_add_u32 {v(WA[0])}, {s(sT1)}, {v(vT[5])}
    v_add_u32 {v(WA[1])}, {2*SLOT}, {v(WA[0])}
    v_mov_b32 {v(vOneB)}, 0x3f80
    """)
    for r in (vBias[0], vBias[1], vOneB):
        for i in range(1, 4): a(f"v_mov_b32 {v(r+i)}, 0")
    a.c("xn write addresses: row = 8w + l/8")
    vWr = [vT[3], vT[4]]; vS = [F[0], F[0]+1, F[0]+2, F[0]+3]; vOnes = vT[5]; RN = F[0] + 4
    a(f"""
    s_lshl_b32 {s(sT1)}, {s(sW)}, 3
    v_add_u32 {v(vT[6])}, {s(sT1)}, {v(vT[0])}
    v_and_b32 {v(vT[7])}, 15, {v(vT[6])}
    v_xor_b32 {v(vT[7])}, {v(vT[7])}, {v(vT[1])}
    v_lshlrev_b32 {v(vT[7])}, 4, {v(vT[7])}
    v_lshl_add_u32 {v(vWr[0])}, {v(vT[6])}, 10, {v(vT[7])}
    v_xor_b32 {v(vWr[1])}, 128, {v(vWr[0])}
    v_mov_b32 {v(vOnes)}, 0x3f803f80
    """)
    for i in range(4): a(f"v_mov_b32 {v(vS[i])}, 0")
    pf.stamp(1); pf.stamp(6, "early")
    for i in range(8):
        vm.wait(f"x{i}")
        if i == 0: pf.stamp(7, "early")
        if i == 7: pf.stamp(8, "early")
        for d in range(4):
            r = X + 4*i + d
            a(f"v_dot2_f32_bf16 {v(vS[d%2])}, {v(r)}, {v(vOnes)}, {v(vS[d%2])}")
            a(f"v_dot2_f32_bf16 {v(vS[2+d%2])}, {v(r)}, {v(r)}, {v(vS[2+d%2])}")
    pf.stamp(2)
    a(f"""
    s_nop 2
    v_add_f32 {v(vS[0])}, {v(vS[0])}, {v(vS[1])}
    v_add_f32 {v(vS[2])}, {v(vS[2])}, {v(vS[3])}
    """)
    for m in ("quad_perm:[1,0,3,2]", "quad_perm:[2,3,0,1]", "row_half_mirror"):
        a(f"""
        s_nop 1
        v_add_f32_dpp {v(vS[0])}, {v(vS[0])}, {v(vS[0])} {m} row_mask:0xf bank_mask:0xf
        v_add_f32_dpp {v(vS[2])}, {v(vS[2])}, {v(vS[2])} {m} row_mask:0xf bank_mask:0xf
        """)
    vMean, vVar = vS[0], vS[2]
    a(f"""
    v_mul_f32 {v(vMean)}, {f32(1/512)}, {v(vMean)}
    v_mul_f32 {v(vVar)}, {f32(1/512)}, {v(vVar)}
    v_fma_f32 {v(vVar)}, -{v(vMean)}, {v(vMean)}, {v(vVar)}
    v_max_f32 {v(vVar)}, 0, {v(vVar)}
    v_cvt_pk_bf16_f32 {v(vMean)}, -{v(vMean)}, {v(vVar)}
    v_and_b32 {v(vVar)}, 0xffff0000, {v(vMean)}
    v_add_f32 {v(vVar)}, {f32(1e-5)}, {v(vVar)}
    v_cvt_pk_bf16_f32 {v(vVar)}, {v(vVar)}, {v(vVar)}
    v_and_b32 {v(vVar)}, 0xffff0000, {v(vVar)}
    v_sqrt_f32 {v(vVar)}, {v(vVar)}
    v_lshlrev_b32 {v(vMean)}, 16, {v(vMean)}
    v_cvt_pk_bf16_f32 {v(vVar)}, {v(vVar)}, {v(vVar)}
    v_and_b32 {v(vVar)}, 0xffff0000, {v(vVar)}
    v_rcp_f32 {v(RN)}, {v(vVar)}
    s_nop 0
    v_mul_f32 {v(RN+1)}, {v(vMean)}, {v(RN)}
    """)
    TT = F[1]
    for i in range(8):
        for d in range(4):
            r = X + 4*i + d
            a(f"v_lshlrev_b32 {v(TT+2*d)}, 16, {v(r)}\nv_and_b32 {v(TT+2*d+1)}, 0xffff0000, {v(r)}")
        for d in range(4):
            a(f"v_pk_fma_f32 {v(TT+2*d,2)}, {v(TT+2*d,2)}, {v(RN,2)}, {v(RN,2)} op_sel:[0,0,1] op_sel_hi:[1,0,1]")
        for d in range(4):
            a(f"v_cvt_pk_bf16_f32 {v(X+4*i+d)}, {v(TT+2*d)}, {v(TT+2*d+1)}")
        a(f"ds_write_b128 {v(vWr[i%2])}, {v(X+4*i,4)} offset:{(i//2)*256}"); lg.op("w")
    vm.wait("b")
    lg.all()
    pf.stamp(3); pf.stamp(9, "early")
    HI = a.label("M_HI"); JOIN = a.label("M_JOIN")
    a(f"s_cmp_eq_u32 {s(sHI)}, 1\ns_cbranch_scc1 {HI}")
    state = (list(vm.q), list(lg.q))
    def gemm(hi):
        vm.q, lg.q = list(state[0]), list(state[1])
        ng = 1 if hi else 2
        def xread(c, st):
            sx = sT3 if c % 2 else sT2
            if st == 0: a(f"s_add_u32 {s(sx)}, {s(sKc)}, {SEQ[c][1] << 7}\ns_and_b32 {s(sx)}, {s(sx)}, 0x380")
            a(f"v_xor_b32 {v(XA[4+st])}, {s(sx)}, {v(XA[st])}")
            a(f"ds_read_b128 {v(F[st],4)}, {v(XA[4+st])}"); lg.op(("x", c, st))
        def wread(c, st):
            sl = SLOTOF[c]
            for gi in range(ng):
                for j in range(2):
                    off = (sl & 1) * SLOT + gi * 8192 + st * 2048 + j * 512
                    a(f"ds_read_b64_tr_b16 {v(F[st]+4+4*gi+2*j,2)}, {v(WA[sl >> 1])} offset:{off}"); lg.op(("w", c, st))
        def mf(c, st):
            lg.wait(("x", c, st), ("w", c, st))
            isq = SEQ[c][0] == "c"
            acc = ACC1 if isq else ACC2
            for gi in range(ng):
                w, x = v(F[st]+4+4*gi,4), v(F[st],4)
                cin = "0" if (c == 0 and st == 0) else v(acc[gi],16)
                if hi and isq: a(f"{MFMA} {v(acc[gi],16)}, {x}, {w}, {cin}")
                else: a(f"{MFMA} {v(acc[gi],16)}, {w}, {x}, {cin}")
        def qkv_epilogue(part):
            sTT, sO = sU[4], sU[5]
            if part == 0:
                a(f"""
                s_lshl_b32 {s(sTT)}, {s(sRB)}, 1
                s_add_u32 {s(sTT)}, {s(sTT)}, {s(sMT)}
                s_lshl_b32 {s(sO)}, {s(sCB)}, 1
                s_add_u32 {s(sO)}, {s(sO)}, {s(sNH)}
                s_lshl_b32 {s(sO)}, {s(sO)}, 17
                s_lshl_b32 {s(sT0)}, {s(sTT)}, 10
                s_add_u32 {s(sO)}, {s(sO)}, {s(sT0)}
                s_add_u32 {s(sO)}, {s(sO)}, {WS_Q}
                """)
                if not hi:
                    a(f"""
                    v_lshlrev_b32 {v(vT[0])}, 4, {v(vL)}
                    v_lshrrev_b32 {v(vT[1])}, 1, {v(vL)}
                    v_xor_b32 {v(vT[1])}, {v(vT[1])}, {v(vL)}
                    v_and_b32 {v(vT[1])}, 4, {v(vT[1])}
                    v_mul_u32_u24 {v(vT[1])}, 3, {v(vT[1])}
                    v_xor_b32 {v(vT[1])}, {v(vT[1])}, {v(vL)}
                    v_lshlrev_b32 {v(vT[1])}, 4, {v(vT[1])}
                    s_add_u32 {s(sU[6])}, {s(sO)}, 65536
                    s_add_u32 {s(sU[7])}, {s(sO)}, {WS_K - WS_Q}
                    s_add_u32 {s(sU[8])}, {s(sO)}, {WS_K - WS_Q + 65536}
                    """)
                else:
                    a(f"""
                    v_lshlrev_b32 {v(vT[0])}, 4, {v(vL)}
                    v_bfe_u32 {v(vT[1])}, {v(vL)}, 4, 1
                    v_lshlrev_b32 {v(vT[1])}, 16, {v(vT[1])}
                    v_and_b32 {v(vT[2])}, 15, {v(vL)}
                    v_lshl_add_u32 {v(vT[1])}, {v(vT[2])}, 4, {v(vT[1])}
                    v_lshrrev_b32 {v(vT[2])}, 5, {v(vL)}
                    v_lshl_add_u32 {v(vT[1])}, {v(vT[2])}, 8, {v(vT[1])}
                    s_add_u32 {s(sU[7])}, {s(sO)}, {WS_V - WS_Q}
                    """)
            elif hi:
                if part == 1:
                    for i in range(8): a(f"v_cvt_pk_bf16_f32 {v(P+i)}, {v(ACC1[0]+2*i)}, {v(ACC1[0]+2*i+1)}")
            elif part == 1:
                for i in range(8): a(f"v_cvt_pk_bf16_f32 {v(P+8+i)}, {v(ACC1[1]+2*i)}, {v(ACC1[1]+2*i+1)}")
            else:
                for i in range(16): a(f"v_mul_f32 {v(ACC1[0]+i)}, {f32(0.25*LOG2E)}, {v(ACC1[0]+i)}")
                for i in range(8): a(f"v_cvt_pk_bf16_f32 {v(P+i)}, {v(ACC1[0]+2*i)}, {v(ACC1[0]+2*i+1)}")
        def qkv_store(k):
            sO = sU[5]
            if hi:
                t = {0: f"buffer_store_dwordx4 {v(P,4)}, {v(vT[1])}, {s(rWS,4)}, {s(sU[7])} offen{SCQ}",
                     1: f"buffer_store_dwordx4 {v(P+4,4)}, {v(vT[1])}, {s(rWS,4)}, {s(sU[7])} offen offset:512{SCQ}"}[k]
            else:
                t = {0: f"buffer_store_dwordx4 {v(P+8,4)}, {v(vT[1])}, {s(rWS,4)}, {s(sU[7])} offen{SCQ}",
                     1: f"buffer_store_dwordx4 {v(P+12,4)}, {v(vT[1])}, {s(rWS,4)}, {s(sU[8])} offen{SCQ}",
                     2: f"buffer_store_dwordx4 {v(P,4)}, {v(vT[0])}, {s(rWS,4)}, {s(sO)} offen{SCQ}",
                     3: f"buffer_store_dwordx4 {v(P+4,4)}, {v(vT[0])}, {s(rWS,4)}, {s(sU[6])} offen{SCQ}"}[k]
            a(t); vm.op("st")
        ss = opt("ssched", 3)
        E = LASTC + 1
        if ss == 0: stsched = {E: [0, 1]} if hi else {E: [0, 1, 2, 3]}
        if ss == 1: stsched = {E+2: [0], E+3: [1]} if hi else {E: [0], E+1: [1], E+4: [2], E+5: [3]}
        if ss == 2: stsched = {E+1: [0], E+3: [1]} if hi else {E: [0], E+1: [1], E+2: [2], E+3: [3]}
        if ss == 3: stsched = {E: [0], E+1: [1]} if hi else {E: [0, 1], E+1: [2, 3]}
        if ss == 4: stsched = {E+1: [0], E+2: [1]} if hi else {E: [0], E+1: [1], E+2: [2], E+3: [3]}
        for c in range(16):
            if c == QFLAG_CHUNK: vm.all()
            a("s_barrier")
            if c == QFLAG_CHUNK and not hi:
                nf, ok, pl = a.label("M_noflag"), a.label("M_tokok"), a.label("M_tokpoll")
                a.c("wave 0 publishes Q/K/V: this launch's tag into each of the 32 consumers' flag rows")
                a(f"""
                s_cmp_lg_u32 {s(sW)}, 0
                s_cbranch_scc1 {nf}
                s_mov_b32 {s(sIt)}, 0
                {pl}:
                v_cmp_eq_u32 vcc, 0, {v(vDum)}
                s_cbranch_vccz {ok}
                s_sleep 2
                v_mov_b32 {v(vDum+2)}, 0
                global_load_dwordx2 {v(vDum,2)}, {v(vDum+2)}, s[22:23]{SC}
                s_add_u32 {s(sIt)}, {s(sIt)}, 1
                s_waitcnt vmcnt(0)
                s_cmp_lt_u32 {s(sIt)}, 0x20000
                s_cbranch_scc1 {pl}
                {ok}:
                s_lshl_b32 {s(sT0)}, {s(sCB)}, 13
                s_lshl_b32 {s(sT1)}, {s(sRB)}, 3
                s_add_u32 {s(sT0)}, {s(sT0)}, {s(sT1)}
                s_add_u32 {s(sT0)}, {s(sT0)}, {FLAG_Q}
                v_lshlrev_b32 {v(vDum+2)}, 8, {v(vL)}
                s_mov_b32 exec_hi, 0
                buffer_store_dwordx2 {v(vDum,2)}, {v(vDum+2)}, {s(rWS,4)}, {s(sT0)} offen{SC}
                s_mov_b64 exec, -1
                {nf}:
                """)
            if c == 8 and not hi:
                nf = a.label("M_notokld")
                a(f"""
                s_cmp_lg_u32 {s(sW)}, 0
                s_cbranch_scc1 {nf}
                v_mov_b32 {v(vDum+2)}, 0
                global_load_dwordx2 {v(vDum,2)}, {v(vDum+2)}, s[22:23]{SC}
                {nf}:
                """)
            if c == 0:
                pf.stamp(4); pf.stamp(10, "early")
                xread(0, 0); xread(0, 1)
            if c == E: pf.stamp(5)
            if c >= 5: pf.stamp(c - 4, "fine")
            wread(c, 0); wread(c, 1)
            if c > 0: mf(c - 1, 3)
            if c == E - 1: qkv_epilogue(0)
            if c == FIRSTD:
                for gi in range(ng):
                    a(f"{MFMA} {v(ACC2[gi],16)}, {v(vBias[gi],4)}, {v(vOneB,4)}, 0")
            mf(c, 0)
            xread(c, 2); wread(c, 2)
            mf(c, 1)
            xread(c, 3); wread(c, 3)
            if c == E:
                if hi: a("s_nop 3")
                qkv_epilogue(1)
            if c < 15: xread(c + 1, 0); xread(c + 1, 1)
            mf(c, 2)
            if c == E: qkv_epilogue(2)
            for k in stsched.get(c, []): qkv_store(k)
            lg.wait(("w", c, 3))
        a("s_barrier")
        pf.stamp(6); pf.stamp(12, "fine")
        mf(15, 3)
        c1 = -2 * 0.7978845608028654 * LOG2E
        c2 = c1 * 0.044715
        CC = F[0]; T = F[1]
        a(f"""
        v_mov_b32 {v(CC)}, {f32(c2)}
        v_mov_b32 {v(CC+1)}, {f32(c1)}
        s_mul_i32 {s(sT1)}, {s(sMT)}, 12288
        s_lshl_b32 {s(sT0)}, {s(sNH)}, 11
        s_add_u32 {s(sT0)}, {s(sT0)}, {s(sT1)}
        s_add_u32 {s(sT0)}, {s(sT0)}, {STG + 8192 + (8192 if hi else 0)}
        v_add_u32 {v(vT[2])}, {s(sT0)}, {v(vT[0])}
        s_nop 6
        """)
        for gi in range(ng):
            skip = a.label("M_skip")
            A_ = ACC2[gi]; Pg = P + 8*gi
            a(f"s_add_u32 {s(sT1)}, {s(sColF)}, {64*gi}\ns_cmp_ge_u32 {s(sT1)}, 1376\ns_cbranch_scc1 {skip}")
            for i in range(0, 16, 2): a(f"v_pk_mul_f32 {v(T+i,2)}, {v(A_+i,2)}, {v(A_+i,2)}")
            for i in range(0, 16, 2): a(f"v_pk_fma_f32 {v(T+i,2)}, {v(T+i,2)}, {v(CC,2)}, {v(CC,2)} op_sel:[0,0,1] op_sel_hi:[1,0,1]")
            for i in range(0, 16, 2): a(f"v_pk_mul_f32 {v(T+i,2)}, {v(T+i,2)}, {v(A_+i,2)}")
            for i in range(16): a(f"v_exp_f32 {v(T+i)}, {v(T+i)}")
            for i in range(0, 16, 2): a(f"v_pk_add_f32 {v(T+i,2)}, {v(T+i,2)}, 1.0 op_sel_hi:[1,0]")
            for i in range(16): a(f"v_rcp_f32 {v(T+i)}, {v(T+i)}")
            for i in range(0, 16, 2): a(f"v_pk_mul_f32 {v(T+i,2)}, {v(T+i,2)}, {v(A_+i,2)}")
            for i in range(8): a(f"v_cvt_pk_bf16_f32 {v(Pg+i)}, {v(T+2*i)}, {v(T+2*i+1)}")
            a(f"ds_write_b128 {v(vT[2])}, {v(Pg,4)} offset:{4096*gi}")
            a(f"ds_write_b128 {v(vT[2])}, {v(Pg+4,4)} offset:{4096*gi + 1024}")
            a(f"{skip}:")
    gemm(False)
    a(f"s_branch {JOIN}\n{HI}:")
    gemm(True)
    a(f"{JOIN}:")
    vm.q = []; lg.q = []
    pf.stamp(7)
    WFq = list(range(vBias[0], XA[0] + 8, 4)) + list(range(F[0] + 16, ACC1[0], 4)) + [P, P + 4, P + 8]
    assert len(WFq) == 16, WFq
    a("s_waitcnt lgkmcnt(0)")
    vXr, vB2 = P + 12, vDum
    a.c("residual x and b2 of this thread's 8 output columns")
    a(f"""
    s_mov_b32 {s(rB)}, s18
    s_mov_b32 {s(rB+1)}, s19
    s_mov_b32 {s(rB+2)}, 1024
    v_lshrrev_b32 {v(vT[5])}, 3, v0
    s_lshl_b32 {s(sT0)}, {s(sRB)}, 6
    v_add_u32 {v(vT[5])}, {s(sT0)}, {v(vT[5])}
    v_and_b32 {v(vT[6])}, 7, v0
    s_lshl_b32 {s(sT0)}, {s(sCB)}, 7
    v_lshl_add_u32 {v(vT[6])}, {v(vT[6])}, 4, {s(sT0)}
    v_lshl_add_u32 {v(WA[0])}, {v(vT[5])}, 10, {v(vT[6])}
    buffer_load_dwordx4 {v(vXr,4)}, {v(WA[0])}, {s(rA,4)}, 0 offen
    buffer_load_dwordx4 {v(vB2,4)}, {v(vT[6])}, {s(rB,4)}, 0 offen
    """)
    vWa, vWp, vRp, vLp = WA[1], WA[1] + 1, WA[1] + 2, 1
    assert vRp < F[0]
    a.c("addresses of the closing phase: wave (mt = w&1, kq = w>>1)")
    a(f"""
    s_and_b32 {s(sU[6])}, {s(sW)}, 1
    s_lshr_b32 {s(sU[7])}, {s(sW)}, 1
    s_lshl_b32 {s(sT0)}, {s(sRB)}, 1
    s_add_u32 {s(sT0)}, {s(sT0)}, {s(sU[6])}
    s_mul_i32 {s(sU[5])}, {s(sT0)}, {A3_TSTRIDE}
    s_lshl_b32 {s(sT0)}, {s(sU[7])}, 13
    s_add_u32 {s(sU[5])}, {s(sU[5])}, {s(sT0)}
    s_add_u32 {s(sU[5])}, {s(sU[5])}, {WS_A3}
    s_add_u32 {s(sT3)}, {s(sU[5])}, 4096
    s_lshl_b32 {s(sT0)}, {s(sR8)}, 3
    s_add_u32 {s(sT0)}, {s(sT0)}, {s(sW)}
    s_mul_i32 {s(sT0)}, {s(sT0)}, {A3_TSTRIDE}
    s_lshl_b32 {s(sT1)}, {s(sH)}, 10
    s_add_u32 {s(sT0)}, {s(sT0)}, {s(sT1)}
    s_add_u32 {s(sU[8])}, {s(sT0)}, {WS_A3}
    v_lshlrev_b32 {v(vLp)}, 10, {v(vL)}
    v_add_u32 {v(vLp)}, 1020, {v(vLp)}
    v_lshrrev_b32 {v(vT[5])}, 5, {v(vL)}
    v_bfe_u32 {v(vWa)}, {v(vL)}, 2, 2
    v_lshl_add_u32 {v(vWa)}, {v(vT[5])}, 2, {v(vWa)}
    v_lshlrev_b32 {v(vWa)}, 7, {v(vWa)}
    v_bfe_u32 {v(vT[6])}, {v(vL)}, 3, 1
    v_lshl_add_u32 {v(vWa)}, {v(vT[6])}, 6, {v(vWa)}
    v_bfe_u32 {v(vT[6])}, {v(vL)}, 4, 1
    v_lshl_add_u32 {v(vWa)}, {v(vT[6])}, 5, {v(vWa)}
    v_and_b32 {v(vT[6])}, 3, {v(vL)}
    v_lshl_add_u32 {v(vWa)}, {v(vT[6])}, 3, {v(vWa)}
    s_and_b32 {s(sT1)}, {s(sU[7])}, 1
    s_lshl_b32 {s(sT1)}, {s(sT1)}, 14
    s_add_u32 {s(sT0)}, {s(sT1)}, {STG}
    s_cmp_lt_u32 {s(sU[7])}, 2
    s_cselect_b32 {s(sT1)}, {s(sT0)}, {s(sT1)}
    v_add_u32 {v(vWa)}, {s(sT1)}, {v(vWa)}
    v_and_b32 {v(vWp)}, 31, {v(vL)}
    s_lshl_b32 {s(sT0)}, {s(sU[6])}, 5
    v_add_u32 {v(vWp)}, {s(sT0)}, {v(vWp)}
    v_and_b32 {v(vT[6])}, 15, {v(vWp)}
    v_xor_b32 {v(vT[5])}, {v(vT[5])}, {v(vT[6])}
    v_lshlrev_b32 {v(vT[5])}, 4, {v(vT[5])}
    v_lshl_add_u32 {v(vWp)}, {v(vWp)}, 8, {v(vT[5])}
    v_add_u32 {v(vWp)}, {s(sT1)}, {v(vWp)}
    v_lshrrev_b32 {v(vT[5])}, 3, v0
    v_and_b32 {v(vRp)}, 7, v0
    v_lshlrev_b32 {v(vRp)}, 1, {v(vRp)}
    v_and_b32 {v(vT[6])}, 15, {v(vT[5])}
    v_xor_b32 {v(vRp)}, {v(vRp)}, {v(vT[6])}
    v_lshlrev_b32 {v(vRp)}, 4, {v(vRp)}
    v_lshl_add_u32 {v(vRp)}, {v(vT[5])}, 8, {v(vRp)}
    s_mov_b32 {s(rC)}, s20
    s_mov_b32 {s(rC+1)}, s21
    s_mov_b32 {s(rC+2)}, {2048*1024}
    s_mov_b32 {s(rC+3)}, 0x00020000
    """)
    V2 = Regs("v", 3, 168)
    vL16 = V2.alloc(); vKa = V2.alloc(); vVa = V2.alloc(); vIdx = V2.alloc(); vVb = V2.alloc(); t = [V2.alloc() for _ in range(3)]
    assert vL16 == vT[0]
    V2.n = P + 16
    V2.n = ACC1[0]
    Q = V2.alloc(4, 4); K = V2.alloc(4, 4); V1 = V2.alloc(4, 4); Vb = V2.alloc(4, 4)
    C = V2.alloc(16, 4)
    SB = [ACC2[0], ACC2[1]]; O = F[0]
    assert V2.n <= ACC2[0] and F[0] + 16 <= ACC1[0]
    sBar, sPass, sTT = sU[0], sU[1], sU[2]
    a.c("---------------- attention: head h, q tile 8*r8 + w")
    a(f"""
    v_mov_b32 {v(vIdx)}, 0xdddddddd
    s_mov_b32 {s(sMask)}, 0x0000ffff
    s_mov_b32 {s(sMask+1)}, 0x0000ffff
    v_and_b32 {v(t[0])}, 15, {v(vL)}
    v_lshrrev_b32 {v(t[1])}, 5, {v(vL)}
    v_lshlrev_b32 {v(t[1])}, 8, {v(t[1])}
    v_lshl_add_u32 {v(t[1])}, {v(t[0])}, 4, {v(t[1])}
    v_add_u32 {v(vVb)}, 65536, {v(t[1])}
    v_and_b32 {v(t[0])}, 27, {v(vL)}
    v_cmp_eq_u32 vcc, 16, {v(t[0])}
    v_mov_b32 {v(t[2])}, 0x3f803f80
    s_mov_b32 {s(sBar)}, 3
    v_cndmask_b32 {v(t[2])}, 0, {v(t[2])}, vcc
    s_lshl_b32 {s(sTT)}, {s(sR8)}, 3
    s_add_u32 {s(sTT)}, {s(sTT)}, {s(sW)}
    s_lshl_b32 {s(sT0)}, {s(sW)}, 10
    s_add_u32 {s(sT0)}, {s(sT0)}, {STG}
    v_add_u32 {v(t[0])}, {s(sT0)}, {v(vL16)}
    """)
    for i in range(4):
        a(f"v_mov_b32 {v(V1+i)}, {v(t[2])}\nv_mov_b32 {v(Vb+i)}, {v(t[2])}")
    a("s_waitcnt lgkmcnt(0)\ns_barrier")
    pf.stamp(8)
    a(f"""
    ds_read_b128 {v(Q,4)}, {v(t[0])}
    ds_read_b128 {v(K,4)}, {v(vL16)}
    s_waitcnt lgkmcnt(0)
    {MFMA} {v(SB[0],16)}, {v(K,4)}, {v(Q,4)}, 0
    s_nop 11
    """)
    def rowmax(src, dst, first):
        k = 0
        if first:
            a(f"v_max3_f32 {v(dst)}, {v(src)}, {v(src+1)}, {v(src+2)}"); k = 3
        while k < 16:
            if k + 1 < 16:
                a(f"v_max3_f32 {v(dst)}, {v(dst)}, {v(src+k)}, {v(src+k+1)}"); k += 2
            else:
                a(f"v_max_f32 {v(dst)}, {v(dst)}, {v(src+k)}"); k += 1
    rowmax(SB[0], t[0], True)
    LSTART = a.label("AT_START"); LOOP = a.label("AT_LOOP"); nob = a.label("AT_nob"); DONE = a.label("AT_DONE")
    a(f"""
    v_mov_b32 {v(t[1])}, {v(t[0])}
    v_mov_b32 {v(vKa)}, {v(vL16)}
    v_mov_b32 {v(vVa)}, {v(vVb)}
    v_permlane32_swap_b32 {v(t[0])}, {v(t[1])}
    """)
    for i in range(8): a(f"v_mov_b32 {v(O+i)}, 0")
    a(f"v_max_f32 {v(t[0])}, {v(t[0])}, {v(t[1])}")
    for i in range(16): a(f"v_sub_f32 {v(C+i)}, 0, {v(t[0])}")
    for i in range(8, 16): a(f"v_mov_b32 {v(O+i)}, 0")
    a(f"{MFMA} {v(SB[0],16)}, {v(K,4)}, {v(Q,4)}, {v(C,16)}")
    a(f"""
    s_mov_b64 exec, {s(sMask,2)}
    ds_read_b128 {v(Vb,4)}, {v(vVa)}
    s_mov_b64 exec, -1
    ds_read_b128 {v(K,4)}, {v(vKa)} offset:1024
    s_mov_b64 exec, {s(sMask,2)}
    ds_read_b128 {v(V1,4)}, {v(vVa)}
    s_mov_b64 exec, -1
    s_mov_b32 {s(sIt)}, 0
    """)
    for i in range(8, 16): a(f"v_mov_b32 {v(SB[1]+i)}, 0")
    a(f"""
    .p2align 3
    {LOOP}:
    s_cmp_lg_u32 {s(sIt)}, {s(sBar)}
    s_cbranch_scc1 {nob}
    s_barrier
    {nob}:
    """)
    U = 4
    for k in range(U):
        cur, oth = SB[k % 2], SB[(k + 1) % 2]
        e = lambda i: a(f"v_exp_f32 {v(cur+i)}, {v(cur+i)}")
        a(f"s_setprio {2 - (k % 3) if False else 3 - k}")
        e(0); e(1)
        a(f"s_waitcnt lgkmcnt(2)\n{SMF} {v(O,16)}, {v(Vb,4)}, {v(oth+8,8)}, {v(vIdx)}")
        a(f"s_mov_b64 exec, {s(sMask,2)}\nds_read_b128 {v(Vb,4)}, {v(vVa)} offset:{k*1024 + 512}\ns_mov_b64 exec, -1")
        e(2); e(3); e(4); e(5)
        a(f"s_waitcnt lgkmcnt(2)\n{MFMA} {v(oth,16)}, {v(K,4)}, {v(Q,4)}, {v(C,16)}")
        a(f"ds_read_b128 {v(K,4)}, {v(vKa)} offset:{(k+2)*1024}")
        e(6); e(7); e(8); e(9); e(10)
        a(f"s_waitcnt lgkmcnt(2)\n{SMF} {v(O,16)}, {v(V1,4)}, {v(cur,8)}, {v(vIdx)}")
        a(f"s_mov_b64 exec, {s(sMask,2)}\nds_read_b128 {v(V1,4)}, {v(vVa)} offset:{(k+1)*1024}\ns_mov_b64 exec, -1")
        e(11); e(12); e(13)
        if k == U - 1:
            a(f"v_add_u32 {v(vKa)}, {U*1024}, {v(vKa)}\nv_add_u32 {v(vVa)}, {U*1024}, {v(vVa)}")
            a(f"s_add_u32 {s(sIt)}, {s(sIt)}, 1\ns_cmp_lt_u32 {s(sIt)}, {64//U}")
        e(14); e(15)
    a(f"""
    s_cbranch_scc1 {LOOP}
    M_TAIL:
    s_waitcnt lgkmcnt(0)
    s_setprio 3
    {SMF} {v(O,16)}, {v(Vb,4)}, {v(SB[1]+8,8)}, {v(vIdx)}
    s_mov_b32 {s(sT0)}, {f32(2.0**60)}
    s_mov_b32 {s(sT1)}, {f32(2.0**120)}
    s_barrier
    s_nop 8
    """)
    a.c("the stand-in max was the max over the first key tile: check nothing overflowed, otherwise redo with the true row max")
    a(f"""
    v_max3_f32 {v(t[0])}, |{v(O)}|, |{v(O+1)}|, |{v(O+2)}|
    v_add_f32 {v(t[1])}, {v(O)}, {v(O+1)}
    v_add_f32 {v(t[2])}, {v(O+2)}, {v(O+3)}
    v_max3_f32 {v(t[0])}, {v(t[0])}, |{v(O+3)}|, |{v(O+4)}|
    v_add_f32 {v(t[1])}, {v(t[1])}, {v(O+4)}
    v_add_f32 {v(t[2])}, {v(t[2])}, {v(O+5)}
    v_max3_f32 {v(t[0])}, {v(t[0])}, |{v(O+5)}|, |{v(O+6)}|
    v_add_f32 {v(t[1])}, {v(t[1])}, {v(O+6)}
    v_add_f32 {v(t[2])}, {v(t[2])}, {v(O+7)}
    v_max_f32 {v(t[0])}, {v(t[0])}, |{v(O+7)}|
    v_add_f32 {v(t[1])}, {v(t[1])}, {v(t[2])}
    v_cmp_nlt_f32 vcc, {v(O+8)}, {s(sT0)}
    v_cmp_nlt_f32 {s(sK,2)}, {v(t[0])}, {s(sT1)}
    s_or_b64 vcc, vcc, {s(sK,2)}
    v_cmp_u_f32 {s(sK,2)}, {v(t[1])}, {v(t[1])}
    s_or_b64 vcc, vcc, {s(sK,2)}
    s_cbranch_vccz {DONE}
    """)
    ML, ML2 = a.label("AT_MAXLOOP"), a.label("AT_REDO")
    a.c("rare path: true row max, then the whole row block again, K/V straight from global memory")
    a(f"""
    s_lshl_b32 {s(sT0)}, {s(sH)}, 16
    s_add_u32 {s(sT0)}, {s(sT0)}, {WS_K}
    v_mov_b32 {v(t[0])}, 0xff800000
    s_mov_b32 {s(sIt)}, 0
    {ML}:
    buffer_load_dwordx4 {v(K,4)}, {v(vL16)}, {s(rWS,4)}, {s(sT0)} offen{SC}
    s_add_u32 {s(sT0)}, {s(sT0)}, 1024
    s_waitcnt vmcnt(0)
    {MFMA} {v(SB[0],16)}, {v(K,4)}, {v(Q,4)}, 0
    s_nop 15
    """)
    rowmax(SB[0], t[0], False)
    a(f"""
    s_add_u32 {s(sIt)}, {s(sIt)}, 1
    s_cmp_lt_u32 {s(sIt)}, 64
    s_cbranch_scc1 {ML}
    v_mov_b32 {v(t[1])}, {v(t[0])}
    v_subrev_u32 {v(vVa)}, 65536, {v(vVb)}
    s_sub_u32 {s(sT0)}, {s(sT0)}, 65536
    v_permlane32_swap_b32 {v(t[0])}, {v(t[1])}
    s_add_u32 {s(sT1)}, {s(sT0)}, {WS_V - WS_K}
    s_mov_b32 {s(sIt)}, 0
    v_max_f32 {v(t[0])}, {v(t[0])}, {v(t[1])}
    """)
    for i in range(16): a(f"v_sub_f32 {v(C+i)}, 0, {v(t[0])}\nv_mov_b32 {v(O+i)}, 0")
    a(f"""
    {ML2}:
    buffer_load_dwordx4 {v(K,4)}, {v(vL16)}, {s(rWS,4)}, {s(sT0)} offen{SC}
    s_mov_b64 exec, {s(sMask,2)}
    buffer_load_dwordx4 {v(V1,4)}, {v(vVa)}, {s(rWS,4)}, {s(sT1)} offen{SC}
    buffer_load_dwordx4 {v(Vb,4)}, {v(vVa)}, {s(rWS,4)}, {s(sT1)} offen offset:512{SC}
    s_mov_b64 exec, -1
    s_add_u32 {s(sT0)}, {s(sT0)}, 1024
    s_add_u32 {s(sT1)}, {s(sT1)}, 1024
    s_waitcnt vmcnt(0)
    {MFMA} {v(SB[0],16)}, {v(K,4)}, {v(Q,4)}, {v(C,16)}
    s_nop 15
    """)
    for i in range(16): a(f"v_exp_f32 {v(SB[0]+i)}, {v(SB[0]+i)}")
    a(f"""
    s_nop 1
    {SMF} {v(O,16)}, {v(V1,4)}, {v(SB[0],8)}, {v(vIdx)}
    {SMF} {v(O,16)}, {v(Vb,4)}, {v(SB[0]+8,8)}, {v(vIdx)}
    s_add_u32 {s(sIt)}, {s(sIt)}, 1
    s_nop 15
    s_cmp_lt_u32 {s(sIt)}, 64
    s_cbranch_scc1 {ML2}
    {DONE}:
    """)
    pf.stamp(1, "tail")
    a(f"""
    v_rcp_f32 {v(t[0])}, {v(O+8)}
    s_nop 0
    """)
    for i in range(8): a(f"v_mul_f32 {v(O+i)}, {v(O+i)}, {v(t[0])}")
    for i in range(4): a(f"v_cvt_pk_bf16_f32 {v(K+i)}, {v(O+2*i)}, {v(O+2*i+1)}")
    a(f"buffer_store_dwordx4 {v(K,4)}, {v(vL16)}, {s(rWS,4)}, {s(sU[8])} offen{SC}")
    pf.stamp(9)
    pf.stamp(2, "tail")
    a.c("---------------- final: out tile (tm = rb, tn = cb), wave (mt = w&1, kq = w>>1): heads 8kq..8kq+7, 32 tokens x 64 cols")
    vOa = WA[0]
    vBa = vVb
    OF = [ACC2[0] + 4*i for i in range(8)]
    ACC = [ACC1[0], ACC1[1]]
    sP, sRdy, sOo, sMTf, sKQ = sU[3], sU[4], sU[5], sU[6], sU[7]
    PART = 65536
    def oload(f):
        a(f"buffer_load_dwordx4 {v(OF[f],4)}, {v(vL16)}, {s(rWS,4)}, {s(sOo if f < 4 else sT3)} offen offset:{(f%4)*1024}{SC}")
    vHint = t[2]; vWb = vVa
    def cinit():
        pf.stamp(5, "tail")
        a(f"v_xor_b32 {v(vWb)}, 64, {v(vWa)}\ns_barrier")
        for f in range(8):
            for n, va in enumerate((vWa, vWb)):
                for j in range(2):
                    a(f"ds_read_b64_tr_b16 {v(WFq[2*f+n]+2*j,2)}, {v(va)} offset:{f*2048 + j*1024}")
            if f % 2 == 1 and f < 7:
                for i in range(8): a(f"v_mov_b32 {v(ACC[0] + 8*(f//2) + i)}, 0")
                a("s_waitcnt lgkmcnt(6)")
        for i in range(8): a(f"v_mov_b32 {v(ACC[0] + 24 + i)}, 0")
        a("s_waitcnt lgkmcnt(0)\ns_barrier")
        pf.stamp(6, "tail")
    def tree(body, mask_s):
        for h in range(2):
            skh = a.label("F_skh")
            a(f"s_and_b32 {s(sT0)}, {s(mask_s)}, {0xf << (4*h)}\ns_cbranch_scc0 {skh}")
            for f in range(4*h, 4*h + 4):
                sk = a.label("F_sk")
                a(f"s_bitcmp1_b32 {s(mask_s)}, {f}\ns_cbranch_scc0 {sk}")
                body(f, sk)
                a(f"{sk}:")
            a(f"{skh}:")
    def consume(f, sk):
        tt_ = t[f % 2]
        a(f"""
        v_max3_u32 {v(tt_)}, {v(OF[f])}, {v(OF[f]+1)}, {v(OF[f]+2)}
        v_max_u32 {v(tt_)}, {v(tt_)}, {v(OF[f]+3)}
        v_cmp_eq_u32 vcc, -1, {v(tt_)}
        s_and_b64 vcc, vcc, {s(sK,2)}
        s_cbranch_vccnz {sk}
        """)
        for n in range(2):
            a(f"{MFMA} {v(ACC[n],16)}, {v(WFq[2*f+n],4)}, {v(OF[f],4)}, {v(ACC[n],16)}")
        a(f"s_bitset0_b32 {s(sP)}, {f}")
    a.c("O fragments arrive from 32 other workgroups; a slot still holding the all-ones marker has not been written yet")
    SLOW, PH2, PH2B, RD = a.label("F_SLOW"), a.label("F_PH2"), a.label("F_PH2B"), a.label("F_DONE")
    a(f"""
    s_mov_b32 {s(sP)}, 255
    s_mov_b32 {s(sIt)}, 0
    s_mov_b64 {s(sK,2)}, -1
    """)
    cinit()
    a("s_waitcnt vmcnt(0)")
    if opt("d1", 0): a(f"s_sleep {opt('d1', 0)}")
    pf.stamp(4, "tail")
    if opt("first", 0) == 1:
        a(f"""
        s_mov_b64 exec, 255
        buffer_load_dword {v(vHint)}, {v(vLp)}, {s(rWS,4)}, {s(sOo)} offen{SC}
        s_mov_b64 exec, -1
        s_waitcnt vmcnt(0)
        v_cmp_ne_u32 vcc, -1, {v(vHint)}
        s_and_b32 {s(sRdy)}, vcc_lo, 255
        s_cmp_lg_u32 {s(sRdy)}, 255
        s_cbranch_scc1 {SLOW}
        """)
    for f in range(8): oload(f)
    for f in range(8):
        sk = a.label("F_sk")
        a(f"s_waitcnt vmcnt({7 - f})")
        consume(f, sk)
        a(f"{sk}:")
    a(f"s_branch {PH2}\n{SLOW}:")
    tree(lambda f, sk: oload(f), sRdy)
    a(f"{PH2B}:\ns_waitcnt vmcnt(0)")
    pf.stamp(8, "tail")
    tree(consume, sRdy)
    PL = a.label("F_PL"); GO = a.label("F_GO")
    a(f"""
    {PH2}:
    s_cmp_eq_u32 {s(sP)}, 0
    s_cbranch_scc1 {RD}
    s_mov_b32 {s(sRdy)}, {s(sP)}
    s_add_u32 {s(sIt)}, {s(sIt)}, 1
    s_bcnt1_i32_b32 {s(sT0)}, {s(sP)}
    s_cmp_le_u32 {s(sT0)}, {opt("few", 8)}
    s_cbranch_scc1 {GO}S
    s_mov_b64 exec, 255
    {PL}:
    s_sleep {opt("psleep", 6)}
    buffer_load_dword {v(vHint)}, {v(vLp)}, {s(rWS,4)}, {s(sOo)} offen{SC}
    s_add_u32 {s(sIt)}, {s(sIt)}, 1
    s_waitcnt vmcnt(0)
    v_cmp_eq_u32 vcc, -1, {v(vHint)}
    s_and_b32 {s(sT0)}, vcc_lo, {s(sP)}
    s_cbranch_scc0 {GO}
    s_cmp_lt_u32 {s(sIt)}, 0x8000
    s_cbranch_scc1 {PL}
    s_branch {GO}
    {GO}S:
    s_sleep {opt("psleep", 6)}
    {GO}:
    """)
    pf.stamp(7, "tail")
    a(f"""
    s_mov_b64 exec, -1
    s_cmp_lt_u32 {s(sIt)}, 0x8000
    s_cselect_b64 {s(sK,2)}, -1, 0
    """)
    tree(lambda f, sk: oload(f), sRdy)
    a(f"s_branch {PH2B}\n{RD}:")
    a("s_nop 3")
    pf.stamp(11); pf.stamp(9, "tail")
    if PROF and "tail" in sys.argv:
        a(f"s_waitcnt lgkmcnt(0)\ns_add_u32 {s(pf.t[12])}, {s(pf.t[0])}, {s(sIt)}\ns_add_u32 {s(pf.t[12])}, {s(pf.t[12])}, 1")
    XS = F[0] + 16; R = ACC2[0]
    for i in range(4):
        a(f"v_lshlrev_b32 {v(XS+2*i)}, 16, {v(vXr+i)}\nv_and_b32 {v(XS+2*i+1)}, 0xffff0000, {v(vXr+i)}")
    for i in range(4):
        a(f"v_lshlrev_b32 {v(XS+8+2*i)}, 16, {v(vB2+i)}\nv_and_b32 {v(XS+8+2*i+1)}, 0xffff0000, {v(vB2+i)}")
    for n in range(2):
        for gq in range(4):
            a(f"v_xor_b32 {v(t[gq%2])}, {128*n + 32*gq}, {v(vWp)}\nds_write_b128 {v(t[gq%2])}, {v(ACC[n]+4*gq,4)}")
    for i in range(8): a(f"v_add_f32 {v(XS+i)}, {v(XS+i)}, {v(XS+8+i)}")
    a(f"""
    v_xor_b32 {v(t[1])}, 16, {v(vRp)}
    v_add_u32 {v(vBa)}, {STG}, {v(vRp)}
    v_add_u32 {v(t[0])}, {STG}, {v(t[1])}
    s_waitcnt lgkmcnt(0)
    """)
    pf.stamp(10, "tail")
    a("s_barrier")
    pf.stamp(11, "tail")
    R2 = ACC1[0]
    for k, (a0_, a1_, off) in enumerate([(vRp, t[1], 0), (vRp, t[1], 16384), (vRp, t[1], BASE), (vBa, t[0], 0), (vBa, t[0], 16384)]):
        d = R + 8*k if k < 4 else R2
        a(f"ds_read_b128 {v(d,4)}, {v(a0_)} offset:{off}\nds_read_b128 {v(d+4,4)}, {v(a1_)} offset:{off}")
    a("s_waitcnt lgkmcnt(6)")
    for i in range(8): a(f"v_add_f32 {v(XS+i)}, {v(XS+i)}, {v(R+i)}")
    for i in range(8): a(f"v_add_f32 {v(XS+i)}, {v(XS+i)}, {v(R+8+i)}")
    a("s_waitcnt lgkmcnt(2)")
    for i in range(8): a(f"v_add_f32 {v(R+16+i)}, {v(R+16+i)}, {v(R+24+i)}")
    for i in range(8): a(f"v_add_f32 {v(XS+i)}, {v(XS+i)}, {v(R+16+i)}")
    a("s_waitcnt lgkmcnt(0)")
    for i in range(8): a(f"v_add_f32 {v(XS+i)}, {v(XS+i)}, {v(R2+i)}")
    for i in range(4): a(f"v_cvt_pk_bf16_f32 {v(R+i)}, {v(XS+2*i)}, {v(XS+2*i+1)}")
    a(f"buffer_store_dwordx4 {v(R,4)}, {v(vOa)}, {s(rC,4)}, 0 offen")
    if opt("dbgclk", 0):
        a(f"""
        s_memtime {s(sMask,2)}
        s_memrealtime {s(sK,2)}
        s_waitcnt lgkmcnt(0)
        s_sub_u32 {s(sMask)}, {s(sMask)}, s96
        s_sub_u32 {s(sK)}, {s(sK)}, s98
        s_cmp_lg_u32 {s(sW)}, 0
        s_cbranch_scc1 {END}
        s_and_b32 {s(sT0)}, s2, 63
        s_cmp_lg_u32 {s(sT0)}, 5
        s_cbranch_scc1 {END}
        s_lshr_b32 {s(sT0)}, s2, 6
        s_lshl_b32 {s(sT0)}, {s(sT0)}, 3
        s_add_u32 {s(sT0)}, {s(sT0)}, 16
        v_mov_b32 {v(t[0])}, {s(sT0)}
        v_mov_b32 {v(R+4)}, {s(sMask)}
        v_mov_b32 {v(R+5)}, {s(sK)}
        s_mov_b64 exec, 1
        global_store_dwordx2 {v(t[0])}, {v(R+4,2)}, s[22:23]
        """)
    pf.finish(t[0], t[1], sW)
    a("s_endpgm")
    return V.hi

def gen_aux(a, G):
    g = lambda n: G[n]
    pf, sW, sRB, sCB, sH, sR8, sT0, sT1, sT2, sT3, sIt = [g(n) for n in "pf sW sRB sCB sH sR8 sT0 sT1 sT2 sT3 sIt".split()]
    rWS, rA, rB, rC, sU, sMask, sK, END = [g(n) for n in "rWS rA rB rC sU sMask sK END".split()]
    V = Regs("v", 3, 168)
    vL = 2
    vm = Cnt(a, "vmcnt", 63); lg = Cnt(a, "lgkmcnt", 15)
    vL16 = V.alloc(); vT = [V.alloc() for _ in range(6)]
    vWq = [V.alloc(), V.alloc()]; vW1 = [V.alloc(), V.alloc()]
    vD = V.alloc(4, 4)
    sA = sU[0]; sOff = [sU[1], sU[2], sU[3]]; sM = [sU[4], sU[5], sU[6]]; sI8 = sU[7]
    a.c("---------------- aux waves: weight streaming for the two GEMMs")
    a(f"""
    s_setprio {opt("auxprio", 1)}
    s_sub_u32 {s(sA)}, {s(sW)}, 8
    v_lshlrev_b32 {v(vL16)}, 4, {v(vL)}
    v_lshrrev_b32 {v(vT[0])}, 3, {v(vL)}
    v_bfe_u32 {v(vT[1])}, {v(vL)}, 4, 1
    v_lshlrev_b32 {v(vT[1])}, 2, {v(vT[1])}
    v_and_b32 {v(vT[2])}, 7, {v(vL)}
    v_xor_b32 {v(vT[1])}, {v(vT[1])}, {v(vT[2])}
    v_lshlrev_b32 {v(vT[1])}, 4, {v(vT[1])}
    v_mul_u32_u24 {v(vT[2])}, 3072, {v(vT[0])}
    v_add_u32 {v(vWq[0])}, {v(vT[2])}, {v(vT[1])}
    v_add_u32 {v(vWq[1])}, {8*3072 - 1024}, {v(vWq[0])}
    v_mul_u32_u24 {v(vT[2])}, 2752, {v(vT[0])}
    v_add_u32 {v(vW1[0])}, {v(vT[2])}, {v(vT[1])}
    v_add_u32 {v(vW1[1])}, {8*2752 - 1024}, {v(vW1[0])}
    s_lshl_b32 {s(sOff[0])}, {s(sCB)}, 7
    s_lshl_b32 {s(sT0)}, {s(sA)}, 10
    s_add_u32 {s(sOff[0])}, {s(sOff[0])}, {s(sT0)}
    s_mul_i32 {s(sOff[1])}, {s(sCB)}, 384
    s_lshl_b32 {s(sT0)}, {s(sA)}, 7
    s_add_u32 {s(sOff[2])}, {s(sOff[1])}, {s(sT0)}
    s_lshl_b32 {s(sM[0])}, {s(sA)}, 13
    s_add_u32 {s(sM[0])}, {s(sM[0])}, {RING}
    s_and_b32 {s(sI8)}, {s(sRB)}, 7
    s_mov_b32 {s(rA+2)}, {512*3072}
    s_mov_b32 {s(rA+3)}, 0x00020000
    s_mov_b32 {s(rB+2)}, {512*2752}
    s_mov_b32 {s(rB+3)}, 0x00020000
    s_cmp_eq_u32 {s(sCB)}, 7
    s_cselect_b32 {s(sT0)}, 0, {512*2752}
    s_cmp_eq_u32 {s(sA)}, 0
    s_cselect_b32 {s(rC+2)}, {512*2752}, {s(sT0)}
    s_mov_b32 {s(sM[1])}, {s(sT0)}
    s_mov_b32 {s(rC+3)}, 0x00020000
    s_waitcnt lgkmcnt(0)
    s_mov_b32 {s(rA)}, s6
    s_mov_b32 {s(rA+1)}, s7
    s_mov_b32 {s(rB)}, s12
    s_mov_b32 {s(rB+1)}, s13
    s_mov_b32 {s(rC)}, s12
    s_mov_b32 {s(rC+1)}, s13
    """)
    sLQ, sLH = sU[8], sU[9]
    sN = sK
    nn = a.label("X_nonce")
    a(f"""
    s_lshl_b32 {s(sLQ)}, {s(sH)}, 3
    s_add_u32 {s(sLQ)}, {s(sLQ)}, {s(sR8)}
    s_lshl_b32 {s(sLQ)}, {s(sLQ)}, 8
    s_add_u32 {s(sLQ)}, {s(sLQ)}, {FLAG_Q}
    s_lshl_b32 {s(sLH)}, {s(sRB)}, 3
    s_add_u32 {s(sLH)}, {s(sLH)}, {s(sCB)}
    s_lshl_b32 {s(sLH)}, {s(sLH)}, 8
    s_add_u32 {s(sLH)}, {s(sLH)}, {FLAG_H}
    """)
    a.c("workgroup 0, wave 11 picks this launch's tag (previous tag + 1, low word never 0) and publishes it through d_debug")
    a(f"""
    s_cmp_lg_u32 s2, 0
    s_cbranch_scc1 {nn}
    s_cmp_lg_u32 {s(sA)}, 3
    s_cbranch_scc1 {nn}
    v_mov_b32 {v(vT[4])}, 0
    s_mov_b32 {s(sT0)}, {WS_EPOCH}
    s_mov_b64 exec, 1
    buffer_load_dwordx2 {v(vD,2)}, {v(vT[4])}, {s(rWS,4)}, {s(sT0)} offen{SC}
    s_waitcnt vmcnt(0)
    v_add_co_u32 {v(vD)}, vcc, 1, {v(vD)}
    s_nop 1
    v_addc_co_u32 {v(vD+1)}, vcc, 0, {v(vD+1)}, vcc
    v_max_u32 {v(vD)}, 1, {v(vD)}
    buffer_store_dwordx2 {v(vD,2)}, {v(vT[4])}, {s(rWS,4)}, {s(sT0)} offen{SC}
    global_store_dwordx2 {v(vT[4])}, {v(vD,2)}, s[22:23]{SC}
    s_mov_b64 exec, -1
    {nn}:
    """)
    sKr = sMask
    a(f"s_and_b32 {s(sKr)}, {s(sRB)}, 7")
    def group(r, vo, stride, scol, m0base, m0imm):
        for q in range(4):
            a(f"""
            s_add_u32 m0, {m0base}, {m0imm + q*2048}
            s_add_u32 {s(sIt)}, {s(scol)}, {q*16*stride}
            buffer_load_dwordx4 {v(vo[0])}, {s(r,4)}, {s(sIt)} offen{WNT} lds
            buffer_load_dwordx4 {v(vo[1])}, {s(r,4)}, {s(sIt)} offen offset:1024{WNT} lds
            """)
    def dma(c):
        sl = SLOTOF[c]; isq = SEQ[c][0] == "c"
        st = 3072 if isq else 2752
        a(f"""
        s_add_u32 {s(sT3)}, {s(sKr)}, {SEQ[c][1]}
        s_and_b32 {s(sT3)}, {s(sT3)}, 7
        s_mul_i32 {s(sT3)}, {s(sT3)}, {64*st}
        s_add_u32 {s(sT3)}, {s(sT3)}, {s(sOff[0] if isq else sOff[2])}
        """)
        group(rA if isq else rC, vWq if isq else vW1, st, sT3, s(sM[0]), sl*SLOT)
        vm.op(("c", c), 8)
    def dma_lone(c):
        sl = SLOTOF[c]
        a(f"s_mul_i32 {s(sT3)}, {s(sKr)}, {64*2752}\ns_add_u32 {s(sT3)}, {s(sT3)}, {s(sOff[1])}\ns_mov_b32 {s(sT2)}, {RING}")
        for gi in range(3):
            group(rB, vW1, 2752, sT3, s(sT2), sl*SLOT + gi*8192)
            if gi == 0: a(f"s_mov_b32 {s(rB+2)}, {s(sM[1])}")
            a(f"s_add_u32 {s(sT3)}, {s(sT3)}, 128")
    W11, WJ = a.label("X_W11"), a.label("X_WJ")
    a("s_barrier")
    a(f"s_cmp_eq_u32 {s(sA)}, 3\ns_cbranch_scc1 {W11}")
    LONE = FIRSTD if DPOS < 8 else -1
    for p in IORDER:
        if ISSUE[p] == -2 and p != LONE: dma(p)
    def poll(setup, load, nl):
        L = a.label("X_poll"); D = a.label("X_polld")
        a(setup)
        a(f"s_mov_b32 {s(sIt)}, 0\ns_mov_b64 exec, 255")
        if nl == 32: a("s_mov_b32 exec_lo, -1")
        a(f"""
        {L}:
        {load}
        s_add_u32 {s(sIt)}, {s(sIt)}, 1
        s_waitcnt vmcnt(0)
        v_cmp_ne_u64 vcc, {s(sN,2)}, {v(vD,2)}
        s_cbranch_vccz {D}
        s_sleep {opt("pollsleep", 2)}
        s_cmp_lt_u32 {s(sIt)}, 0x20000
        s_cbranch_scc1 {L}
        {D}:
        s_mov_b64 exec, -1
        """)
        vm.q = []
    def setflag(base, sline, lineshift, sslot, nl, allw=False):
        nf = a.label("X_noflag")
        if not allw: a(f"s_cmp_lg_u32 {s(sA)}, 0\ns_cbranch_scc1 {nf}")
        a(f"""
        s_lshl_b32 {s(sT0)}, {s(sline)}, {lineshift + 8}
        s_lshl_b32 {s(sT1)}, {s(sslot)}, 3
        s_add_u32 {s(sT0)}, {s(sT0)}, {s(sT1)}
        s_add_u32 {s(sT0)}, {s(sT0)}, {base}
        v_lshlrev_b32 {v(vT[0])}, 8, {v(vL)}
        v_mov_b64 {v(vD+2,2)}, {s(sN,2)}
        s_mov_b64 exec, 255
        """)
        if nl == 32: a("s_mov_b32 exec_lo, -1")
        a(f"""
        buffer_store_dwordx2 {v(vD+2,2)}, {v(vT[0])}, {s(rWS,4)}, {s(sT0)} offen{SC}
        s_mov_b64 exec, -1
        {nf}:
        """)
    def tokwait():
        tk, tl = a.label("X_tok"), a.label("X_tokl")
        a(f"""
        s_waitcnt lgkmcnt(0)
        s_cmp_lg_u32 {s(sN)}, 0
        s_cbranch_scc1 {tk}
        s_mov_b32 {s(sIt)}, 0
        v_mov_b32 {v(vT[4])}, 0
        {tl}:
        global_load_dwordx2 {v(vD,2)}, {v(vT[4])}, s[22:23]{SC}
        s_add_u32 {s(sIt)}, {s(sIt)}, 1
        s_waitcnt vmcnt(0)
        v_readfirstlane_b32 {s(sN)}, {v(vD)}
        v_readfirstlane_b32 {s(sN+1)}, {v(vD+1)}
        s_cmp_lg_u32 {s(sN)}, 0
        s_cbranch_scc1 {tk}
        s_sleep 2
        s_cmp_lt_u32 {s(sIt)}, 0x20000
        s_cbranch_scc1 {tl}
        {tk}:
        """)
    for c in range(16):
        vm.wait(("c", c))
        if c >= 5: pf.stamp(c - 4, "fine")
        a("s_barrier")
        if c == 0: pf.stamp(4)
        if c == LASTC + 1: pf.stamp(5)
        for p in IORDER:
            if ISSUE[p] == c and p != LONE: dma(p)
        if c == 10: a(f"s_load_dwordx2 {s(sN,2)}, s[22:23], 0")
    a(f"s_branch {WJ}\n{W11}:")
    LAT = opt("loneat", -1)
    if LONE >= 0 and LAT < 0: dma_lone(LONE)
    for c in range(16):
        if c == LONE: a("s_waitcnt vmcnt(0)")
        a("s_barrier")
        if LONE >= 0 and c == LAT: dma_lone(LONE)
        P11 = opt("pf11", 99)
        if c == P11:
            a.c("warm-up of this workgroup's first W1 chunk, one line column per step")
            a(f"""
            s_lshl_b32 {s(sT0)}, {s(sKr)}, 6
            v_add_u32 {v(vT[0])}, {s(sT0)}, {v(vL)}
            v_mul_u32_u24 {v(vT[0])}, 2752, {v(vT[0])}
            """)
        if 0 <= c - P11 < 4:
            a(f"buffer_load_dword {v(vD + c - P11)}, {v(vT[0])}, {s(rB,4)}, {s(sOff[1])} offen offset:{[0,128,256,380][c - P11]}")
        if c == 10: a(f"s_load_dwordx2 {s(sN,2)}, s[22:23], 0")
    a(f"{WJ}:")
    tokwait()
    pf.stamp(1)
    qset = f"""
        v_and_b32 {v(vT[0])}, 31, {v(vL)}
        v_lshlrev_b32 {v(vT[0])}, 3, {v(vT[0])}
        """
    qld = f"buffer_load_dwordx2 {v(vD,2)}, {v(vT[0])}, {s(rWS,4)}, {s(sLQ)} offen{SC}"
    a(qset)
    vWo = [vWq[0], vWq[1]]
    a(f"""
    v_lshrrev_b32 {v(vT[4])}, 3, {v(vL)}
    v_bfe_u32 {v(vT[1])}, {v(vL)}, 4, 1
    v_lshlrev_b32 {v(vT[1])}, 2, {v(vT[1])}
    v_and_b32 {v(vT[2])}, 7, {v(vL)}
    v_xor_b32 {v(vT[1])}, {v(vT[1])}, {v(vT[2])}
    v_lshlrev_b32 {v(vT[1])}, 4, {v(vT[1])}
    v_lshl_add_u32 {v(vWo[0])}, {v(vT[4])}, 10, {v(vT[1])}
    v_add_u32 {v(vWo[1])}, {8*1024 - 1024}, {v(vWo[0])}
    """)
    sKV, sKL = sU[1], sU[2]
    a(f"""
    s_lshl_b32 {s(sKV)}, {s(sH)}, 16
    s_lshl_b32 {s(sU[3])}, {s(sR8)}, 13
    s_add_u32 {s(sU[3])}, {s(sU[3])}, {s(sKV)}
    s_lshl_b32 {s(sU[4])}, {s(sA)}, 11
    s_add_u32 {s(sU[3])}, {s(sU[3])}, {s(sU[4])}
    s_add_u32 {s(sU[3])}, {s(sU[3])}, {WS_Q}
    s_lshr_b32 {s(sKL)}, {s(sA)}, 1
    s_lshl_b32 {s(sT2)}, {s(sKL)}, 21
    s_add_u32 {s(sKV)}, {s(sKV)}, {s(sT2)}
    s_add_u32 {s(sKV)}, {s(sKV)}, {WS_K}
    s_lshl_b32 {s(sKL)}, {s(sKL)}, 16
    s_and_b32 {s(sT2)}, {s(sA)}, 1
    s_lshl_b32 {s(sT2)}, {s(sT2)}, 13
    s_add_u32 {s(sKV)}, {s(sKV)}, {s(sT2)}
    s_add_u32 {s(sKL)}, {s(sKL)}, {s(sT2)}
    """)
    def kv(st):
        for hb in range(2):
            a(f"s_add_u32 m0, {s(sKL)}, {st*16384 + hb*4096}\ns_add_u32 {s(sT2)}, {s(sKV)}, {st*16384 + hb*4096}")
            for i in range(4):
                a(f"buffer_load_dwordx4 {v(vL16)}, {s(rWS,4)}, {s(sT2)} offen offset:{i*1024}{SCL} lds")
    def stage1():
        a.c("Q tiles -> staging, K/V -> LDS; wave a: matrix (a>>1), tiles 8*(a&1).. of every group of 16")
        a(f"""
        s_add_u32 m0, {s(sU[4])}, {STG}
        s_nop 0
        buffer_load_dwordx4 {v(vL16)}, {s(rWS,4)}, {s(sU[3])} offen{SCL} lds
        buffer_load_dwordx4 {v(vL16)}, {s(rWS,4)}, {s(sU[3])} offen offset:1024{SCL} lds
        """)
        kv(0)
    def wo():
        a.c("Wo column block -> the K/V slots that are filled last: rows 0..255 at [16K,48K), rows 256..511 at [80K,112K)")
        for i in range(8):
            a(f"""
            s_add_u32 m0, {s(sT1)}, {i*2048}
            s_add_u32 {s(sT2)}, {s(sT0)}, {i*16384}
            buffer_load_dwordx4 {v(vWo[0])}, {s(rB,4)}, {s(sT2)} offen lds
            buffer_load_dwordx4 {v(vWo[1])}, {s(rB,4)}, {s(sT2)} offen offset:1024 lds
            """)
    a(qld)
    a("s_barrier")
    pf.stamp(6)
    qok = a.label("X_qok")
    a(f"s_waitcnt vmcnt(0)\nv_cmp_ne_u64 vcc, {s(sN,2)}, {v(vD,2)}\ns_cbranch_vccz {qok}")
    poll("", qld, 32)
    a(f"{qok}:")
    vm.q = []
    stage1()
    pf.stamp(2)
    a("s_waitcnt vmcnt(0)\ns_barrier")
    pf.stamp(8)
    for st in range(1, 4):
        kv(st); vm.op("s2", 8)
    rL = G["rL"]
    HS = V.alloc(24, 4)
    a.c("all-ones marker into this workgroup's own O slots; H tile SRDs")
    a(f"""
    s_lshl_b32 {s(sT0)}, {s(sR8)}, 3
    s_lshl_b32 {s(sT1)}, {s(sA)}, 1
    s_add_u32 {s(sT0)}, {s(sT0)}, {s(sT1)}
    s_mul_i32 {s(sT0)}, {s(sT0)}, {A3_TSTRIDE}
    s_lshl_b32 {s(sT1)}, {s(sH)}, 10
    s_add_u32 {s(sT0)}, {s(sT0)}, {s(sT1)}
    s_add_u32 {s(sU[5])}, {s(sT0)}, {WS_A3}
    s_add_u32 {s(sU[6])}, {s(sU[5])}, {A3_TSTRIDE}
    """)
    for i in range(4): a(f"v_mov_b32 {v(vD+i)}, -1")
    a(f"""
    buffer_store_dwordx4 {v(vD,4)}, {v(vL16)}, {s(rWS,4)}, {s(sU[5])} offen{SC}
    buffer_store_dwordx4 {v(vD,4)}, {v(vL16)}, {s(rWS,4)}, {s(sU[6])} offen{SC}
    s_mul_i32 {s(sT1)}, {s(sRB)}, {2*A3_TSTRIDE}
    s_add_u32 {s(sT1)}, {s(sT1)}, {WS_A3 + 32*1024}
    s_add_u32 {s(rC)}, {s(rWS)}, {s(sT1)}
    s_addc_u32 {s(rC+1)}, {s(rWS+1)}, 0
    s_mov_b32 {s(rC+2)}, {86*1024}
    s_add_u32 {s(rL)}, {s(rC)}, {A3_TSTRIDE}
    s_addc_u32 {s(rL+1)}, {s(rC+1)}, 0
    s_mov_b32 {s(rL+2)}, {86*1024}
    s_mov_b32 {s(rL+3)}, 0x00020000
    """)
    vm.op("sent", 2)
    a.c("H tiles: staging -> global; wave a: token tile a&1, column steps 6*(a>>1)..")
    a(f"""
    s_and_b32 {s(sT0)}, {s(sA)}, 1
    s_mul_i32 {s(sT1)}, {s(sT0)}, 12288
    s_lshr_b32 {s(sT2)}, {s(sA)}, 1
    s_mul_i32 {s(sT2)}, {s(sT2)}, 6144
    s_add_u32 {s(sT1)}, {s(sT1)}, {s(sT2)}
    s_add_u32 {s(sT1)}, {s(sT1)}, {STG + 8192}
    v_add_u32 {v(vT[0])}, {s(sT1)}, {v(vL16)}
    """)
    for i in range(6): a(f"ds_read_b128 {v(HS+4*i,4)}, {v(vT[0])} offset:{1024*i}")
    a(f"""
    s_mul_i32 {s(sT1)}, {s(sCB)}, 12288
    s_add_u32 {s(sT2)}, {s(sT2)}, {s(sT1)}
    s_mul_i32 {s(sT1)}, {s(sT0)}, {A3_TSTRIDE}
    s_add_u32 {s(rB)}, {s(rC)}, {s(sT1)}
    s_addc_u32 {s(rB+1)}, {s(rC+1)}, 0
    s_mov_b32 {s(rB+2)}, {86*1024}
    s_add_u32 {s(sT1)}, {s(sT2)}, 4096
    s_waitcnt lgkmcnt(0)
    """)
    for i in range(6):
        a(f"buffer_store_dwordx4 {v(HS+4*i,4)}, {v(vL16)}, {s(rB,4)}, {s(sT2 if i < 4 else sT1)} offen offset:{1024*(i%4)}{SC}")
    vm.op("hst", 6)
    a.c("L2 warm-up of W2 / Wo column block (1/8 share)")
    a(f"""
    s_mov_b32 {s(rA)}, s16
    s_mov_b32 {s(rA+1)}, s17
    s_mov_b32 {s(rA+2)}, {1376*1024}
    s_mul_i32 {s(sT0)}, {s(sI8)}, 172
    s_mul_i32 {s(sT1)}, {s(sA)}, 43
    s_add_u32 {s(sT0)}, {s(sT0)}, {s(sT1)}
    v_min_u32 {v(vT[0])}, 42, {v(vL)}
    v_add_u32 {v(vT[0])}, {s(sT0)}, {v(vT[0])}
    v_lshlrev_b32 {v(vT[0])}, 10, {v(vT[0])}
    s_lshl_b32 {s(sT1)}, {s(sCB)}, 7
    buffer_load_dword {v(vT[3])}, {v(vT[0])}, {s(rA,4)}, {s(sT1)} offen
    """)
    vm.op("pf", 1)
    vm.wait("s2", "sent")
    a("s_barrier")
    setflag(FLAG_O, sR8, 5, sH, 32)
    vm.wait("hst")
    a(f"s_lshl_b32 {s(sT3)}, {s(sCB)}, 2\ns_add_u32 {s(sT3)}, {s(sT3)}, {s(sA)}")
    setflag(FLAG_H, sRB, 3, sT3, 8, allw=True)
    pf.stamp(3)
    poll(f"v_lshlrev_b32 {v(vT[0])}, 3, {v(vL)}", f"buffer_load_dwordx2 {v(vD,2)}, {v(vT[0])}, {s(rWS,4)}, {s(sLH)} offen{SC}", 32)
    pf.stamp(7)
    ACC = [[V.alloc(16, 4), V.alloc(16, 4)], [V.alloc(16, 4), V.alloc(16, 4)]]
    HB = [V.alloc(8, 4) for _ in range(4)]; WB = [HS, HS + 8]
    vRa = vW1[0]; vRb = vW1[1]
    sHo, sWo, sSt, sNI = sU[1], sU[2], sU[3], sU[4]
    a.c("---------------- FFN2 in the shadow of attention")
    a(f"""
    s_mul_i32 {s(sHo)}, {s(sA)}, {24*1024}
    s_mul_i32 {s(sWo)}, {s(sA)}, {24*16*1024}
    s_lshl_b32 {s(sT2)}, {s(sCB)}, 7
    s_add_u32 {s(sWo)}, {s(sWo)}, {s(sT2)}
    s_lshl_b32 {s(sSt)}, {s(sA)}, 13
    s_add_u32 {s(sSt)}, {s(sSt)}, {STG}
    s_cmp_eq_u32 {s(sA)}, 3
    s_cselect_b32 {s(sNI)}, {min(4, opt("ffnit", 6))}, {opt("ffnit", 6)}
    v_lshrrev_b32 {v(vT[0])}, 5, {v(vL)}
    v_bfe_u32 {v(vT[1])}, {v(vL)}, 2, 2
    v_lshl_add_u32 {v(vT[1])}, {v(vT[0])}, 2, {v(vT[1])}
    v_lshlrev_b32 {v(vT[1])}, 7, {v(vT[1])}
    v_bfe_u32 {v(vT[0])}, {v(vL)}, 3, 1
    v_lshl_add_u32 {v(vT[1])}, {v(vT[0])}, 6, {v(vT[1])}
    v_bfe_u32 {v(vT[0])}, {v(vL)}, 4, 1
    v_lshl_add_u32 {v(vT[1])}, {v(vT[0])}, 5, {v(vT[1])}
    v_and_b32 {v(vT[0])}, 3, {v(vL)}
    v_lshl_add_u32 {v(vT[1])}, {v(vT[0])}, 3, {v(vT[1])}
    v_add_u32 {v(vRa)}, {s(sSt)}, {v(vT[1])}
    v_xor_b32 {v(vRb)}, 64, {v(vRa)}
    """)
    def f_issue(sl):
        a(f"""
        s_add_u32 m0, {s(sSt)}, {sl*2048}
        buffer_load_dwordx4 {v(HB[sl],4)}, {v(vL16)}, {s(rC,4)}, {s(sHo)} offen{SCL}
        buffer_load_dwordx4 {v(HB[sl]+4,4)}, {v(vL16)}, {s(rL,4)}, {s(sHo)} offen{SCL}
        buffer_load_dwordx4 {v(vWo[0])}, {s(rA,4)}, {s(sWo)} offen lds
        buffer_load_dwordx4 {v(vWo[1])}, {s(rA,4)}, {s(sWo)} offen offset:1024 lds
        s_add_u32 {s(sHo)}, {s(sHo)}, 1024
        s_add_u32 {s(sWo)}, {s(sWo)}, 16384
        """)
    for sl in range(3): f_issue(sl)
    for m in range(2):
        for n in range(2):
            for i in range(16): a(f"v_mov_b32 {v(ACC[m][n]+i)}, 0")
    FL = a.label("X_FFN2")
    a(f"s_mov_b32 {s(sIt)}, 0\n{FL}:")
    for sl in range(4):
        a("s_waitcnt vmcnt(8)")
        w = WB[sl % 2]
        for n, va in enumerate((vRa, vRb)):
            for j in range(2):
                a(f"ds_read_b64_tr_b16 {v(w+4*n+2*j,2)}, {v(va)} offset:{sl*2048 + j*1024}")
        f_issue((sl + 3) % 4)
        a("s_waitcnt lgkmcnt(0)")
        for m in range(2):
            for n in range(2):
                a(f"{MFMA} {v(ACC[m][n],16)}, {v(w+4*n,4)}, {v(HB[sl]+4*m,4)}, {v(ACC[m][n],16)}")
    a(f"""
    s_add_u32 {s(sIt)}, {s(sIt)}, 1
    s_cmp_lt_u32 {s(sIt)}, {s(sNI)}
    s_cbranch_scc1 {FL}
    """)
    if opt("tpf", 1):
        a.c("refresh the closing code in L2 (speed only)")
        a(f"""
        s_getpc_b64 s[10:11]
        X_here:
        s_add_u32 s10, s10, M_TAIL-X_here
        s_addc_u32 s11, s11, -1
        v_lshlrev_b32 {v(vT[0])}, 7, {v(vL)}
        s_mov_b64 exec, {(1 << opt("tpfl", 28)) - 1}
        global_load_dword {v(vT[1])}, {v(vT[0])}, s[10:11]
        s_mov_b64 exec, -1
        """)
    a.c("every producer of this tile's O slots has put its markers in place")
    poll(f"v_lshlrev_b32 {v(vT[0])}, 3, {v(vL)}\ns_add_u32 {s(sT0)}, {s(sLH)}, 65536", f"buffer_load_dwordx2 {v(vD,2)}, {v(vT[0])}, {s(rWS,4)}, {s(sT0)} offen{SC}", 32)
    a.c("FFN2 partial a lives at 40K (a = 0) or 48K + 16K*a, as [row][chunk ^ (row&15)] fp32")
    a(f"""
    s_lshl_b32 {s(sT1)}, {s(sA)}, 14
    s_add_u32 {s(sT2)}, {s(sT1)}, 49152
    s_cmp_eq_u32 {s(sA)}, 0
    s_cselect_b32 {s(sT2)}, {BASE}, {s(sT2)}
    v_and_b32 {v(vT[0])}, 31, {v(vL)}
    v_lshrrev_b32 {v(vT[2])}, 5, {v(vL)}
    v_and_b32 {v(vT[3])}, 15, {v(vL)}
    v_xor_b32 {v(vT[2])}, {v(vT[2])}, {v(vT[3])}
    v_lshlrev_b32 {v(vT[2])}, 4, {v(vT[2])}
    v_lshl_add_u32 {v(vT[0])}, {v(vT[0])}, 8, {v(vT[2])}
    v_add_u32 {v(vT[0])}, {s(sT2)}, {v(vT[0])}
    s_mov_b32 {s(rB)}, s8
    s_mov_b32 {s(rB+1)}, s9
    s_mov_b32 {s(rB+2)}, {512*1024}
    s_lshl_b32 {s(sT0)}, {s(sA)}, 16
    s_lshl_b32 {s(sT2)}, {s(sCB)}, 7
    s_add_u32 {s(sT0)}, {s(sT0)}, {s(sT2)}
    s_lshl_b32 {s(sT1)}, {s(sA)}, 13
    v_add_u32 {v(vT[1])}, {s(sT1)}, {v(vL16)}
    """)
    a.c("Wo column block: rows 0..255 -> staging now, rows 256..511 wait in registers until the K area is free")
    for i in range(4):
        a(f"""
        s_add_u32 m0, {s(sSt)}, {i*2048}
        s_add_u32 {s(sT2)}, {s(sT0)}, {i*16384}
        buffer_load_dwordx4 {v(vWo[0])}, {s(rB,4)}, {s(sT2)} offen lds
        buffer_load_dwordx4 {v(vWo[1])}, {s(rB,4)}, {s(sT2)} offen offset:1024 lds
        s_add_u32 {s(sT2)}, {s(sT2)}, {256*1024}
        buffer_load_dwordx4 {v(HB[i],4)}, {v(vWo[0])}, {s(rB,4)}, {s(sT2)} offen
        buffer_load_dwordx4 {v(HB[i]+4,4)}, {v(vWo[1])}, {s(rB,4)}, {s(sT2)} offen offset:1024
        """)
    a("s_waitcnt vmcnt(0)")
    pf.stamp(9)
    CTR = 32768
    a(f"v_mov_b32 {v(vT[4])}, {CTR}\nv_mov_b32 {v(vT[5])}, 0\ns_setprio 3\ns_barrier")
    pf.stamp(5, "tail")
    a(f"ds_write_b32 {v(vT[4])}, {v(vT[5])}")
    for i in range(8):
        a(f"ds_write_b128 {v(vT[1])}, {v(HB[i//2]+4*(i%2),4)} offset:{i*1024}")
    a("s_waitcnt lgkmcnt(0)\ns_barrier\ns_setprio 1")
    if opt("prw", 1): a("s_barrier")
    for n in range(2):
        for gq in range(4):
            a(f"v_xor_b32 {v(vT[2 + gq%2])}, {128*n + 32*gq}, {v(vT[0])}")
            for m in range(2):
                a(f"ds_write_b128 {v(vT[2 + gq%2])}, {v(ACC[m][n]+4*gq,4)} offset:{m*8192}")
    a.c("sum of the four partials: wave a rows 16a..16a+15, lane -> row l/4, chunks 4*(l&3)..")
    a(f"""
    v_lshrrev_b32 {v(vT[0])}, 2, {v(vL)}
    v_and_b32 {v(vT[1])}, 3, {v(vL)}
    v_lshlrev_b32 {v(vT[1])}, 2, {v(vT[1])}
    v_xor_b32 {v(vT[1])}, {v(vT[1])}, {v(vT[0])}
    v_lshlrev_b32 {v(vT[1])}, 4, {v(vT[1])}
    v_lshl_add_u32 {v(vT[0])}, {v(vT[0])}, 8, {v(vT[1])}
    s_lshl_b32 {s(sT1)}, {s(sA)}, 12
    s_add_u32 {s(sT1)}, {s(sT1)}, {BASE}
    v_add_u32 {v(vT[0])}, {s(sT1)}, {v(vT[0])}
    v_xor_b32 {v(vT[1])}, 16, {v(vT[0])}
    v_xor_b32 {v(vT[2])}, 32, {v(vT[0])}
    v_xor_b32 {v(vT[3])}, 48, {v(vT[0])}
    s_waitcnt lgkmcnt(0)
    """)
    pf.stamp(6, "tail")
    SP = a.label("X_sp")
    a(f"""
    v_mov_b32 {v(vT[5])}, 1
    s_mov_b64 exec, 1
    ds_add_u32 {v(vT[4])}, {v(vT[5])}
    {SP}:
    ds_read_b32 {v(vT[5])}, {v(vT[4])}
    s_waitcnt lgkmcnt(0)
    v_cmp_ne_u32 vcc, 4, {v(vT[5])}
    s_cbranch_vccnz {SP}
    s_mov_b64 exec, -1
    """)
    Z = ACC[0][0]
    for p, off in enumerate((0, 65536 - BASE, 81920 - BASE, 98304 - BASE)):
        for i in range(4):
            a(f"ds_read_b128 {v(Z + 16*p + 4*i,4)}, {v(vT[i])} offset:{off}")
        if p == 2: a("s_waitcnt lgkmcnt(4)")
    for i in range(16): a(f"v_add_f32 {v(Z+i)}, {v(Z+i)}, {v(Z+16+i)}")
    a("s_waitcnt lgkmcnt(0)")
    for i in range(16): a(f"v_add_f32 {v(Z+32+i)}, {v(Z+32+i)}, {v(Z+48+i)}")
    for i in range(16): a(f"v_add_f32 {v(Z+i)}, {v(Z+i)}, {v(Z+32+i)}")
    for i in range(4): a(f"ds_write_b128 {v(vT[i])}, {v(Z+4*i,4)}")
    a("s_waitcnt lgkmcnt(0)\ns_barrier")
    pf.finish(vT[0], vT[1], sW)
    return V.hi

def main():
    head = open("cdna_kernels/" + NAME + ".s.ref").read().split("\n")
    hdr = [l for l in head if l.startswith(";") and "@launch" not in l and "Override launch" not in l and "grid=ceil" not in l]
    a = Asm()
    out = "\n".join(hdr) + "\n; @launch grid=(256,1,1) block=(768,1,1) lds=163840\n"
    out += '.amdgcn_target "amdgcn-amd-amdhsa--gfx950"\n.text\n'
    vh, sh = gen(a)
    print("vgpr", vh, "sgpr", sh, file=sys.stderr)
    out += a.text() + '.section .rodata,"a"\n.p2align 6\n' + kernel_desc(KNAME, vh, sh)
    args = [x for x in sys.argv[1:] if x.endswith(".s")]
    dst = args[0] if args else "cdna_kernels/" + NAME + ".s"
    open(dst, "w").write(out)

main()
```

```python
import sys, struct
from asmlib import *

NAME = "parallel_sum__softmax_full_mha__dense_activation_gelu__prompt"
KNAME = NAME + "_kernel"
def opt(name, default):
    for x in sys.argv:
        if x.startswith(name + "="): return int(x.split("=")[1], 0)
    return default
WS_BASE = opt("wsbase", 0)
WS_Q, WS_K, WS_V, WS_A3 = WS_BASE, WS_BASE + 0x200000, WS_BASE + 0x400000, WS_BASE + 0x600000
A3_STEPS = 118
A3_TSTRIDE = A3_STEPS * 1024
WS_FLAG = WS_A3 + 64 * A3_TSTRIDE
FLAG_Q, FLAG_H, FLAG_O = WS_FLAG, WS_FLAG + 65536, WS_FLAG + 131072
WS_EPOCH = WS_FLAG + 196608
WS_END = WS_EPOCH + 256
LOG2E = 1.4426950408889634
PROF = "prof" in sys.argv
WS_PROF = 0x2000000
def f32(x): return "0x%08x" % struct.unpack("<I", struct.pack("<f", x))[0]
SC = " sc1"
SCQ = {0: " sc1", 1: "", 2: " nt", 3: " sc0 sc1", 4: " sc1 nt"}[opt("scq", 0)]
SCL = " sc1" if opt("scl", 1) else ""
XNT = " nt" if opt("xnt",0) else ""
WNT = " nt" if opt("wnt",0) else ""

class Cnt:
    def __init__(self, a, name, maxv):
        self.a, self.name, self.maxv, self.q = a, name, maxv, []
    def op(self, tag, n=1):
        self.q += [tag] * n
    def wait(self, *tags):
        idx = max((i for i, t in enumerate(self.q) if t in tags), default=-1)
        if idx < 0: return
        n = len(self.q) - 1 - idx
        self.a(f"s_waitcnt {self.name}({min(n, self.maxv)})")
        self.q = self.q[idx + 1:] if n <= self.maxv else self.q[len(self.q) - self.maxv:]
    def all(self):
        self.a(f"s_waitcnt {self.name}(0)")
        self.q = []

class Prof:
    def __init__(self, a, S, n):
        self.a, self.n = a, n
        if PROF:
            self.t = [S.alloc(2, 2) for _ in range(n)]
            self.rt = [S.alloc(2, 2) for _ in range(2)]
            self.r = S.alloc(4, 4)
    def start(self):
        if PROF:
            self.a(f"s_memrealtime {s(self.rt[0],2)}")
            for t in self.t: self.a(f"s_mov_b64 {s(t,2)}, 0")
            self.stamp(0)
    def stamp(self, i, kind="std"):
        mode = "fine" if "fine" in sys.argv else ("early" if "early" in sys.argv else ("tail" if "tail" in sys.argv else ("loop" if "loop" in sys.argv else "std")))
        if PROF and (kind == mode or i in (0, self.n - 1)):
            self.a(f"s_memtime {s(self.t[i],2)}")
    def finish(self, vt, vt2, wave_s):
        if not PROF: return
        a = self.a
        a("s_waitcnt vmcnt(0)")
        self.stamp(self.n - 1)
        a(f"s_memrealtime {s(self.rt[1],2)}\ns_waitcnt lgkmcnt(0)")
        a(f"s_load_dwordx2 {s(self.r,2)}, s[0:1], 80\ns_waitcnt lgkmcnt(0)")
        a(f"s_mov_b32 {s(self.r+2)}, 0x4000000\ns_mov_b32 {s(self.r+3)}, 0x00020000")
        o = self.rt[0] + 1
        a(f"s_lshl_b32 {s(o)}, s2, 4\ns_add_u32 {s(o)}, {s(o)}, {s(wave_s)}\ns_lshl_b32 {s(o)}, {s(o)}, 6\ns_add_u32 {s(o)}, {s(o)}, {WS_PROF}")
        a(f"s_mov_b64 exec, 1\nv_mov_b32 {v(vt)}, {s(o)}")
        for j, r in enumerate([self.rt[0], self.rt[1]] + self.t):
            a(f"v_mov_b32 {v(vt2)}, {s(r)}\nbuffer_store_dword {v(vt2)}, {v(vt)}, {s(self.r,4)}, 0 offen offset:{4*j}\ns_nop 1")

def srd(a, d, lo, hi, size):
    a(f"s_mov_b32 {s(d)}, {lo}\ns_mov_b32 {s(d+1)}, {hi}\ns_mov_b32 {s(d+2)}, {size}\ns_mov_b32 {s(d+3)}, 0x00020000")

MFMA = "v_mfma_f32_32x32x16_bf16"
SMF = "v_smfmac_f32_32x32x32_bf16"
RING = 65536; SLOT = 24576
ROT = 2
DPOS = opt("dpos", 8)
SEQ = [("c", k) for k in range(8)]
SEQ = SEQ[:DPOS] + [("d", 0)] + SEQ[DPOS:] + [("d", k) for k in range(1, 8)]
if DPOS >= 8: SEQ = [("c", k) for k in range(8)] + [("d", k) for k in range(8)]
LASTC = max(p for p, it in enumerate(SEQ) if it[0] == "c")
FIRSTD = min(p for p, it in enumerate(SEQ) if it[0] == "d")
def plan():
    slot, issue = {}, {}
    free = {0: -1, 1: -1, 2: -1, 3: -1}
    order = list(range(16))
    if DPOS < 8:
        order = [0, 1, 2, FIRSTD] + [p for p in range(3, 16) if p != FIRSTD]
    DE = opt("dearly", 0)
    if DPOS >= 8 and DE:
        order = list(range(8 - DE)) + [8] + list(range(8 - DE, 8)) + list(range(9, 16))
    for n, p in enumerate(order):
        sl = min(free, key=lambda k: (free[k], k))
        slot[p] = sl
        issue[p] = free[sl] if n >= opt("ninit", 2) else -2
        if issue[p] == -1: issue[p] = 0
        assert issue[p] < p, (p, issue[p])
        free[sl] = p + 1
    return slot, issue, order
SLOTOF, ISSUE, IORDER = plan()
BASE = 40960
STG = 131072
QFLAG_CHUNK = opt("qflag", 13)

def gen(a):
    S = Regs("s", 24, 102)
    kernel_header(a, KNAME)
    END = a.label("END"); AUX = a.label("AUX")
    pf = Prof(a, S, 14 if not opt("lin", 0) else 14)
    sW, sRB, sCB, sH, sR8, sT0, sT1, sT2, sT3, sIt = [S.alloc() for _ in range(10)]
    rWS = S.alloc(4, 4); rA = S.alloc(4, 4); rB = S.alloc(4, 4); rC = S.alloc(4, 4)
    rL = pf.r if PROF else S.alloc(4, 4)
    sU = [S.alloc() for _ in range(10)]
    sMask = S.alloc(2, 2); sK = S.alloc(2, 2)
    a(f"""
    s_cmp_ge_u32 s2, 256
    s_cbranch_scc1 {END}
    """)
    pf.start()
    if opt("dbgclk", 0): a("s_memtime s[96:97]\ns_memrealtime s[98:99]")
    a(f"""
    s_load_dwordx4 s[4:7], s[0:1], 0
    s_load_dwordx2 s[8:9], s[0:1], 16
    s_load_dwordx8 s[12:19], s[0:1], 32
    s_load_dwordx4 s[20:23], s[0:1], 64
    s_load_dwordx2 {s(rWS,2)}, s[0:1], 80
    v_lshrrev_b32 v1, 6, v0
    v_and_b32 v2, 63, v0
    v_readfirstlane_b32 {s(sW)}, v1
    s_and_b32 {s(sT0)}, s2, 7
    s_lshr_b32 {s(sT1)}, s2, 3
    s_and_b32 {s(sRB)}, {s(sT0)}, 3
    s_lshl_b32 {s(sRB)}, {s(sRB)}, 3
    s_and_b32 {s(sT2)}, {s(sT1)}, 7
    s_add_u32 {s(sRB)}, {s(sRB)}, {s(sT2)}
    s_and_b32 {s(sCB)}, {s(sT0)}, 4
    s_lshr_b32 {s(sT2)}, {s(sT1)}, 3
    s_add_u32 {s(sCB)}, {s(sCB)}, {s(sT2)}
    s_lshl_b32 {s(sH)}, {s(sT0)}, 2
    s_and_b32 {s(sT2)}, {s(sT1)}, 3
    s_add_u32 {s(sH)}, {s(sH)}, {s(sT2)}
    s_lshr_b32 {s(sR8)}, {s(sT1)}, 2
    s_mov_b32 {s(rWS+2)}, {WS_END}
    s_mov_b32 {s(rWS+3)}, 0x00020000
    """)
    if opt("cpf", 1):
        a.c("pull this kernel's code into L2 (speed only): every wave touches a few lines")
        NL = opt("cpfl", 160)
        a(f"""
        s_getpc_b64 s[10:11]
        s_mul_i32 {s(sT2)}, {s(sT1)}, 12
        s_add_u32 {s(sT2)}, {s(sT2)}, {s(sW)}
        s_mul_i32 {s(sT3)}, {s(sT2)}, {(65536 + NL - 1) // NL}
        s_lshr_b32 {s(sT3)}, {s(sT3)}, 16
        s_mul_i32 {s(sT3)}, {s(sT3)}, {NL}
        s_sub_u32 {s(sT2)}, {s(sT2)}, {s(sT3)}
        s_lshl_b32 {s(sT2)}, {s(sT2)}, 7
        v_mov_b32 v1, {s(sT2)}
        s_mov_b64 exec, 1
        global_load_dword v1, v1, s[10:11]
        s_mov_b64 exec, -1
        """)
    a(f"""
    s_cmp_ge_u32 {s(sW)}, 8
    s_cbranch_scc1 {AUX}
    """)
    vmax = 0
    vmax = max(vmax, gen_main(a, locals()))
    a(f"{AUX}:")
    vmax = max(vmax, gen_aux(a, locals()))
    a(f"{END}:\ns_endpgm")
    a(".fill 512, 4, 0xbf810000")
    return vmax, (102 if opt("dbgclk", 0) else S.hi)

def gen_main(a, G):
    g = lambda n: G[n]
    pf, sW, sRB, sCB, sH, sR8, sT0, sT1, sT2, sT3, sIt = [g(n) for n in "pf sW sRB sCB sH sR8 sT0 sT1 sT2 sT3 sIt".split()]
    rWS, rA, rB, rC, sU, sMask, sK, END = [g(n) for n in "rWS rA rB rC sU sMask sK END".split()]
    V = Regs("v", 3, 168)
    vL = 2
    vm = Cnt(a, "vmcnt", 63); lg = Cnt(a, "lgkmcnt", 15)
    vT = [V.alloc() for _ in range(8)]
    vBias = [V.alloc(4, 4), V.alloc(4, 4)]
    vOneB = V.alloc(4, 4)
    XA = [V.alloc() for _ in range(8)]; WA = [V.alloc(), V.alloc()]
    F = [V.alloc(12, 4) for _ in range(4)]
    ACC1 = [V.alloc(16, 4), V.alloc(16, 4)]; ACC2 = [V.alloc(16, 4), V.alloc(16, 4)]
    P = V.alloc(16, 4)
    vDum = V.alloc(4, 2)
    X = ACC1[0]
    sMT, sNH, sHI = sU[0], sU[1], sU[2]
    a.c("---------------- main waves: x rows -> LayerNorm -> xn in LDS")
    a(f"""
    v_lshrrev_b32 {v(vT[0])}, 3, {v(vL)}
    v_and_b32 {v(vT[1])}, 7, {v(vL)}
    s_lshl_b32 {s(sT0)}, {s(sRB)}, 6
    s_lshl_b32 {s(sT1)}, {s(sW)}, 3
    s_add_u32 {s(sT0)}, {s(sT0)}, {s(sT1)}
    s_lshl_b32 {s(sT0)}, {s(sT0)}, 10
    v_lshlrev_b32 {v(vT[2])}, 10, {v(vT[0])}
    v_lshl_add_u32 {v(vT[2])}, {v(vT[1])}, 4, {v(vT[2])}
    s_and_b32 {s(sMT)}, {s(sW)}, 1
    s_lshr_b32 {s(sNH)}, {s(sW)}, 1
    s_and_b32 {s(sNH)}, {s(sNH)}, 1
    s_lshr_b32 {s(sHI)}, {s(sW)}, 2
    s_mov_b32 {s(rA+2)}, {2048*1024}
    s_mov_b32 {s(rA+3)}, 0x00020000
    s_mov_b32 {s(rB+2)}, 2752
    s_mov_b32 {s(rB+3)}, 0x00020000
    """)
    pf.stamp(1, "early")
    a(f"""
    s_waitcnt lgkmcnt(0)
    s_mov_b32 {s(rA)}, s4
    s_mov_b32 {s(rA+1)}, s5
    s_mov_b32 {s(rB)}, s14
    s_mov_b32 {s(rB+1)}, s15
    """)
    if opt("tlb", 0):
        a.c("one gather that touches every buffer, so that all address translations are fetched together (speed only)")
        TA = P + 12
        a(f"v_mov_b64 {v(TA,2)}, s[4:5]")
        for i, pr in enumerate(["s[6:7]", "s[12:13]", "s[14:15]", s(rWS,2), "s[22:23]", "s[16:17]", "s[8:9]", "s[18:19]", "s[20:21]"]):
            a(f"s_mov_b64 exec, {2 << i}\nv_mov_b64 {v(TA,2)}, {pr}")
        a(f"s_mov_b64 exec, 0x3ff\nglobal_load_dword {v(vDum)}, {v(TA,2)}, off\ns_mov_b64 exec, -1"); vm.op("tlb")
    pf.stamp(2, "early")
    for i in range(8):
        a(f"buffer_load_dwordx4 {v(X+4*i,4)}, {v(vT[2])}, {s(rA,4)}, {s(sT0)} offen offset:{128*i}{XNT}"); vm.op(f"x{i}")
    pf.stamp(3, "early")
    a.c("bias fragments: column = 192cb + 64g + 32nh + l%32 (g = 0,1 for waves 0-3, g = 2 for waves 4-7); upper half-wave reads out of range -> 0")
    a(f"""
    s_mul_i32 {s(sT1)}, {s(sCB)}, 192
    s_lshl_b32 {s(sT2)}, {s(sHI)}, 7
    s_add_u32 {s(sT1)}, {s(sT1)}, {s(sT2)}
    s_lshl_b32 {s(sT2)}, {s(sNH)}, 5
    s_add_u32 {s(sU[3])}, {s(sT1)}, {s(sT2)}
    v_and_b32 {v(vT[3])}, 31, {v(vL)}
    v_and_b32 {v(vT[4])}, 32, {v(vL)}
    v_lshl_add_u32 {v(vT[4])}, {v(vT[4])}, 16, {v(vT[3])}
    v_add_u32 {v(vT[4])}, {s(sU[3])}, {v(vT[4])}
    v_lshlrev_b32 {v(vT[4])}, 1, {v(vT[4])}
    buffer_load_ushort {v(vBias[0])}, {v(vT[4])}, {s(rB,4)}, 0 offen
    buffer_load_ushort {v(vBias[1])}, {v(vT[4])}, {s(rB,4)}, 0 offen offset:128
    """)
    vm.op("b", 2)
    pf.stamp(4, "early")
    if opt("bx", 1): a("s_barrier")
    pf.stamp(5, "early")
    sColF = sU[3]
    a.c("LDS addresses for the GEMM phases")
    a(f"""
    v_lshrrev_b32 {v(vT[4])}, 5, {v(vL)}
    v_and_b32 {v(vT[5])}, 15, {v(vL)}
    v_xor_b32 {v(vT[6])}, {v(vT[5])}, {v(vT[4])}
    s_lshl_b32 {s(sT1)}, {s(sMT)}, 15
    v_lshl_add_u32 {v(vT[7])}, {v(vT[3])}, 10, {s(sT1)}
    v_lshl_add_u32 {v(XA[0])}, {v(vT[6])}, 4, {v(vT[7])}
    """)
    for q in range(1, 4 if ROT else 8):
        a(f"v_xor_b32 {v(XA[q])}, {32*q}, {v(XA[0])}")
    sKc = sU[9]
    if ROT:
        a.c("k-chunks are visited in an order rotated by workgroup, so that neighbours fetch different weight rows first")
        a(f"s_and_b32 {s(sKc)}, {s(sRB)}, 7\ns_lshl_b32 {s(sKc)}, {s(sKc)}, 7")
    a(f"""
    v_lshrrev_b32 {v(vT[5])}, 2, {v(vT[5])}
    v_lshl_add_u32 {v(vT[5])}, {v(vT[4])}, 3, {v(vT[5])}
    v_lshlrev_b32 {v(vT[5])}, 7, {v(vT[5])}
    v_and_b32 {v(vT[6])}, 1, {v(vT[0])}
    v_xor_b32 {v(vT[6])}, {s(sNH)}, {v(vT[6])}
    v_lshl_add_u32 {v(vT[5])}, {v(vT[6])}, 6, {v(vT[5])}
    v_bfe_u32 {v(vT[6])}, {v(vL)}, 4, 1
    v_lshl_add_u32 {v(vT[5])}, {v(vT[6])}, 5, {v(vT[5])}
    v_and_b32 {v(vT[6])}, 3, {v(vL)}
    v_lshl_add_u32 {v(vT[5])}, {v(vT[6])}, 3, {v(vT[5])}
    s_lshl_b32 {s(sT1)}, {s(sHI)}, 14
    s_add_u32 {s(sT1)}, {s(sT1)}, {RING}
    v_add_u32 {v(WA[0])}, {s(sT1)}, {v(vT[5])}
    v_add_u32 {v(WA[1])}, {2*SLOT}, {v(WA[0])}
    v_mov_b32 {v(vOneB)}, 0x3f80
    """)
    for r in (vBias[0], vBias[1], vOneB):
        for i in range(1, 4): a(f"v_mov_b32 {v(r+i)}, 0")
    a.c("xn write addresses: row = 8w + l/8")
    vWr = [vT[3], vT[4]]; vS = [F[0], F[0]+1, F[0]+2, F[0]+3]; vOnes = vT[5]; RN = F[0] + 4
    a(f"""
    s_lshl_b32 {s(sT1)}, {s(sW)}, 3
    v_add_u32 {v(vT[6])}, {s(sT1)}, {v(vT[0])}
    v_and_b32 {v(vT[7])}, 15, {v(vT[6])}
    v_xor_b32 {v(vT[7])}, {v(vT[7])}, {v(vT[1])}
    v_lshlrev_b32 {v(vT[7])}, 4, {v(vT[7])}
    v_lshl_add_u32 {v(vWr[0])}, {v(vT[6])}, 10, {v(vT[7])}
    v_xor_b32 {v(vWr[1])}, 128, {v(vWr[0])}
    v_mov_b32 {v(vOnes)}, 0x3f803f80
    """)
    for i in range(4): a(f"v_mov_b32 {v(vS[i])}, 0")
    pf.stamp(1); pf.stamp(6, "early")
    for i in range(8):
        vm.wait(f"x{i}")
        if i == 0: pf.stamp(7, "early")
        if i == 7: pf.stamp(8, "early")
        for d in range(4):
            r = X + 4*i + d
            a(f"v_dot2_f32_bf16 {v(vS[d%2])}, {v(r)}, {v(vOnes)}, {v(vS[d%2])}")
            a(f"v_dot2_f32_bf16 {v(vS[2+d%2])}, {v(r)}, {v(r)}, {v(vS[2+d%2])}")
    pf.stamp(2)
    a(f"""
    s_nop 2
    v_add_f32 {v(vS[0])}, {v(vS[0])}, {v(vS[1])}
    v_add_f32 {v(vS[2])}, {v(vS[2])}, {v(vS[3])}
    """)
    for m in ("quad_perm:[1,0,3,2]", "quad_perm:[2,3,0,1]", "row_half_mirror"):
        a(f"""
        s_nop 1
        v_add_f32_dpp {v(vS[0])}, {v(vS[0])}, {v(vS[0])} {m} row_mask:0xf bank_mask:0xf
        v_add_f32_dpp {v(vS[2])}, {v(vS[2])}, {v(vS[2])} {m} row_mask:0xf bank_mask:0xf
        """)
    vMean, vVar = vS[0], vS[2]
    a(f"""
    v_mul_f32 {v(vMean)}, {f32(1/512)}, {v(vMean)}
    v_mul_f32 {v(vVar)}, {f32(1/512)}, {v(vVar)}
    v_fma_f32 {v(vVar)}, -{v(vMean)}, {v(vMean)}, {v(vVar)}
    v_max_f32 {v(vVar)}, 0, {v(vVar)}
    v_cvt_pk_bf16_f32 {v(vMean)}, -{v(vMean)}, {v(vVar)}
    v_and_b32 {v(vVar)}, 0xffff0000, {v(vMean)}
    v_add_f32 {v(vVar)}, {f32(1e-5)}, {v(vVar)}
    v_cvt_pk_bf16_f32 {v(vVar)}, {v(vVar)}, {v(vVar)}
    v_and_b32 {v(vVar)}, 0xffff0000, {v(vVar)}
    v_sqrt_f32 {v(vVar)}, {v(vVar)}
    v_lshlrev_b32 {v(vMean)}, 16, {v(vMean)}
    v_cvt_pk_bf16_f32 {v(vVar)}, {v(vVar)}, {v(vVar)}
    v_and_b32 {v(vVar)}, 0xffff0000, {v(vVar)}
    v_rcp_f32 {v(RN)}, {v(vVar)}
    s_nop 0
    v_mul_f32 {v(RN+1)}, {v(vMean)}, {v(RN)}
    """)
    TT = F[1]
    for i in range(8):
        for d in range(4):
            r = X + 4*i + d
            a(f"v_lshlrev_b32 {v(TT+2*d)}, 16, {v(r)}\nv_and_b32 {v(TT+2*d+1)}, 0xffff0000, {v(r)}")
        for d in range(4):
            a(f"v_pk_fma_f32 {v(TT+2*d,2)}, {v(TT+2*d,2)}, {v(RN,2)}, {v(RN,2)} op_sel:[0,0,1] op_sel_hi:[1,0,1]")
        for d in range(4):
            a(f"v_cvt_pk_bf16_f32 {v(X+4*i+d)}, {v(TT+2*d)}, {v(TT+2*d+1)}")
        a(f"ds_write_b128 {v(vWr[i%2])}, {v(X+4*i,4)} offset:{(i//2)*256}"); lg.op("w")
    vm.wait("b")
    lg.all()
    pf.stamp(3); pf.stamp(9, "early")
    HI = a.label("M_HI"); JOIN = a.label("M_JOIN")
    a(f"s_cmp_eq_u32 {s(sHI)}, 1\ns_cbranch_scc1 {HI}")
    state = (list(vm.q), list(lg.q))
    def gemm(hi):
        vm.q, lg.q = list(state[0]), list(state[1])
        ng = 1 if hi else 2
        def xread(c, st):
            sx = sT3 if c % 2 else sT2
            if st == 0: a(f"s_add_u32 {s(sx)}, {s(sKc)}, {SEQ[c][1] << 7}\ns_and_b32 {s(sx)}, {s(sx)}, 0x380")
            a(f"v_xor_b32 {v(XA[4+st])}, {s(sx)}, {v(XA[st])}")
            if hi and opt("noxhi", 0): return
            a(f"ds_read_b128 {v(F[st],4)}, {v(XA[4+st])}"); lg.op(("x", c, st))
        def wread(c, st):
            sl = SLOTOF[c]
            for gi in range(ng):
                for j in range(2):
                    off = (sl & 1) * SLOT + gi * 8192 + st * 2048 + j * 512
                    a(f"ds_read_b64_tr_b16 {v(F[st]+4+4*gi+2*j,2)}, {v(WA[sl >> 1])} offset:{off}"); lg.op(("w", c, st))
        def mf(c, st):
            lg.wait(("x", c, st), ("w", c, st))
            isq = SEQ[c][0] == "c"
            acc = ACC1 if isq else ACC2
            for gi in range(ng):
                w, x = v(F[st]+4+4*gi,4), v(F[st],4)
                cin = "0" if (c == 0 and st == 0) else v(acc[gi],16)
                if hi and isq: a(f"{MFMA} {v(acc[gi],16)}, {x}, {w}, {cin}")
                else: a(f"{MFMA} {v(acc[gi],16)}, {w}, {x}, {cin}")
        def qkv_epilogue(part):
            sTT, sO = sU[4], sU[5]
            if part == 0:
                a(f"""
                s_lshl_b32 {s(sTT)}, {s(sRB)}, 1
                s_add_u32 {s(sTT)}, {s(sTT)}, {s(sMT)}
                s_lshl_b32 {s(sO)}, {s(sCB)}, 1
                s_add_u32 {s(sO)}, {s(sO)}, {s(sNH)}
                s_lshl_b32 {s(sO)}, {s(sO)}, 17
                s_lshl_b32 {s(sT0)}, {s(sTT)}, 10
                s_add_u32 {s(sO)}, {s(sO)}, {s(sT0)}
                s_add_u32 {s(sO)}, {s(sO)}, {WS_Q}
                """)
                if not hi:
                    a(f"""
                    v_lshlrev_b32 {v(vT[0])}, 4, {v(vL)}
                    v_lshrrev_b32 {v(vT[1])}, 1, {v(vL)}
                    v_xor_b32 {v(vT[1])}, {v(vT[1])}, {v(vL)}
                    v_and_b32 {v(vT[1])}, 4, {v(vT[1])}
                    v_mul_u32_u24 {v(vT[1])}, 3, {v(vT[1])}
                    v_xor_b32 {v(vT[1])}, {v(vT[1])}, {v(vL)}
                    v_lshlrev_b32 {v(vT[1])}, 4, {v(vT[1])}
                    s_add_u32 {s(sU[6])}, {s(sO)}, 65536
                    s_add_u32 {s(sU[7])}, {s(sO)}, {WS_K - WS_Q}
                    s_add_u32 {s(sU[8])}, {s(sO)}, {WS_K - WS_Q + 65536}
                    """)
                else:
                    a(f"""
                    v_lshlrev_b32 {v(vT[0])}, 4, {v(vL)}
                    v_bfe_u32 {v(vT[1])}, {v(vL)}, 4, 1
                    v_lshlrev_b32 {v(vT[1])}, 16, {v(vT[1])}
                    v_and_b32 {v(vT[2])}, 15, {v(vL)}
                    v_lshl_add_u32 {v(vT[1])}, {v(vT[2])}, 4, {v(vT[1])}
                    v_lshrrev_b32 {v(vT[2])}, 5, {v(vL)}
                    v_lshl_add_u32 {v(vT[1])}, {v(vT[2])}, 8, {v(vT[1])}
                    s_add_u32 {s(sU[7])}, {s(sO)}, {WS_V - WS_Q}
                    """)
            elif hi:
                if part == 1:
                    for i in range(8): a(f"v_cvt_pk_bf16_f32 {v(P+i)}, {v(ACC1[0]+2*i)}, {v(ACC1[0]+2*i+1)}")
            elif part == 1:
                for i in range(8): a(f"v_cvt_pk_bf16_f32 {v(P+8+i)}, {v(ACC1[1]+2*i)}, {v(ACC1[1]+2*i+1)}")
            else:
                for i in range(16): a(f"v_mul_f32 {v(ACC1[0]+i)}, {f32(0.25*LOG2E)}, {v(ACC1[0]+i)}")
                for i in range(8): a(f"v_cvt_pk_bf16_f32 {v(P+i)}, {v(ACC1[0]+2*i)}, {v(ACC1[0]+2*i+1)}")
        def qkv_store(k):
            sO = sU[5]
            if hi:
                t = {0: f"buffer_store_dwordx4 {v(P,4)}, {v(vT[1])}, {s(rWS,4)}, {s(sU[7])} offen{SCQ}",
                     1: f"buffer_store_dwordx4 {v(P+4,4)}, {v(vT[1])}, {s(rWS,4)}, {s(sU[7])} offen offset:512{SCQ}"}[k]
            else:
                t = {0: f"buffer_store_dwordx4 {v(P+8,4)}, {v(vT[1])}, {s(rWS,4)}, {s(sU[7])} offen{SCQ}",
                     1: f"buffer_store_dwordx4 {v(P+12,4)}, {v(vT[1])}, {s(rWS,4)}, {s(sU[8])} offen{SCQ}",
                     2: f"buffer_store_dwordx4 {v(P,4)}, {v(vT[0])}, {s(rWS,4)}, {s(sO)} offen{SCQ}",
                     3: f"buffer_store_dwordx4 {v(P+4,4)}, {v(vT[0])}, {s(rWS,4)}, {s(sU[6])} offen{SCQ}"}[k]
            a(t); vm.op("st")
        ss = opt("ssched", 3)
        E = LASTC + 1
        if ss == 0: stsched = {E: [0, 1]} if hi else {E: [0, 1, 2, 3]}
        if ss == 1: stsched = {E+2: [0], E+3: [1]} if hi else {E: [0], E+1: [1], E+4: [2], E+5: [3]}
        if ss == 2: stsched = {E+1: [0], E+3: [1]} if hi else {E: [0], E+1: [1], E+2: [2], E+3: [3]}
        if ss == 3: stsched = {E: [0], E+1: [1]} if hi else {E: [0, 1], E+1: [2, 3]}
        if ss == 4: stsched = {E+1: [0], E+2: [1]} if hi else {E: [0], E+1: [1], E+2: [2], E+3: [3]}
        for c in range(16):
            if c == QFLAG_CHUNK: vm.all()
            a("s_barrier")
            if c == QFLAG_CHUNK and not hi:
                nf, ok, pl = a.label("M_noflag"), a.label("M_tokok"), a.label("M_tokpoll")
                a.c("wave 0 publishes Q/K/V: this launch's tag into each of the 32 consumers' flag rows")
                a(f"""
                s_cmp_lg_u32 {s(sW)}, 0
                s_cbranch_scc1 {nf}
                s_mov_b32 {s(sIt)}, 0
                {pl}:
                v_cmp_eq_u32 vcc, 0, {v(vDum)}
                s_cbranch_vccz {ok}
                s_sleep 2
                v_mov_b32 {v(vDum+2)}, 0
                global_load_dwordx2 {v(vDum,2)}, {v(vDum+2)}, s[22:23]{SC}
                s_add_u32 {s(sIt)}, {s(sIt)}, 1
                s_waitcnt vmcnt(0)
                s_cmp_lt_u32 {s(sIt)}, 0x20000
                s_cbranch_scc1 {pl}
                {ok}:
                s_lshl_b32 {s(sT0)}, {s(sCB)}, 13
                s_lshl_b32 {s(sT1)}, {s(sRB)}, 3
                s_add_u32 {s(sT0)}, {s(sT0)}, {s(sT1)}
                s_add_u32 {s(sT0)}, {s(sT0)}, {FLAG_Q}
                v_lshlrev_b32 {v(vDum+2)}, 8, {v(vL)}
                s_mov_b32 exec_hi, 0
                buffer_store_dwordx2 {v(vDum,2)}, {v(vDum+2)}, {s(rWS,4)}, {s(sT0)} offen{SC}
                s_mov_b64 exec, -1
                {nf}:
                """)
            if c == 8 and not hi:
                nf = a.label("M_notokld")
                a(f"""
                s_cmp_lg_u32 {s(sW)}, 0
                s_cbranch_scc1 {nf}
                v_mov_b32 {v(vDum+2)}, 0
                global_load_dwordx2 {v(vDum,2)}, {v(vDum+2)}, s[22:23]{SC}
                {nf}:
                """)
            if c == 0:
                pf.stamp(4); pf.stamp(10, "early")
                xread(0, 0); xread(0, 1)
            if c == E: pf.stamp(5)
            if c >= 5: pf.stamp(c - 4, "fine")
            wread(c, 0); wread(c, 1)
            if c > 0: mf(c - 1, 3)
            if c == E - 1: qkv_epilogue(0)
            if c == FIRSTD:
                for gi in range(ng):
                    a(f"{MFMA} {v(ACC2[gi],16)}, {v(vBias[gi],4)}, {v(vOneB,4)}, 0")
            mf(c, 0)
            xread(c, 2); wread(c, 2)
            mf(c, 1)
            xread(c, 3); wread(c, 3)
            if c == E:
                if hi: a("s_nop 3")
                qkv_epilogue(1)
            if c < 15: xread(c + 1, 0); xread(c + 1, 1)
            mf(c, 2)
            if c == E: qkv_epilogue(2)
            for k in stsched.get(c, []): qkv_store(k)
            lg.wait(("w", c, 3))
        a("s_barrier")
        pf.stamp(6); pf.stamp(12, "fine")
        mf(15, 3)
        c1 = -2 * 0.7978845608028654 * LOG2E
        c2 = c1 * 0.044715
        CC = F[0]; T = F[1]
        a(f"""
        v_mov_b32 {v(CC)}, {f32(c2)}
        v_mov_b32 {v(CC+1)}, {f32(c1)}
        s_mul_i32 {s(sT1)}, {s(sMT)}, 12288
        s_lshl_b32 {s(sT0)}, {s(sNH)}, 11
        s_add_u32 {s(sT0)}, {s(sT0)}, {s(sT1)}
        s_add_u32 {s(sT0)}, {s(sT0)}, {STG + 8192 + (8192 if hi else 0)}
        v_add_u32 {v(vT[2])}, {s(sT0)}, {v(vT[0])}
        s_nop 6
        """)
        for gi in range(ng):
            skip = a.label("M_skip")
            A_ = ACC2[gi]; Pg = P + 8*gi
            a(f"s_add_u32 {s(sT1)}, {s(sColF)}, {64*gi}\ns_cmp_ge_u32 {s(sT1)}, 1376\ns_cbranch_scc1 {skip}")
            for i in range(0, 16, 2): a(f"v_pk_mul_f32 {v(T+i,2)}, {v(A_+i,2)}, {v(A_+i,2)}")
            for i in range(0, 16, 2): a(f"v_pk_fma_f32 {v(T+i,2)}, {v(T+i,2)}, {v(CC,2)}, {v(CC,2)} op_sel:[0,0,1] op_sel_hi:[1,0,1]")
            for i in range(0, 16, 2): a(f"v_pk_mul_f32 {v(T+i,2)}, {v(T+i,2)}, {v(A_+i,2)}")
            for i in range(16): a(f"v_exp_f32 {v(T+i)}, {v(T+i)}")
            for i in range(0, 16, 2): a(f"v_pk_add_f32 {v(T+i,2)}, {v(T+i,2)}, 1.0 op_sel_hi:[1,0]")
            for i in range(16): a(f"v_rcp_f32 {v(T+i)}, {v(T+i)}")
            for i in range(0, 16, 2): a(f"v_pk_mul_f32 {v(T+i,2)}, {v(T+i,2)}, {v(A_+i,2)}")
            for i in range(8): a(f"v_cvt_pk_bf16_f32 {v(Pg+i)}, {v(T+2*i)}, {v(T+2*i+1)}")
            a(f"ds_write_b128 {v(vT[2])}, {v(Pg,4)} offset:{4096*gi}")
            a(f"ds_write_b128 {v(vT[2])}, {v(Pg+4,4)} offset:{4096*gi + 1024}")
            a(f"{skip}:")
    gemm(False)
    a(f"s_branch {JOIN}\n{HI}:")
    gemm(True)
    a(f"{JOIN}:")
    vm.q = []; lg.q = []
    pf.stamp(7)
    WFq = list(range(vBias[0], XA[0] + 8, 4)) + list(range(F[0] + 16, ACC1[0], 4)) + [P, P + 4, P + 8]
    assert len(WFq) == 16, WFq
    a("s_waitcnt lgkmcnt(0)")
    vXr, vB2 = P + 12, vDum
    a.c("residual x and b2 of this thread's 8 output columns")
    a(f"""
    s_mov_b32 {s(rB)}, s18
    s_mov_b32 {s(rB+1)}, s19
    s_mov_b32 {s(rB+2)}, 1024
    v_lshrrev_b32 {v(vT[5])}, 3, v0
    s_lshl_b32 {s(sT0)}, {s(sRB)}, 6
    v_add_u32 {v(vT[5])}, {s(sT0)}, {v(vT[5])}
    v_and_b32 {v(vT[6])}, 7, v0
    s_lshl_b32 {s(sT0)}, {s(sCB)}, 7
    v_lshl_add_u32 {v(vT[6])}, {v(vT[6])}, 4, {s(sT0)}
    v_lshl_add_u32 {v(WA[0])}, {v(vT[5])}, 10, {v(vT[6])}
    buffer_load_dwordx4 {v(vXr,4)}, {v(WA[0])}, {s(rA,4)}, 0 offen
    buffer_load_dwordx4 {v(vB2,4)}, {v(vT[6])}, {s(rB,4)}, 0 offen
    """)
    vWa, vWp, vRp, vLp = WA[1], WA[1] + 1, WA[1] + 2, 1
    assert vRp < F[0]
    a.c("addresses of the closing phase: wave (mt = w&1, kq = w>>1)")
    a(f"""
    s_and_b32 {s(sU[6])}, {s(sW)}, 1
    s_lshr_b32 {s(sU[7])}, {s(sW)}, 1
    s_lshl_b32 {s(sT0)}, {s(sRB)}, 1
    s_add_u32 {s(sT0)}, {s(sT0)}, {s(sU[6])}
    s_mul_i32 {s(sU[5])}, {s(sT0)}, {A3_TSTRIDE}
    s_lshl_b32 {s(sT0)}, {s(sU[7])}, 13
    s_add_u32 {s(sU[5])}, {s(sU[5])}, {s(sT0)}
    s_add_u32 {s(sU[5])}, {s(sU[5])}, {WS_A3}
    s_add_u32 {s(sT3)}, {s(sU[5])}, 4096
    s_lshl_b32 {s(sT0)}, {s(sR8)}, 3
    s_add_u32 {s(sT0)}, {s(sT0)}, {s(sW)}
    s_mul_i32 {s(sT0)}, {s(sT0)}, {A3_TSTRIDE}
    s_lshl_b32 {s(sT1)}, {s(sH)}, 10
    s_add_u32 {s(sT0)}, {s(sT0)}, {s(sT1)}
    s_add_u32 {s(sU[8])}, {s(sT0)}, {WS_A3}
    v_lshlrev_b32 {v(vLp)}, 10, {v(vL)}
    v_add_u32 {v(vLp)}, 1020, {v(vLp)}
    v_lshrrev_b32 {v(vT[5])}, 5, {v(vL)}
    v_bfe_u32 {v(vWa)}, {v(vL)}, 2, 2
    v_lshl_add_u32 {v(vWa)}, {v(vT[5])}, 2, {v(vWa)}
    v_lshlrev_b32 {v(vWa)}, 7, {v(vWa)}
    v_bfe_u32 {v(vT[6])}, {v(vL)}, 3, 1
    v_lshl_add_u32 {v(vWa)}, {v(vT[6])}, 6, {v(vWa)}
    v_bfe_u32 {v(vT[6])}, {v(vL)}, 4, 1
    v_lshl_add_u32 {v(vWa)}, {v(vT[6])}, 5, {v(vWa)}
    v_and_b32 {v(vT[6])}, 3, {v(vL)}
    v_lshl_add_u32 {v(vWa)}, {v(vT[6])}, 3, {v(vWa)}
    s_and_b32 {s(sT1)}, {s(sU[7])}, 1
    s_lshl_b32 {s(sT1)}, {s(sT1)}, 14
    s_add_u32 {s(sT0)}, {s(sT1)}, {STG}
    s_cmp_lt_u32 {s(sU[7])}, 2
    s_cselect_b32 {s(sT1)}, {s(sT0)}, {s(sT1)}
    v_add_u32 {v(vWa)}, {s(sT1)}, {v(vWa)}
    v_and_b32 {v(vWp)}, 31, {v(vL)}
    s_lshl_b32 {s(sT0)}, {s(sU[6])}, 5
    v_add_u32 {v(vWp)}, {s(sT0)}, {v(vWp)}
    v_and_b32 {v(vT[6])}, 15, {v(vWp)}
    v_xor_b32 {v(vT[5])}, {v(vT[5])}, {v(vT[6])}
    v_lshlrev_b32 {v(vT[5])}, 4, {v(vT[5])}
    v_lshl_add_u32 {v(vWp)}, {v(vWp)}, 8, {v(vT[5])}
    v_add_u32 {v(vWp)}, {s(sT1)}, {v(vWp)}
    v_lshrrev_b32 {v(vT[5])}, 3, v0
    v_and_b32 {v(vRp)}, 7, v0
    v_lshlrev_b32 {v(vRp)}, 1, {v(vRp)}
    v_and_b32 {v(vT[6])}, 15, {v(vT[5])}
    v_xor_b32 {v(vRp)}, {v(vRp)}, {v(vT[6])}
    v_lshlrev_b32 {v(vRp)}, 4, {v(vRp)}
    v_lshl_add_u32 {v(vRp)}, {v(vT[5])}, 8, {v(vRp)}
    s_mov_b32 {s(rC)}, s20
    s_mov_b32 {s(rC+1)}, s21
    s_mov_b32 {s(rC+2)}, {2048*1024}
    s_mov_b32 {s(rC+3)}, 0x00020000
    """)
    V2 = Regs("v", 3, 168)
    vL16 = V2.alloc(); vKa = V2.alloc(); vVa = V2.alloc(); vIdx = V2.alloc(); vVb = V2.alloc(); t = [V2.alloc() for _ in range(3)]
    assert vL16 == vT[0]
    V2.n = P + 16
    V2.n = ACC1[0]
    Q = V2.alloc(4, 4); K = V2.alloc(4, 4); V1 = V2.alloc(4, 4); Vb = V2.alloc(4, 4)
    C = V2.alloc(16, 4)
    SB = [ACC2[0], ACC2[1]]; O = F[0]
    assert V2.n <= ACC2[0] and F[0] + 16 <= ACC1[0]
    sBar, sPass, sTT = sU[0], sU[1], sU[2]
    a.c("---------------- attention: head h, q tile 8*r8 + w")
    a(f"""
    v_mov_b32 {v(vIdx)}, 0xdddddddd
    s_mov_b32 {s(sMask)}, 0x0000ffff
    s_mov_b32 {s(sMask+1)}, 0x0000ffff
    v_and_b32 {v(t[0])}, 15, {v(vL)}
    v_lshrrev_b32 {v(t[1])}, 5, {v(vL)}
    v_lshlrev_b32 {v(t[1])}, 8, {v(t[1])}
    v_lshl_add_u32 {v(t[1])}, {v(t[0])}, 4, {v(t[1])}
    v_add_u32 {v(vVb)}, 65536, {v(t[1])}
    v_and_b32 {v(t[0])}, 27, {v(vL)}
    v_cmp_eq_u32 vcc, 16, {v(t[0])}
    v_mov_b32 {v(t[2])}, 0x3f803f80
    s_mov_b32 {s(sBar)}, 3
    v_cndmask_b32 {v(t[2])}, 0, {v(t[2])}, vcc
    s_lshl_b32 {s(sTT)}, {s(sR8)}, 3
    s_add_u32 {s(sTT)}, {s(sTT)}, {s(sW)}
    s_lshl_b32 {s(sT0)}, {s(sW)}, 10
    s_add_u32 {s(sT0)}, {s(sT0)}, {STG}
    v_add_u32 {v(t[0])}, {s(sT0)}, {v(vL16)}
    """)
    for i in range(4):
        a(f"v_mov_b32 {v(V1+i)}, {v(t[2])}\nv_mov_b32 {v(Vb+i)}, {v(t[2])}")
    for i in range(16): a(f"v_mov_b32 {v(O+i)}, 0")
    for i in range(8, 16): a(f"v_mov_b32 {v(SB[1]+i)}, 0")
    a(f"v_mov_b32 {v(vKa)}, {v(vL16)}\nv_mov_b32 {v(vVa)}, {v(vVb)}\ns_mov_b32 {s(sIt)}, 0")
    a("s_waitcnt lgkmcnt(0)\ns_barrier")
    pf.stamp(8); pf.stamp(1, "loop")
    a(f"""
    ds_read_b128 {v(Q,4)}, {v(t[0])}
    ds_read_b128 {v(K,4)}, {v(vL16)}
    s_mov_b64 exec, {s(sMask,2)}
    ds_read_b128 {v(Vb,4)}, {v(vVa)}
    s_mov_b64 exec, -1
    s_waitcnt lgkmcnt(1)
    {MFMA} {v(SB[0],16)}, {v(K,4)}, {v(Q,4)}, 0
    s_nop 11
    """)
    def rowmax(src, dst, first):
        k = 0
        if first:
            a(f"v_max3_f32 {v(dst)}, {v(src)}, {v(src+1)}, {v(src+2)}"); k = 3
        while k < 16:
            if k + 1 < 16:
                a(f"v_max3_f32 {v(dst)}, {v(dst)}, {v(src+k)}, {v(src+k+1)}"); k += 2
            else:
                a(f"v_max_f32 {v(dst)}, {v(dst)}, {v(src+k)}"); k += 1
    LOOP = a.label("AT_LOOP"); nob = a.label("AT_nob"); DONE = a.label("AT_DONE")
    a(f"v_max3_f32 {v(t[0])}, {v(SB[0])}, {v(SB[0]+1)}, {v(SB[0]+2)}\nv_max3_f32 {v(t[1])}, {v(SB[0]+3)}, {v(SB[0]+4)}, {v(SB[0]+5)}")
    for k in range(6, 14, 4):
        a(f"v_max3_f32 {v(t[0])}, {v(t[0])}, {v(SB[0]+k)}, {v(SB[0]+k+1)}\nv_max3_f32 {v(t[1])}, {v(t[1])}, {v(SB[0]+k+2)}, {v(SB[0]+k+3)}")
    a(f"""
    v_max3_f32 {v(t[0])}, {v(t[0])}, {v(SB[0]+14)}, {v(SB[0]+15)}
    v_max_f32 {v(t[0])}, {v(t[0])}, {v(t[1])}
    v_mov_b32 {v(t[1])}, {v(t[0])}
    s_nop 1
    v_permlane32_swap_b32 {v(t[0])}, {v(t[1])}
    s_nop 0
    v_max_f32 {v(C)}, -{v(t[0])}, -{v(t[1])}
    """.replace("v_max_f32 " + v(C), "v_min_f32 " + v(C)))
    a(f"v_mov_b32 {v(C+1)}, {v(C)}")
    for i in range(2, 16, 2): a(f"v_pk_mov_b32 {v(C+i,2)}, {v(C,2)}, {v(C,2)}")
    a(f"""
    s_nop 1
    {MFMA} {v(SB[0],16)}, {v(K,4)}, {v(Q,4)}, {v(C,16)}
    ds_read_b128 {v(K,4)}, {v(vKa)} offset:1024
    s_mov_b64 exec, {s(sMask,2)}
    ds_read_b128 {v(V1,4)}, {v(vVa)}
    s_mov_b64 exec, -1
    s_nop 4
    """)
    pf.stamp(2, "loop")
    a(f"""
    .p2align 3
    {LOOP}:
    s_cmp_eq_u32 {s(sIt)}, {12 // opt("U", 4) if opt("U", 4) <= 4 else 1}
    s_cbranch_scc1 {nob}B
    {nob}:
    """)
    U = opt("U", 4)
    for k in range(U):
        cur, oth = SB[k % 2], SB[(k + 1) % 2]
        e = lambda i: a(f"v_exp_f32 {v(cur+i)}, {v(cur+i)}")
        a(f"s_setprio {3 - k % 4}")
        e(0); e(1)
        a(f"s_waitcnt lgkmcnt(2)\n{SMF} {v(O,16)}, {v(Vb,4)}, {v(oth+8,8)}, {v(vIdx)}")
        a(f"s_mov_b64 exec, {s(sMask,2)}\nds_read_b128 {v(Vb,4)}, {v(vVa)} offset:{k*1024 + 512}\ns_mov_b64 exec, -1")
        e(2); e(3); e(4); e(5)
        a(f"s_waitcnt lgkmcnt(2)\n{MFMA} {v(oth,16)}, {v(K,4)}, {v(Q,4)}, {v(C,16)}")
        a(f"ds_read_b128 {v(K,4)}, {v(vKa)} offset:{(k+2)*1024}")
        e(6); e(7); e(8); e(9); e(10)
        a(f"s_waitcnt lgkmcnt(2)\n{SMF} {v(O,16)}, {v(V1,4)}, {v(cur,8)}, {v(vIdx)}")
        a(f"s_mov_b64 exec, {s(sMask,2)}\nds_read_b128 {v(V1,4)}, {v(vVa)} offset:{(k+1)*1024}\ns_mov_b64 exec, -1")
        e(11); e(12); e(13)
        if k == U - 1 and PROF and "loop" in sys.argv:
            for it, sl in ((0, 5), (5, 6), (8, 7), (11, 8), (14, 9)):
                lb = a.label("PL")
                a(f"s_cmp_lg_u32 {s(sIt)}, {it}\ns_cbranch_scc1 {lb}")
                pf.stamp(sl, "loop")
                a(f"{lb}:")
        if k == U - 1:
            a(f"v_add_u32 {v(vKa)}, {U*1024}, {v(vKa)}\nv_add_u32 {v(vVa)}, {U*1024}, {v(vVa)}")
            a(f"s_add_u32 {s(sIt)}, {s(sIt)}, 1\ns_cmp_lt_u32 {s(sIt)}, {64//U}")
        e(14); e(15)
    a(f"""
    s_cbranch_scc1 {LOOP}
    M_TAIL:
    """)
    pf.stamp(10, "loop")
    a(f"""
    s_waitcnt lgkmcnt(0)
    s_setprio 3
    {SMF} {v(O,16)}, {v(Vb,4)}, {v(SB[1]+8,8)}, {v(vIdx)}
    s_mov_b32 {s(sT0)}, {f32(2.0**60)}
    s_mov_b32 {s(sT1)}, {f32(2.0**120)}
    s_barrier
    s_nop 8
    """)
    a.c("the stand-in max was the max over the first key tile: check nothing overflowed, otherwise redo with the true row max")
    a(f"""
    v_max3_f32 {v(t[0])}, |{v(O)}|, |{v(O+1)}|, |{v(O+2)}|
    v_add_f32 {v(t[1])}, {v(O)}, {v(O+1)}
    v_add_f32 {v(t[2])}, {v(O+2)}, {v(O+3)}
    v_max3_f32 {v(t[0])}, {v(t[0])}, |{v(O+3)}|, |{v(O+4)}|
    v_add_f32 {v(t[1])}, {v(t[1])}, {v(O+4)}
    v_add_f32 {v(t[2])}, {v(t[2])}, {v(O+5)}
    v_max3_f32 {v(t[0])}, {v(t[0])}, |{v(O+5)}|, |{v(O+6)}|
    v_add_f32 {v(t[1])}, {v(t[1])}, {v(O+6)}
    v_add_f32 {v(t[2])}, {v(t[2])}, {v(O+7)}
    v_max_f32 {v(t[0])}, {v(t[0])}, |{v(O+7)}|
    v_add_f32 {v(t[1])}, {v(t[1])}, {v(t[2])}
    v_cmp_nlt_f32 vcc, {v(O+8)}, {s(sT0)}
    v_cmp_nlt_f32 {s(sK,2)}, {v(t[0])}, {s(sT1)}
    s_or_b64 vcc, vcc, {s(sK,2)}
    v_cmp_u_f32 {s(sK,2)}, {v(t[1])}, {v(t[1])}
    s_or_b64 vcc, vcc, {s(sK,2)}
    s_cbranch_vccz {DONE}
    """)
    a(f"s_branch {nob}F\n{nob}B:")
    pf.stamp(3, "loop")
    a("s_barrier")
    pf.stamp(4, "loop")
    a(f"s_branch {nob}\n{nob}F:")
    ML, ML2 = a.label("AT_MAXLOOP"), a.label("AT_REDO")
    a.c("rare path: true row max, then the whole row block again, K/V straight from global memory")
    a(f"""
    s_lshl_b32 {s(sT0)}, {s(sH)}, 16
    s_add_u32 {s(sT0)}, {s(sT0)}, {WS_K}
    v_mov_b32 {v(t[0])}, 0xff800000
    s_mov_b32 {s(sIt)}, 0
    {ML}:
    buffer_load_dwordx4 {v(K,4)}, {v(vL16)}, {s(rWS,4)}, {s(sT0)} offen{SC}
    s_add_u32 {s(sT0)}, {s(sT0)}, 1024
    s_waitcnt vmcnt(0)
    {MFMA} {v(SB[0],16)}, {v(K,4)}, {v(Q,4)}, 0
    s_nop 15
    """)
    rowmax(SB[0], t[0], False)
    a(f"""
    s_add_u32 {s(sIt)}, {s(sIt)}, 1
    s_cmp_lt_u32 {s(sIt)}, 64
    s_cbranch_scc1 {ML}
    v_mov_b32 {v(t[1])}, {v(t[0])}
    v_subrev_u32 {v(vVa)}, 65536, {v(vVb)}
    s_sub_u32 {s(sT0)}, {s(sT0)}, 65536
    v_permlane32_swap_b32 {v(t[0])}, {v(t[1])}
    s_add_u32 {s(sT1)}, {s(sT0)}, {WS_V - WS_K}
    s_mov_b32 {s(sIt)}, 0
    v_max_f32 {v(t[0])}, {v(t[0])}, {v(t[1])}
    """)
    for i in range(16): a(f"v_sub_f32 {v(C+i)}, 0, {v(t[0])}\nv_mov_b32 {v(O+i)}, 0")
    a(f"""
    {ML2}:
    buffer_load_dwordx4 {v(K,4)}, {v(vL16)}, {s(rWS,4)}, {s(sT0)} offen{SC}
    s_mov_b64 exec, {s(sMask,2)}
    buffer_load_dwordx4 {v(V1,4)}, {v(vVa)}, {s(rWS,4)}, {s(sT1)} offen{SC}
    buffer_load_dwordx4 {v(Vb,4)}, {v(vVa)}, {s(rWS,4)}, {s(sT1)} offen offset:512{SC}
    s_mov_b64 exec, -1
    s_add_u32 {s(sT0)}, {s(sT0)}, 1024
    s_add_u32 {s(sT1)}, {s(sT1)}, 1024
    s_waitcnt vmcnt(0)
    {MFMA} {v(SB[0],16)}, {v(K,4)}, {v(Q,4)}, {v(C,16)}
    s_nop 15
    """)
    for i in range(16): a(f"v_exp_f32 {v(SB[0]+i)}, {v(SB[0]+i)}")
    a(f"""
    s_nop 1
    {SMF} {v(O,16)}, {v(V1,4)}, {v(SB[0],8)}, {v(vIdx)}
    {SMF} {v(O,16)}, {v(Vb,4)}, {v(SB[0]+8,8)}, {v(vIdx)}
    s_add_u32 {s(sIt)}, {s(sIt)}, 1
    s_nop 15
    s_cmp_lt_u32 {s(sIt)}, 64
    s_cbranch_scc1 {ML2}
    {DONE}:
    """)
    pf.stamp(1, "tail")
    a(f"""
    v_rcp_f32 {v(t[0])}, {v(O+8)}
    s_nop 0
    """)
    for i in range(8): a(f"v_mul_f32 {v(O+i)}, {v(O+i)}, {v(t[0])}")
    for i in range(4): a(f"v_cvt_pk_bf16_f32 {v(K+i)}, {v(O+2*i)}, {v(O+2*i+1)}")
    a(f"buffer_store_dwordx4 {v(K,4)}, {v(vL16)}, {s(rWS,4)}, {s(sU[8])} offen{SC}")
    pf.stamp(9)
    pf.stamp(2, "tail")
    a.c("---------------- final: out tile (tm = rb, tn = cb), wave (mt = w&1, kq = w>>1): heads 8kq..8kq+7, 32 tokens x 64 cols")
    vOa = WA[0]
    vBa = vVb
    OF = [ACC2[0] + 4*i for i in range(8)]
    ACC = [ACC1[0], ACC1[1]]
    sP, sRdy, sOo, sMTf, sKQ = sU[3], sU[4], sU[5], sU[6], sU[7]
    PART = 65536
    def oload(f):
        a(f"buffer_load_dwordx4 {v(OF[f],4)}, {v(vL16)}, {s(rWS,4)}, {s(sOo if f < 4 else sT3)} offen offset:{(f%4)*1024}{SC}")
    vHint = t[2]; vWb = vVa
    def cinit():
        pf.stamp(5, "tail")
        a(f"v_xor_b32 {v(vWb)}, 64, {v(vWa)}\ns_barrier")
        for f in range(8):
            for n, va in enumerate((vWa, vWb)):
                for j in range(2):
                    a(f"ds_read_b64_tr_b16 {v(WFq[2*f+n]+2*j,2)}, {v(va)} offset:{f*2048 + j*1024}")
            if f % 2 == 1 and f < 7:
                for i in range(8): a(f"v_mov_b32 {v(ACC[0] + 8*(f//2) + i)}, 0")
                a("s_waitcnt lgkmcnt(6)")
        for i in range(8): a(f"v_mov_b32 {v(ACC[0] + 24 + i)}, 0")
        a("s_waitcnt lgkmcnt(0)\ns_barrier")
        pf.stamp(6, "tail")
    def tree(body, mask_s):
        for h in range(2):
            skh = a.label("F_skh")
            a(f"s_and_b32 {s(sT0)}, {s(mask_s)}, {0xf << (4*h)}\ns_cbranch_scc0 {skh}")
            for f in range(4*h, 4*h + 4):
                sk = a.label("F_sk")
                a(f"s_bitcmp1_b32 {s(mask_s)}, {f}\ns_cbranch_scc0 {sk}")
                body(f, sk)
                a(f"{sk}:")
            a(f"{skh}:")
    def consume(f, sk):
        tt_ = t[f % 2]
        a(f"""
        v_max3_u32 {v(tt_)}, {v(OF[f])}, {v(OF[f]+1)}, {v(OF[f]+2)}
        v_max_u32 {v(tt_)}, {v(tt_)}, {v(OF[f]+3)}
        v_cmp_eq_u32 vcc, -1, {v(tt_)}
        s_and_b64 vcc, vcc, {s(sK,2)}
        s_cbranch_vccnz {sk}
        """)
        for n in range(2):
            a(f"{MFMA} {v(ACC[n],16)}, {v(WFq[2*f+n],4)}, {v(OF[f],4)}, {v(ACC[n],16)}")
        a(f"s_bitset0_b32 {s(sP)}, {f}")
    a.c("O fragments arrive from 32 other workgroups; a slot still holding the all-ones marker has not been written yet")
    SLOW, PH2, PH2B, RD = a.label("F_SLOW"), a.label("F_PH2"), a.label("F_PH2B"), a.label("F_DONE")
    a(f"""
    s_mov_b32 {s(sP)}, 255
    s_mov_b32 {s(sIt)}, 0
    s_mov_b64 {s(sK,2)}, -1
    """)
    cinit()
    a("s_waitcnt vmcnt(0)")
    if opt("d1", 0): a(f"s_sleep {opt('d1', 0)}")
    pf.stamp(4, "tail")
    if opt("first", 0) == 1:
        a(f"""
        s_mov_b64 exec, 255
        buffer_load_dword {v(vHint)}, {v(vLp)}, {s(rWS,4)}, {s(sOo)} offen{SC}
        s_mov_b64 exec, -1
        s_waitcnt vmcnt(0)
        v_cmp_ne_u32 vcc, -1, {v(vHint)}
        s_and_b32 {s(sRdy)}, vcc_lo, 255
        s_cmp_lg_u32 {s(sRdy)}, 255
        s_cbranch_scc1 {SLOW}
        """)
    for f in range(8): oload(f)
    for f in range(8):
        sk = a.label("F_sk")
        a(f"s_waitcnt vmcnt({7 - f})")
        consume(f, sk)
        a(f"{sk}:")
    a(f"s_branch {PH2}\n{SLOW}:")
    tree(lambda f, sk: oload(f), sRdy)
    a(f"{PH2B}:\ns_waitcnt vmcnt(0)")
    pf.stamp(8, "tail")
    tree(consume, sRdy)
    PL = a.label("F_PL"); GO = a.label("F_GO")
    a(f"""
    {PH2}:
    s_cmp_eq_u32 {s(sP)}, 0
    s_cbranch_scc1 {RD}
    s_mov_b32 {s(sRdy)}, {s(sP)}
    s_add_u32 {s(sIt)}, {s(sIt)}, 1
    s_bcnt1_i32_b32 {s(sT0)}, {s(sP)}
    s_cmp_le_u32 {s(sT0)}, {opt("few", 8)}
    s_cbranch_scc1 {GO}S
    s_mov_b64 exec, 255
    {PL}:
    s_sleep {opt("psleep", 6)}
    buffer_load_dword {v(vHint)}, {v(vLp)}, {s(rWS,4)}, {s(sOo)} offen{SC}
    s_add_u32 {s(sIt)}, {s(sIt)}, 1
    s_waitcnt vmcnt(0)
    v_cmp_eq_u32 vcc, -1, {v(vHint)}
    s_and_b32 {s(sT0)}, vcc_lo, {s(sP)}
    s_cbranch_scc0 {GO}
    s_cmp_lt_u32 {s(sIt)}, 0x8000
    s_cbranch_scc1 {PL}
    s_branch {GO}
    {GO}S:
    s_sleep {opt("psleep", 6)}
    {GO}:
    """)
    pf.stamp(7, "tail")
    a(f"""
    s_mov_b64 exec, -1
    s_cmp_lt_u32 {s(sIt)}, 0x8000
    s_cselect_b64 {s(sK,2)}, -1, 0
    """)
    tree(lambda f, sk: oload(f), sRdy)
    a(f"s_branch {PH2B}\n{RD}:")
    a("s_nop 3")
    pf.stamp(11); pf.stamp(9, "tail")
    if PROF and "tail" in sys.argv:
        a(f"s_waitcnt lgkmcnt(0)\ns_add_u32 {s(pf.t[12])}, {s(pf.t[0])}, {s(sIt)}\ns_add_u32 {s(pf.t[12])}, {s(pf.t[12])}, 1")
    XS = F[0] + 16; R = ACC2[0]
    for i in range(4):
        a(f"v_lshlrev_b32 {v(XS+2*i)}, 16, {v(vXr+i)}\nv_and_b32 {v(XS+2*i+1)}, 0xffff0000, {v(vXr+i)}")
    for i in range(4):
        a(f"v_lshlrev_b32 {v(XS+8+2*i)}, 16, {v(vB2+i)}\nv_and_b32 {v(XS+8+2*i+1)}, 0xffff0000, {v(vB2+i)}")
    for n in range(2):
        for gq in range(4):
            a(f"v_xor_b32 {v(t[gq%2])}, {128*n + 32*gq}, {v(vWp)}\nds_write_b128 {v(t[gq%2])}, {v(ACC[n]+4*gq,4)}")
    for i in range(8): a(f"v_add_f32 {v(XS+i)}, {v(XS+i)}, {v(XS+8+i)}")
    a(f"""
    v_xor_b32 {v(t[1])}, 16, {v(vRp)}
    v_add_u32 {v(vBa)}, {STG}, {v(vRp)}
    v_add_u32 {v(t[0])}, {STG}, {v(t[1])}
    s_waitcnt lgkmcnt(0)
    """)
    pf.stamp(10, "tail")
    a("s_barrier")
    pf.stamp(11, "tail")
    R2 = ACC1[0]
    for k, (a0_, a1_, off) in enumerate([(vRp, t[1], 0), (vRp, t[1], 16384), (vRp, t[1], BASE), (vBa, t[0], 0), (vBa, t[0], 16384)]):
        d = R + 8*k if k < 4 else R2
        a(f"ds_read_b128 {v(d,4)}, {v(a0_)} offset:{off}\nds_read_b128 {v(d+4,4)}, {v(a1_)} offset:{off}")
    a("s_waitcnt lgkmcnt(6)")
    for i in range(8): a(f"v_add_f32 {v(XS+i)}, {v(XS+i)}, {v(R+i)}")
    for i in range(8): a(f"v_add_f32 {v(XS+i)}, {v(XS+i)}, {v(R+8+i)}")
    a("s_waitcnt lgkmcnt(2)")
    for i in range(8): a(f"v_add_f32 {v(R+16+i)}, {v(R+16+i)}, {v(R+24+i)}")
    for i in range(8): a(f"v_add_f32 {v(XS+i)}, {v(XS+i)}, {v(R+16+i)}")
    a("s_waitcnt lgkmcnt(0)")
    for i in range(8): a(f"v_add_f32 {v(XS+i)}, {v(XS+i)}, {v(R2+i)}")
    for i in range(4): a(f"v_cvt_pk_bf16_f32 {v(R+i)}, {v(XS+2*i)}, {v(XS+2*i+1)}")
    a(f"buffer_store_dwordx4 {v(R,4)}, {v(vOa)}, {s(rC,4)}, 0 offen")
    if opt("dbgclk", 0):
        a(f"""
        s_memtime {s(sMask,2)}
        s_memrealtime {s(sK,2)}
        s_waitcnt lgkmcnt(0)
        s_sub_u32 {s(sMask)}, {s(sMask)}, s96
        s_sub_u32 {s(sK)}, {s(sK)}, s98
        s_cmp_lg_u32 {s(sW)}, 0
        s_cbranch_scc1 {END}
        s_and_b32 {s(sT0)}, s2, 63
        s_cmp_lg_u32 {s(sT0)}, 5
        s_cbranch_scc1 {END}
        s_lshr_b32 {s(sT0)}, s2, 6
        s_lshl_b32 {s(sT0)}, {s(sT0)}, 3
        s_add_u32 {s(sT0)}, {s(sT0)}, 16
        v_mov_b32 {v(t[0])}, {s(sT0)}
        v_mov_b32 {v(R+4)}, {s(sMask)}
        v_mov_b32 {v(R+5)}, {s(sK)}
        s_mov_b64 exec, 1
        global_store_dwordx2 {v(t[0])}, {v(R+4,2)}, s[22:23]
        """)
    pf.finish(t[0], t[1], sW)
    a("s_endpgm")
    return V.hi

def gen_aux(a, G):
    g = lambda n: G[n]
    pf, sW, sRB, sCB, sH, sR8, sT0, sT1, sT2, sT3, sIt = [g(n) for n in "pf sW sRB sCB sH sR8 sT0 sT1 sT2 sT3 sIt".split()]
    rWS, rA, rB, rC, sU, sMask, sK, END = [g(n) for n in "rWS rA rB rC sU sMask sK END".split()]
    V = Regs("v", 3, 168)
    vL = 2
    vm = Cnt(a, "vmcnt", 63); lg = Cnt(a, "lgkmcnt", 15)
    vL16 = V.alloc(); vT = [V.alloc() for _ in range(6)]
    vWq = [V.alloc(), V.alloc()]; vW1 = [V.alloc(), V.alloc()]
    vD = V.alloc(4, 4)
    sA = sU[0]; sOff = [sU[1], sU[2], sU[3]]; sM = [sU[4], sU[5], sU[6]]; sI8 = sU[7]
    a.c("---------------- aux waves: weight streaming for the two GEMMs")
    a(f"""
    s_setprio {opt("auxprio", 1)}
    s_sub_u32 {s(sA)}, {s(sW)}, 8
    v_lshlrev_b32 {v(vL16)}, 4, {v(vL)}
    v_lshrrev_b32 {v(vT[0])}, 3, {v(vL)}
    v_bfe_u32 {v(vT[1])}, {v(vL)}, 4, 1
    v_lshlrev_b32 {v(vT[1])}, 2, {v(vT[1])}
    v_and_b32 {v(vT[2])}, 7, {v(vL)}
    v_xor_b32 {v(vT[1])}, {v(vT[1])}, {v(vT[2])}
    v_lshlrev_b32 {v(vT[1])}, 4, {v(vT[1])}
    v_mul_u32_u24 {v(vT[2])}, 3072, {v(vT[0])}
    v_add_u32 {v(vWq[0])}, {v(vT[2])}, {v(vT[1])}
    v_add_u32 {v(vWq[1])}, {8*3072 - 1024}, {v(vWq[0])}
    v_mul_u32_u24 {v(vT[2])}, 2752, {v(vT[0])}
    v_add_u32 {v(vW1[0])}, {v(vT[2])}, {v(vT[1])}
    v_add_u32 {v(vW1[1])}, {8*2752 - 1024}, {v(vW1[0])}
    s_lshl_b32 {s(sOff[0])}, {s(sCB)}, 7
    s_lshl_b32 {s(sT0)}, {s(sA)}, 10
    s_add_u32 {s(sOff[0])}, {s(sOff[0])}, {s(sT0)}
    s_mul_i32 {s(sOff[1])}, {s(sCB)}, 384
    s_lshl_b32 {s(sT0)}, {s(sA)}, 7
    s_add_u32 {s(sOff[2])}, {s(sOff[1])}, {s(sT0)}
    s_lshl_b32 {s(sM[0])}, {s(sA)}, 13
    s_add_u32 {s(sM[0])}, {s(sM[0])}, {RING}
    s_and_b32 {s(sI8)}, {s(sRB)}, 7
    s_mov_b32 {s(rA+2)}, {512*3072}
    s_mov_b32 {s(rA+3)}, 0x00020000
    s_mov_b32 {s(rB+2)}, {512*2752}
    s_mov_b32 {s(rB+3)}, 0x00020000
    s_cmp_eq_u32 {s(sCB)}, 7
    s_cselect_b32 {s(sT0)}, 0, {512*2752}
    s_cmp_eq_u32 {s(sA)}, 0
    s_cselect_b32 {s(rC+2)}, {512*2752}, {s(sT0)}
    s_mov_b32 {s(sM[1])}, {s(sT0)}
    s_mov_b32 {s(rC+3)}, 0x00020000
    s_waitcnt lgkmcnt(0)
    s_mov_b32 {s(rA)}, s6
    s_mov_b32 {s(rA+1)}, s7
    s_mov_b32 {s(rB)}, s12
    s_mov_b32 {s(rB+1)}, s13
    s_mov_b32 {s(rC)}, s12
    s_mov_b32 {s(rC+1)}, s13
    """)
    sLQ, sLH = sU[8], sU[9]
    sN = sK
    nn = a.label("X_nonce")
    a(f"""
    s_lshl_b32 {s(sLQ)}, {s(sH)}, 3
    s_add_u32 {s(sLQ)}, {s(sLQ)}, {s(sR8)}
    s_lshl_b32 {s(sLQ)}, {s(sLQ)}, 8
    s_add_u32 {s(sLQ)}, {s(sLQ)}, {FLAG_Q}
    s_lshl_b32 {s(sLH)}, {s(sRB)}, 3
    s_add_u32 {s(sLH)}, {s(sLH)}, {s(sCB)}
    s_lshl_b32 {s(sLH)}, {s(sLH)}, 8
    s_add_u32 {s(sLH)}, {s(sLH)}, {FLAG_H}
    """)
    a.c("workgroup 0, wave 11 picks this launch's tag (previous tag + 1, low word never 0) and publishes it through d_debug")
    a(f"""
    s_cmp_lg_u32 s2, 0
    s_cbranch_scc1 {nn}
    s_cmp_lg_u32 {s(sA)}, 3
    s_cbranch_scc1 {nn}
    v_mov_b32 {v(vT[4])}, 0
    s_mov_b32 {s(sT0)}, {WS_EPOCH}
    s_mov_b64 exec, 1
    buffer_load_dwordx2 {v(vD,2)}, {v(vT[4])}, {s(rWS,4)}, {s(sT0)} offen{SC}
    s_waitcnt vmcnt(0)
    v_add_co_u32 {v(vD)}, vcc, 1, {v(vD)}
    s_nop 1
    v_addc_co_u32 {v(vD+1)}, vcc, 0, {v(vD+1)}, vcc
    v_max_u32 {v(vD)}, 1, {v(vD)}
    buffer_store_dwordx2 {v(vD,2)}, {v(vT[4])}, {s(rWS,4)}, {s(sT0)} offen{SC}
    global_store_dwordx2 {v(vT[4])}, {v(vD,2)}, s[22:23]{SC}
    s_mov_b64 exec, -1
    {nn}:
    """)
    sKr = sMask
    a(f"s_and_b32 {s(sKr)}, {s(sRB)}, 7")
    def group(r, vo, stride, scol, m0base, m0imm):
        for q in range(4):
            a(f"""
            s_add_u32 m0, {m0base}, {m0imm + q*2048}
            s_add_u32 {s(sIt)}, {s(scol)}, {q*16*stride}
            buffer_load_dwordx4 {v(vo[0])}, {s(r,4)}, {s(sIt)} offen{WNT} lds
            buffer_load_dwordx4 {v(vo[1])}, {s(r,4)}, {s(sIt)} offen offset:1024{WNT} lds
            """)
    def dma(c):
        sl = SLOTOF[c]; isq = SEQ[c][0] == "c"
        st = 3072 if isq else 2752
        a(f"""
        s_add_u32 {s(sT3)}, {s(sKr)}, {SEQ[c][1]}
        s_and_b32 {s(sT3)}, {s(sT3)}, 7
        s_mul_i32 {s(sT3)}, {s(sT3)}, {64*st}
        s_add_u32 {s(sT3)}, {s(sT3)}, {s(sOff[0] if isq else sOff[2])}
        """)
        group(rA if isq else rC, vWq if isq else vW1, st, sT3, s(sM[0]), sl*SLOT)
        vm.op(("c", c), 8)
    def dma_lone(c):
        sl = SLOTOF[c]
        a(f"s_mul_i32 {s(sT3)}, {s(sKr)}, {64*2752}\ns_add_u32 {s(sT3)}, {s(sT3)}, {s(sOff[1])}\ns_mov_b32 {s(sT2)}, {RING}")
        for gi in range(3):
            group(rB, vW1, 2752, sT3, s(sT2), sl*SLOT + gi*8192)
            if gi == 0: a(f"s_mov_b32 {s(rB+2)}, {s(sM[1])}")
            a(f"s_add_u32 {s(sT3)}, {s(sT3)}, 128")
    W11, WJ = a.label("X_W11"), a.label("X_WJ")
    if opt("bx", 1): a("s_barrier")
    elif opt("bxs", 0): a(f"s_sleep {opt('bxs', 0)}")
    a(f"s_cmp_eq_u32 {s(sA)}, 3\ns_cbranch_scc1 {W11}")
    LONE = FIRSTD if (DPOS < 8 or opt("dearly", 0)) else -1
    for p in IORDER:
        if ISSUE[p] == -2 and p != LONE: dma(p)
    def poll(setup, load, nl):
        L = a.label("X_poll"); D = a.label("X_polld")
        a(setup)
        a(f"s_mov_b32 {s(sIt)}, 0\ns_mov_b64 exec, 255")
        if nl == 32: a("s_mov_b32 exec_lo, -1")
        a(f"""
        {L}:
        {load}
        s_add_u32 {s(sIt)}, {s(sIt)}, 1
        s_waitcnt vmcnt(0)
        v_cmp_ne_u64 vcc, {s(sN,2)}, {v(vD,2)}
        s_cbranch_vccz {D}
        s_sleep {opt("pollsleep", 2)}
        s_cmp_lt_u32 {s(sIt)}, 0x20000
        s_cbranch_scc1 {L}
        {D}:
        s_mov_b64 exec, -1
        """)
        vm.q = []
    def setflag(base, sline, lineshift, sslot, nl, allw=False):
        nf = a.label("X_noflag")
        if not allw: a(f"s_cmp_lg_u32 {s(sA)}, 0\ns_cbranch_scc1 {nf}")
        a(f"""
        s_lshl_b32 {s(sT0)}, {s(sline)}, {lineshift + 8}
        s_lshl_b32 {s(sT1)}, {s(sslot)}, 3
        s_add_u32 {s(sT0)}, {s(sT0)}, {s(sT1)}
        s_add_u32 {s(sT0)}, {s(sT0)}, {base}
        v_lshlrev_b32 {v(vT[0])}, 8, {v(vL)}
        v_mov_b64 {v(vD+2,2)}, {s(sN,2)}
        s_mov_b64 exec, 255
        """)
        if nl == 32: a("s_mov_b32 exec_lo, -1")
        a(f"""
        buffer_store_dwordx2 {v(vD+2,2)}, {v(vT[0])}, {s(rWS,4)}, {s(sT0)} offen{SC}
        s_mov_b64 exec, -1
        {nf}:
        """)
    def tokwait():
        tk, tl = a.label("X_tok"), a.label("X_tokl")
        a(f"""
        s_waitcnt lgkmcnt(0)
        s_cmp_lg_u32 {s(sN)}, 0
        s_cbranch_scc1 {tk}
        s_mov_b32 {s(sIt)}, 0
        v_mov_b32 {v(vT[4])}, 0
        {tl}:
        global_load_dwordx2 {v(vD,2)}, {v(vT[4])}, s[22:23]{SC}
        s_add_u32 {s(sIt)}, {s(sIt)}, 1
        s_waitcnt vmcnt(0)
        v_readfirstlane_b32 {s(sN)}, {v(vD)}
        v_readfirstlane_b32 {s(sN+1)}, {v(vD+1)}
        s_cmp_lg_u32 {s(sN)}, 0
        s_cbranch_scc1 {tk}
        s_sleep 2
        s_cmp_lt_u32 {s(sIt)}, 0x20000
        s_cbranch_scc1 {tl}
        {tk}:
        """)
    for c in range(16):
        vm.wait(("c", c))
        if c >= 5: pf.stamp(c - 4, "fine")
        a("s_barrier")
        if c == 0: pf.stamp(4)
        if c == LASTC + 1: pf.stamp(5)
        for p in IORDER:
            if ISSUE[p] == c and p != LONE: dma(p)
        if c == 10: a(f"s_load_dwordx2 {s(sN,2)}, s[22:23], 0")
    a(f"s_branch {WJ}\n{W11}:")
    LAT = opt("loneat", ISSUE[8] if opt("dearly", 0) else -1)
    if LONE >= 0 and LAT < 0: dma_lone(LONE)
    if opt("pf11", 99) == -1:
        if opt("pf11s", 0): a(f"s_sleep {opt('pf11s', 0)}")
        a(f"""
        s_lshl_b32 {s(sT0)}, {s(sKr)}, 6
        v_add_u32 {v(vT[0])}, {s(sT0)}, {v(vL)}
        v_mul_u32_u24 {v(vT[0])}, 2752, {v(vT[0])}
        """)
        for i in range(4):
            a(f"buffer_load_dword {v(vD + i)}, {v(vT[0])}, {s(rB,4)}, {s(sOff[1])} offen offset:{[0,128,256,380][i]}")
    for c in range(16):
        if c == LONE: a("s_waitcnt vmcnt(0)")
        a("s_barrier")
        if LONE >= 0 and c == LAT: dma_lone(LONE)
        P11 = opt("pf11", 99)
        if P11 < 0: P11 = 99
        if c == P11:
            a.c("warm-up of this workgroup's first W1 chunk, one line column per step")
            a(f"""
            s_lshl_b32 {s(sT0)}, {s(sKr)}, 6
            v_add_u32 {v(vT[0])}, {s(sT0)}, {v(vL)}
            v_mul_u32_u24 {v(vT[0])}, 2752, {v(vT[0])}
            """)
        if 0 <= c - P11 < 4:
            a(f"buffer_load_dword {v(vD + c - P11)}, {v(vT[0])}, {s(rB,4)}, {s(sOff[1])} offen offset:{[0,128,256,380][c - P11]}")
        if c == 10: a(f"s_load_dwordx2 {s(sN,2)}, s[22:23], 0")
    a(f"{WJ}:")
    tokwait()
    pf.stamp(1)
    qset = f"""
        v_and_b32 {v(vT[0])}, 31, {v(vL)}
        v_lshlrev_b32 {v(vT[0])}, 3, {v(vT[0])}
        """
    qld = f"buffer_load_dwordx2 {v(vD,2)}, {v(vT[0])}, {s(rWS,4)}, {s(sLQ)} offen{SC}"
    a(qset)
    vWo = [vWq[0], vWq[1]]
    a(f"""
    v_lshrrev_b32 {v(vT[4])}, 3, {v(vL)}
    v_bfe_u32 {v(vT[1])}, {v(vL)}, 4, 1
    v_lshlrev_b32 {v(vT[1])}, 2, {v(vT[1])}
    v_and_b32 {v(vT[2])}, 7, {v(vL)}
    v_xor_b32 {v(vT[1])}, {v(vT[1])}, {v(vT[2])}
    v_lshlrev_b32 {v(vT[1])}, 4, {v(vT[1])}
    v_lshl_add_u32 {v(vWo[0])}, {v(vT[4])}, 10, {v(vT[1])}
    v_add_u32 {v(vWo[1])}, {8*1024 - 1024}, {v(vWo[0])}
    """)
    a.c("K/V key blocks may be taken in any order: wave a owns producers 8a..8a+7; the first two that are ready fill its four early slots")
    sKV, sPend, sNeed = sU[1], sU[2], sU[5]
    a(f"""
    s_lshl_b32 {s(sKV)}, {s(sH)}, 16
    s_lshl_b32 {s(sU[3])}, {s(sR8)}, 13
    s_add_u32 {s(sU[3])}, {s(sU[3])}, {s(sKV)}
    s_lshl_b32 {s(sU[4])}, {s(sA)}, 11
    s_add_u32 {s(sU[3])}, {s(sU[3])}, {s(sU[4])}
    s_add_u32 {s(sU[3])}, {s(sU[3])}, {WS_Q}
    s_add_u32 {s(sKV)}, {s(sKV)}, {WS_K}
    s_lshl_b32 {s(sT2)}, {s(sA)}, 3
    s_lshl_b32 {s(sPend)}, 255, {s(sT2)}
    s_lshl_b32 {s(sT2)}, {s(sR8)}, 2
    s_add_u32 {s(sT2)}, {s(sT2)}, {s(sA)}
    s_lshl_b32 {s(sNeed)}, 1, {s(sT2)}
    s_lshl_b32 {s(sU[6])}, {s(sA)}, 12
    """)
    def take(smask):
        a(f"""
        s_ff1_i32_b32 {s(sT2)}, {s(smask)}
        s_bitset0_b32 {s(smask)}, {s(sT2)}
        s_bitset0_b32 {s(sPend)}, {s(sT2)}
        s_lshl_b32 {s(sT2)}, {s(sT2)}, 11
        s_add_u32 {s(sT2)}, {s(sT2)}, {s(sKV)}
        s_mov_b32 m0, {s(sU[6])}
        s_add_u32 {s(sT3)}, {s(sT2)}, {WS_V - WS_K}
        buffer_load_dwordx4 {v(vL16)}, {s(rWS,4)}, {s(sT2)} offen{SCL} lds
        buffer_load_dwordx4 {v(vL16)}, {s(rWS,4)}, {s(sT2)} offen offset:1024{SCL} lds
        s_add_u32 m0, {s(sU[6])}, 65536
        s_add_u32 {s(sU[6])}, {s(sU[6])}, 2048
        buffer_load_dwordx4 {v(vL16)}, {s(rWS,4)}, {s(sT3)} offen{SCL} lds
        buffer_load_dwordx4 {v(vL16)}, {s(rWS,4)}, {s(sT3)} offen offset:1024{SCL} lds
        """)
    a(qld)
    a("s_barrier")
    pf.stamp(6)
    QL, QC, QG = a.label("X_ql"), a.label("X_qc"), a.label("X_qg")
    a(f"""
    s_mov_b32 {s(sIt)}, 0
    s_branch {QC}
    {QL}:
    s_sleep {opt("pollsleep", 2)}
    {qld}
    {QC}:
    s_add_u32 {s(sIt)}, {s(sIt)}, 1
    s_waitcnt vmcnt(0)
    v_cmp_eq_u64 vcc, {s(sN,2)}, {v(vD,2)}
    s_cmp_ge_u32 {s(sIt)}, 0x20000
    s_cselect_b32 {s(sT0)}, -1, vcc_lo
    s_and_b32 {s(sT1)}, {s(sT0)}, {s(sNeed)}
    s_cbranch_scc0 {QL}
    s_and_b32 {s(sT0)}, {s(sT0)}, {s(sPend)}
    s_bcnt1_i32_b32 {s(sT1)}, {s(sT0)}
    s_cmp_lt_u32 {s(sT1)}, 2
    s_cbranch_scc1 {QL}
    s_add_u32 m0, {s(sU[4])}, {STG}
    s_nop 0
    buffer_load_dwordx4 {v(vL16)}, {s(rWS,4)}, {s(sU[3])} offen{SCL} lds
    buffer_load_dwordx4 {v(vL16)}, {s(rWS,4)}, {s(sU[3])} offen offset:1024{SCL} lds
    """)
    take(sT0); take(sT0)
    vm.q = []
    ACC = [[V.alloc(16, 4), V.alloc(16, 4)], [V.alloc(16, 4), V.alloc(16, 4)]]
    HB = [V.alloc(8, 4) for _ in range(4)]; HS = V.alloc(24, 4); WB = [HS, HS + 8]
    vRa = vW1[0]; vRb = vW1[1]
    sHo, sWo, sSt, sNI = sMask, sMask + 1, sU[3], sU[4]
    a.c("---------------- FFN2 in the shadow of attention")
    a(f"""
    s_mul_i32 {s(sHo)}, {s(sA)}, {24*1024}
    s_mul_i32 {s(sWo)}, {s(sA)}, {24*16*1024}
    s_lshl_b32 {s(sT2)}, {s(sCB)}, 7
    s_add_u32 {s(sWo)}, {s(sWo)}, {s(sT2)}
    s_lshl_b32 {s(sSt)}, {s(sA)}, 13
    s_add_u32 {s(sSt)}, {s(sSt)}, {STG}
    s_cmp_eq_u32 {s(sA)}, 3
    s_cselect_b32 {s(sNI)}, {min(4, opt("ffnit", 6))}, {opt("ffnit", 6)}
    v_lshrrev_b32 {v(vT[0])}, 5, {v(vL)}
    v_bfe_u32 {v(vT[1])}, {v(vL)}, 2, 2
    v_lshl_add_u32 {v(vT[1])}, {v(vT[0])}, 2, {v(vT[1])}
    v_lshlrev_b32 {v(vT[1])}, 7, {v(vT[1])}
    v_bfe_u32 {v(vT[0])}, {v(vL)}, 3, 1
    v_lshl_add_u32 {v(vT[1])}, {v(vT[0])}, 6, {v(vT[1])}
    v_bfe_u32 {v(vT[0])}, {v(vL)}, 4, 1
    v_lshl_add_u32 {v(vT[1])}, {v(vT[0])}, 5, {v(vT[1])}
    v_and_b32 {v(vT[0])}, 3, {v(vL)}
    v_lshl_add_u32 {v(vT[1])}, {v(vT[0])}, 3, {v(vT[1])}
    v_add_u32 {v(vRa)}, {s(sSt)}, {v(vT[1])}
    v_xor_b32 {v(vRb)}, 64, {v(vRa)}
    """)
    for m in range(2):
        for n in range(2):
            for i in range(16): a(f"v_mov_b32 {v(ACC[m][n]+i)}, 0")
    pf.stamp(2)
    a("s_waitcnt vmcnt(0)\ns_barrier")
    pf.stamp(8)
    Q2, Q2G, Q2T = a.label("X_q2"), a.label("X_q2g"), a.label("X_q2t")
    a(f"""
    s_mul_i32 {s(sU[6])}, {s(sA)}, 12288
    s_add_u32 {s(sU[6])}, {s(sU[6])}, 16384
    v_and_b32 {v(vT[0])}, 31, {v(vL)}
    v_lshlrev_b32 {v(vT[0])}, 3, {v(vT[0])}
    s_mov_b32 {s(sIt)}, 0
    {Q2}:
    v_cmp_ne_u64 vcc, {s(sN,2)}, {v(vD,2)}
    s_and_b32 {s(sT0)}, vcc_lo, {s(sPend)}
    s_cbranch_scc0 {Q2G}
    s_sleep {opt("pollsleep", 2)}
    {qld}
    s_add_u32 {s(sIt)}, {s(sIt)}, 1
    s_waitcnt vmcnt(0)
    s_cmp_lt_u32 {s(sIt)}, 0x20000
    s_cbranch_scc1 {Q2}
    {Q2G}:
    s_mov_b32 {s(sT0)}, {s(sPend)}
    {Q2T}:
    """)
    take(sT0)
    a(f"s_cmp_lg_u32 {s(sT0)}, 0\ns_cbranch_scc1 {Q2T}")
    vm.op("s2", 24)
    rL = G["rL"]
    a.c("all-ones marker into this workgroup's own O slots; H tile SRDs")
    a(f"""
    s_lshl_b32 {s(sT0)}, {s(sR8)}, 3
    s_lshl_b32 {s(sT1)}, {s(sA)}, 1
    s_add_u32 {s(sT0)}, {s(sT0)}, {s(sT1)}
    s_mul_i32 {s(sT0)}, {s(sT0)}, {A3_TSTRIDE}
    s_lshl_b32 {s(sT1)}, {s(sH)}, 10
    s_add_u32 {s(sT0)}, {s(sT0)}, {s(sT1)}
    s_add_u32 {s(sU[5])}, {s(sT0)}, {WS_A3}
    s_add_u32 {s(sU[6])}, {s(sU[5])}, {A3_TSTRIDE}
    """)
    for i in range(4): a(f"v_mov_b32 {v(vD+i)}, -1")
    a(f"""
    buffer_store_dwordx4 {v(vD,4)}, {v(vL16)}, {s(rWS,4)}, {s(sU[5])} offen{SC}
    buffer_store_dwordx4 {v(vD,4)}, {v(vL16)}, {s(rWS,4)}, {s(sU[6])} offen{SC}
    s_mul_i32 {s(sT1)}, {s(sRB)}, {2*A3_TSTRIDE}
    s_add_u32 {s(sT1)}, {s(sT1)}, {WS_A3 + 32*1024}
    s_add_u32 {s(rC)}, {s(rWS)}, {s(sT1)}
    s_addc_u32 {s(rC+1)}, {s(rWS+1)}, 0
    s_mov_b32 {s(rC+2)}, {86*1024}
    s_add_u32 {s(rL)}, {s(rC)}, {A3_TSTRIDE}
    s_addc_u32 {s(rL+1)}, {s(rC+1)}, 0
    s_mov_b32 {s(rL+2)}, {86*1024}
    s_mov_b32 {s(rL+3)}, 0x00020000
    """)
    vm.op("sent", 2)
    a.c("H tiles: staging -> global; wave a: token tile a&1, column steps 6*(a>>1)..")
    a(f"""
    s_and_b32 {s(sT0)}, {s(sA)}, 1
    s_mul_i32 {s(sT1)}, {s(sT0)}, 12288
    s_lshr_b32 {s(sT2)}, {s(sA)}, 1
    s_mul_i32 {s(sT2)}, {s(sT2)}, 6144
    s_add_u32 {s(sT1)}, {s(sT1)}, {s(sT2)}
    s_add_u32 {s(sT1)}, {s(sT1)}, {STG + 8192}
    v_add_u32 {v(vT[0])}, {s(sT1)}, {v(vL16)}
    """)
    for i in range(6): a(f"ds_read_b128 {v(HS+4*i,4)}, {v(vT[0])} offset:{1024*i}")
    a(f"""
    s_mul_i32 {s(sT1)}, {s(sCB)}, 12288
    s_add_u32 {s(sT2)}, {s(sT2)}, {s(sT1)}
    s_mul_i32 {s(sT1)}, {s(sT0)}, {A3_TSTRIDE}
    s_add_u32 {s(rB)}, {s(rC)}, {s(sT1)}
    s_addc_u32 {s(rB+1)}, {s(rC+1)}, 0
    s_mov_b32 {s(rB+2)}, {86*1024}
    s_add_u32 {s(sT1)}, {s(sT2)}, 4096
    s_waitcnt lgkmcnt(0)
    """)
    def hst():
        for i in range(6):
            a(f"buffer_store_dwordx4 {v(HS+4*i,4)}, {v(vL16)}, {s(rB,4)}, {s(sT3 if i < 4 else sT0)} offen offset:{1024*(i%4)}{SC}")
        vm.op("hst", 6)
    a(f"s_mov_b32 {s(sT0)}, {s(sT1)}\ns_mov_b32 {s(sT3)}, {s(sT2)}")
    hst()
    a.c("L2 warm-up of W2 / Wo column block (1/8 share)")
    a(f"""
    s_mov_b32 {s(rA)}, s16
    s_mov_b32 {s(rA+1)}, s17
    s_mov_b32 {s(rA+2)}, {1376*1024}
    s_mul_i32 {s(sT0)}, {s(sI8)}, 172
    s_mul_i32 {s(sT1)}, {s(sA)}, 43
    s_add_u32 {s(sT0)}, {s(sT0)}, {s(sT1)}
    v_min_u32 {v(vT[0])}, 42, {v(vL)}
    v_add_u32 {v(vT[0])}, {s(sT0)}, {v(vT[0])}
    v_lshlrev_b32 {v(vT[0])}, 10, {v(vT[0])}
    s_lshl_b32 {s(sT1)}, {s(sCB)}, 7
    buffer_load_dword {v(vT[3])}, {v(vT[0])}, {s(rA,4)}, {s(sT1)} offen
    """)
    vm.op("pf", 1)
    vm.wait("s2", "sent")
    pf.stamp(12)
    a("s_barrier")
    vm.wait("hst")
    a(f"s_lshl_b32 {s(sT3)}, {s(sCB)}, 2\ns_add_u32 {s(sT3)}, {s(sT3)}, {s(sA)}")
    setflag(FLAG_H, sRB, 3, sT3, 8, allw=True)
    setflag(FLAG_O, sR8, 5, sH, 32)
    pf.stamp(3)
    poll(f"v_lshlrev_b32 {v(vT[0])}, 3, {v(vL)}", f"buffer_load_dwordx2 {v(vD,2)}, {v(vT[0])}, {s(rWS,4)}, {s(sLH)} offen{SC}", 32)
    pf.stamp(7)
    def f_issue(sl):
        a(f"""
        s_add_u32 m0, {s(sSt)}, {sl*2048}
        buffer_load_dwordx4 {v(HB[sl],4)}, {v(vL16)}, {s(rC,4)}, {s(sHo)} offen{SCL}
        buffer_load_dwordx4 {v(HB[sl]+4,4)}, {v(vL16)}, {s(rL,4)}, {s(sHo)} offen{SCL}
        buffer_load_dwordx4 {v(vWo[0])}, {s(rA,4)}, {s(sWo)} offen lds
        buffer_load_dwordx4 {v(vWo[1])}, {s(rA,4)}, {s(sWo)} offen offset:1024 lds
        s_add_u32 {s(sHo)}, {s(sHo)}, 1024
        s_add_u32 {s(sWo)}, {s(sWo)}, 16384
        """)
    for sl in range(3): f_issue(sl)
    FL = a.label("X_FFN2")
    a(f"s_mov_b32 {s(sIt)}, 0\n{FL}:")
    for sl in range(4):
        a("s_waitcnt vmcnt(8)")
        w = WB[sl % 2]
        for n, va in enumerate((vRa, vRb)):
            for j in range(2):
                a(f"ds_read_b64_tr_b16 {v(w+4*n+2*j,2)}, {v(va)} offset:{sl*2048 + j*1024}")
        f_issue((sl + 3) % 4)
        a("s_waitcnt lgkmcnt(0)")
        for m in range(2):
            for n in range(2):
                a(f"{MFMA} {v(ACC[m][n],16)}, {v(w+4*n,4)}, {v(HB[sl]+4*m,4)}, {v(ACC[m][n],16)}")
                g_ = opt("mgap", 1)
                if g_ >= 100: a(f"s_nop {g_ - 100}")
                elif g_ and not (m == 1 and n == 1): a(f"s_sleep {g_}")
    a(f"""
    s_add_u32 {s(sIt)}, {s(sIt)}, 1
    s_cmp_lt_u32 {s(sIt)}, {s(sNI)}
    s_cbranch_scc1 {FL}
    """)
    if opt("tpf", 1):
        a.c("refresh the closing code in L2 (speed only)")
        a(f"""
        s_getpc_b64 s[10:11]
        X_here:
        s_add_u32 s10, s10, M_TAIL-X_here
        s_addc_u32 s11, s11, -1
        v_lshlrev_b32 {v(vT[0])}, 7, {v(vL)}
        s_mov_b64 exec, {(1 << opt("tpfl", 28)) - 1}
        global_load_dword {v(vT[1])}, {v(vT[0])}, s[10:11]
        s_mov_b64 exec, -1
        """)
    a.c("every producer of this tile's O slots has put its markers in place")
    poll(f"v_lshlrev_b32 {v(vT[0])}, 3, {v(vL)}\ns_add_u32 {s(sT0)}, {s(sLH)}, 65536", f"buffer_load_dwordx2 {v(vD,2)}, {v(vT[0])}, {s(rWS,4)}, {s(sT0)} offen{SC}", 32)
    a.c("FFN2 partial a lives at 40K (a = 0) or 48K + 16K*a, as [row][chunk ^ (row&15)] fp32")
    a(f"""
    s_lshl_b32 {s(sT1)}, {s(sA)}, 14
    s_add_u32 {s(sT2)}, {s(sT1)}, 49152
    s_cmp_eq_u32 {s(sA)}, 0
    s_cselect_b32 {s(sT2)}, {BASE}, {s(sT2)}
    v_and_b32 {v(vT[0])}, 31, {v(vL)}
    v_lshrrev_b32 {v(vT[2])}, 5, {v(vL)}
    v_and_b32 {v(vT[3])}, 15, {v(vL)}
    v_xor_b32 {v(vT[2])}, {v(vT[2])}, {v(vT[3])}
    v_lshlrev_b32 {v(vT[2])}, 4, {v(vT[2])}
    v_lshl_add_u32 {v(vT[0])}, {v(vT[0])}, 8, {v(vT[2])}
    v_add_u32 {v(vT[0])}, {s(sT2)}, {v(vT[0])}
    s_mov_b32 {s(rB)}, s8
    s_mov_b32 {s(rB+1)}, s9
    s_mov_b32 {s(rB+2)}, {512*1024}
    s_lshl_b32 {s(sT0)}, {s(sA)}, 16
    s_lshl_b32 {s(sT2)}, {s(sCB)}, 7
    s_add_u32 {s(sT0)}, {s(sT0)}, {s(sT2)}
    s_lshl_b32 {s(sT1)}, {s(sA)}, 13
    v_add_u32 {v(vT[1])}, {s(sT1)}, {v(vL16)}
    """)
    a.c("Wo column block: rows 0..255 -> staging now, rows 256..511 wait in registers until the K area is free")
    for i in range(4):
        a(f"""
        s_add_u32 m0, {s(sSt)}, {i*2048}
        s_add_u32 {s(sT2)}, {s(sT0)}, {i*16384}
        buffer_load_dwordx4 {v(vWo[0])}, {s(rB,4)}, {s(sT2)} offen lds
        buffer_load_dwordx4 {v(vWo[1])}, {s(rB,4)}, {s(sT2)} offen offset:1024 lds
        s_add_u32 {s(sT2)}, {s(sT2)}, {256*1024}
        buffer_load_dwordx4 {v(HB[i],4)}, {v(vWo[0])}, {s(rB,4)}, {s(sT2)} offen
        buffer_load_dwordx4 {v(HB[i]+4,4)}, {v(vWo[1])}, {s(rB,4)}, {s(sT2)} offen offset:1024
        """)
    a("s_waitcnt vmcnt(0)")
    pf.stamp(9)
    CTR = 32768
    a(f"v_mov_b32 {v(vT[4])}, {CTR}\nv_mov_b32 {v(vT[5])}, 0\ns_setprio 3\ns_barrier")
    pf.stamp(5, "tail")
    a(f"ds_write_b32 {v(vT[4])}, {v(vT[5])}")
    for i in range(8):
        a(f"ds_write_b128 {v(vT[1])}, {v(HB[i//2]+4*(i%2),4)} offset:{i*1024}")
    a("s_waitcnt lgkmcnt(0)\ns_barrier\ns_setprio 1")
    if opt("prw", 1): a("s_barrier")
    for n in range(2):
        for gq in range(4):
            a(f"v_xor_b32 {v(vT[2 + gq%2])}, {128*n + 32*gq}, {v(vT[0])}")
            for m in range(2):
                a(f"ds_write_b128 {v(vT[2 + gq%2])}, {v(ACC[m][n]+4*gq,4)} offset:{m*8192}")
    a.c("sum of the four partials: wave a rows 16a..16a+15, lane -> row l/4, chunks 4*(l&3)..")
    a(f"""
    v_lshrrev_b32 {v(vT[0])}, 2, {v(vL)}
    v_and_b32 {v(vT[1])}, 3, {v(vL)}
    v_lshlrev_b32 {v(vT[1])}, 2, {v(vT[1])}
    v_xor_b32 {v(vT[1])}, {v(vT[1])}, {v(vT[0])}
    v_lshlrev_b32 {v(vT[1])}, 4, {v(vT[1])}
    v_lshl_add_u32 {v(vT[0])}, {v(vT[0])}, 8, {v(vT[1])}
    s_lshl_b32 {s(sT1)}, {s(sA)}, 12
    s_add_u32 {s(sT1)}, {s(sT1)}, {BASE}
    v_add_u32 {v(vT[0])}, {s(sT1)}, {v(vT[0])}
    v_xor_b32 {v(vT[1])}, 16, {v(vT[0])}
    v_xor_b32 {v(vT[2])}, 32, {v(vT[0])}
    v_xor_b32 {v(vT[3])}, 48, {v(vT[0])}
    s_waitcnt lgkmcnt(0)
    """)
    pf.stamp(6, "tail")
    SP = a.label("X_sp")
    a(f"""
    v_mov_b32 {v(vT[5])}, 1
    s_mov_b64 exec, 1
    ds_add_u32 {v(vT[4])}, {v(vT[5])}
    {SP}:
    ds_read_b32 {v(vT[5])}, {v(vT[4])}
    s_waitcnt lgkmcnt(0)
    v_cmp_ne_u32 vcc, 4, {v(vT[5])}
    s_cbranch_vccnz {SP}
    s_mov_b64 exec, -1
    """)
    Z = ACC[0][0]
    for p, off in enumerate((0, 65536 - BASE, 81920 - BASE, 98304 - BASE)):
        for i in range(4):
            a(f"ds_read_b128 {v(Z + 16*p + 4*i,4)}, {v(vT[i])} offset:{off}")
        if p == 2: a("s_waitcnt lgkmcnt(4)")
    for i in range(16): a(f"v_add_f32 {v(Z+i)}, {v(Z+i)}, {v(Z+16+i)}")
    a("s_waitcnt lgkmcnt(0)")
    for i in range(16): a(f"v_add_f32 {v(Z+32+i)}, {v(Z+32+i)}, {v(Z+48+i)}")
    for i in range(16): a(f"v_add_f32 {v(Z+i)}, {v(Z+i)}, {v(Z+32+i)}")
    for i in range(4): a(f"ds_write_b128 {v(vT[i])}, {v(Z+4*i,4)}")
    a("s_waitcnt lgkmcnt(0)\ns_barrier")
    pf.finish(vT[0], vT[1], sW)
    return V.hi

def main():
    head = open("cdna_kernels/" + NAME + ".s.ref").read().split("\n")
    hdr = [l for l in head if l.startswith(";") and "@launch" not in l and "Override launch" not in l and "grid=ceil" not in l]
    a = Asm()
    out = "\n".join(hdr) + "\n; @launch grid=(256,1,1) block=(768,1,1) lds=163840\n"
    out += '.amdgcn_target "amdgcn-amd-amdhsa--gfx950"\n.text\n'
    vh, sh = gen(a)
    print("vgpr", vh, "sgpr", sh, file=sys.stderr)
    out += a.text() + '.section .rodata,"a"\n.p2align 6\n' + kernel_desc(KNAME, vh, sh)
    args = [x for x in sys.argv[1:] if x.endswith(".s")]
    dst = args[0] if args else "cdna_kernels/" + NAME + ".s"
    open(dst, "w").write(out)

main()
```

```python
import sys, struct
from asmlib import *

NAME = "parallel_sum__softmax_full_mha__dense_activation_gelu__prompt"
KNAME = NAME + "_kernel"
def opt(name, default):
    for x in sys.argv:
        if x.startswith(name + "="): return int(x.split("=")[1], 0)
    return default
WS_BASE = opt("wsbase", 0)
WS_Q, WS_K, WS_V, WS_A3 = WS_BASE, WS_BASE + 0x200000, WS_BASE + 0x400000, WS_BASE + 0x600000
A3_STEPS = 118
A3_TSTRIDE = A3_STEPS * 1024
WS_FLAG = WS_A3 + 64 * A3_TSTRIDE
FLAG_Q, FLAG_H, FLAG_O = WS_FLAG, WS_FLAG + 65536, WS_FLAG + 131072
WS_EPOCH = WS_FLAG + 196608
WS_END = WS_EPOCH + 256
LOG2E = 1.4426950408889634
PROF = "prof" in sys.argv
WS_PROF = 0x2000000
def f32(x): return "0x%08x" % struct.unpack("<I", struct.pack("<f", x))[0]
SC = " sc1"
SCQ = {0: " sc1", 1: "", 2: " nt", 3: " sc0 sc1", 4: " sc1 nt"}[opt("scq", 0)]
SCL = " sc1" if opt("scl", 1) else ""
XNT = " nt" if opt("xnt",0) else ""
WNT = " nt" if opt("wnt",0) else ""

class Cnt:
    def __init__(self, a, name, maxv):
        self.a, self.name, self.maxv, self.q = a, name, maxv, []
    def op(self, tag, n=1):
        self.q += [tag] * n
    def wait(self, *tags):
        idx = max((i for i, t in enumerate(self.q) if t in tags), default=-1)
        if idx < 0: return
        n = len(self.q) - 1 - idx
        self.a(f"s_waitcnt {self.name}({min(n, self.maxv)})")
        self.q = self.q[idx + 1:] if n <= self.maxv else self.q[len(self.q) - self.maxv:]
    def all(self):
        self.a(f"s_waitcnt {self.name}(0)")
        self.q = []

class Prof:
    def __init__(self, a, S, n):
        self.a, self.n = a, n
        if PROF:
            self.t = [S.alloc(2, 2) for _ in range(n)]
            self.rt = [S.alloc(2, 2) for _ in range(2)]
            self.r = S.alloc(4, 4)
    def start(self):
        if PROF:
            self.a(f"s_memrealtime {s(self.rt[0],2)}")
            for t in self.t: self.a(f"s_mov_b64 {s(t,2)}, 0")
            self.stamp(0)
    def stamp(self, i, kind="std"):
        mode = "fine" if "fine" in sys.argv else ("early" if "early" in sys.argv else ("tail" if "tail" in sys.argv else ("loop" if "loop" in sys.argv else "std")))
        if PROF and (kind == mode or i in (0, self.n - 1)):
            self.a(f"s_memtime {s(self.t[i],2)}")
    def finish(self, vt, vt2, wave_s):
        if not PROF: return
        a = self.a
        a("s_waitcnt vmcnt(0)")
        self.stamp(self.n - 1)
        a(f"s_memrealtime {s(self.rt[1],2)}\ns_waitcnt lgkmcnt(0)")
        a(f"s_load_dwordx2 {s(self.r,2)}, s[0:1], 80\ns_waitcnt lgkmcnt(0)")
        a(f"s_mov_b32 {s(self.r+2)}, 0x4000000\ns_mov_b32 {s(self.r+3)}, 0x00020000")
        o = self.rt[0] + 1
        a(f"s_lshl_b32 {s(o)}, s2, 4\ns_add_u32 {s(o)}, {s(o)}, {s(wave_s)}\ns_lshl_b32 {s(o)}, {s(o)}, 6\ns_add_u32 {s(o)}, {s(o)}, {WS_PROF}")
        a(f"s_mov_b64 exec, 1\nv_mov_b32 {v(vt)}, {s(o)}")
        for j, r in enumerate([self.rt[0], self.rt[1]] + self.t):
            a(f"v_mov_b32 {v(vt2)}, {s(r)}\nbuffer_store_dword {v(vt2)}, {v(vt)}, {s(self.r,4)}, 0 offen offset:{4*j}\ns_nop 1")

def srd(a, d, lo, hi, size):
    a(f"s_mov_b32 {s(d)}, {lo}\ns_mov_b32 {s(d+1)}, {hi}\ns_mov_b32 {s(d+2)}, {size}\ns_mov_b32 {s(d+3)}, 0x00020000")

MFMA = "v_mfma_f32_32x32x16_bf16"
SMF = "v_smfmac_f32_32x32x32_bf16"
RING = 65536; SLOT = 24576
ROT = 2
DPOS = opt("dpos", 8)
SEQ = [("c", k) for k in range(8)]
SEQ = SEQ[:DPOS] + [("d", 0)] + SEQ[DPOS:] + [("d", k) for k in range(1, 8)]
if DPOS >= 8: SEQ = [("c", k) for k in range(8)] + [("d", k) for k in range(8)]
LASTC = max(p for p, it in enumerate(SEQ) if it[0] == "c")
FIRSTD = min(p for p, it in enumerate(SEQ) if it[0] == "d")
def plan():
    slot, issue = {}, {}
    free = {0: -1, 1: -1, 2: -1, 3: -1}
    order = list(range(16))
    if DPOS < 8:
        order = [0, 1, 2, FIRSTD] + [p for p in range(3, 16) if p != FIRSTD]
    DE = opt("dearly", 0)
    if DPOS >= 8 and DE:
        order = list(range(8 - DE)) + [8] + list(range(8 - DE, 8)) + list(range(9, 16))
    for n, p in enumerate(order):
        sl = min(free, key=lambda k: (free[k], k))
        slot[p] = sl
        issue[p] = free[sl] if n >= opt("ninit", 2) else -2
        if issue[p] == -1: issue[p] = 0
        assert issue[p] < p, (p, issue[p])
        free[sl] = p + 1
    return slot, issue, order
SLOTOF, ISSUE, IORDER = plan()
BASE = 40960
STG = 131072
QFLAG_CHUNK = opt("qflag", 13)

def gen(a):
    S = Regs("s", 24, 102)
    kernel_header(a, KNAME)
    END = a.label("END"); AUX = a.label("AUX")
    pf = Prof(a, S, 14 if not opt("lin", 0) else 14)
    sW, sRB, sCB, sH, sR8, sT0, sT1, sT2, sT3, sIt = [S.alloc() for _ in range(10)]
    rWS = S.alloc(4, 4); rA = S.alloc(4, 4); rB = S.alloc(4, 4); rC = S.alloc(4, 4)
    rL = pf.r if PROF else S.alloc(4, 4)
    sU = [S.alloc() for _ in range(10)]
    sMask = S.alloc(2, 2); sK = S.alloc(2, 2)
    sX = [4, 5, 10, 11, 3]
    a(f"""
    s_cmp_ge_u32 s2, 256
    s_cbranch_scc1 {END}
    """)
    pf.start()
    if opt("dbgclk", 0): a("s_memtime s[96:97]\ns_memrealtime s[98:99]")
    a(f"""
    s_load_dwordx4 s[4:7], s[0:1], 0
    s_load_dwordx2 s[8:9], s[0:1], 16
    s_load_dwordx8 s[12:19], s[0:1], 32
    s_load_dwordx4 s[20:23], s[0:1], 64
    s_load_dwordx2 {s(rWS,2)}, s[0:1], 80
    v_lshrrev_b32 v1, 6, v0
    v_and_b32 v2, 63, v0
    v_readfirstlane_b32 {s(sW)}, v1
    s_and_b32 {s(sT0)}, s2, 7
    s_lshr_b32 {s(sT1)}, s2, 3
    s_and_b32 {s(sRB)}, {s(sT0)}, 3
    s_lshl_b32 {s(sRB)}, {s(sRB)}, 3
    s_and_b32 {s(sT2)}, {s(sT1)}, 7
    s_add_u32 {s(sRB)}, {s(sRB)}, {s(sT2)}
    s_and_b32 {s(sCB)}, {s(sT0)}, 4
    s_lshr_b32 {s(sT2)}, {s(sT1)}, 3
    s_add_u32 {s(sCB)}, {s(sCB)}, {s(sT2)}
    s_lshl_b32 {s(sH)}, {s(sT0)}, 2
    s_and_b32 {s(sT2)}, {s(sT1)}, 3
    s_add_u32 {s(sH)}, {s(sH)}, {s(sT2)}
    s_lshr_b32 {s(sR8)}, {s(sT1)}, 2
    s_mov_b32 {s(rWS+2)}, {WS_END}
    s_mov_b32 {s(rWS+3)}, 0x00020000
    """)
    if opt("cpf", 1):
        a.c("pull this kernel's code into L2 (speed only): every wave touches a few lines")
        NL = opt("cpfl", 160)
        a(f"""
        s_getpc_b64 s[10:11]
        s_mul_i32 {s(sT2)}, {s(sT1)}, 12
        s_add_u32 {s(sT2)}, {s(sT2)}, {s(sW)}
        s_mul_i32 {s(sT3)}, {s(sT2)}, {(65536 + NL - 1) // NL}
        s_lshr_b32 {s(sT3)}, {s(sT3)}, 16
        s_mul_i32 {s(sT3)}, {s(sT3)}, {NL}
        s_sub_u32 {s(sT2)}, {s(sT2)}, {s(sT3)}
        s_lshl_b32 {s(sT2)}, {s(sT2)}, 7
        v_mov_b32 v1, {s(sT2)}
        s_mov_b64 exec, 1
        global_load_dword v1, v1, s[10:11]
        s_mov_b64 exec, -1
        """)
    a(f"""
    s_cmp_ge_u32 {s(sW)}, 8
    s_cbranch_scc1 {AUX}
    """)
    vmax = 0
    vmax = max(vmax, gen_main(a, locals()))
    a(f"{AUX}:")
    vmax = max(vmax, gen_aux(a, locals()))
    a(f"{END}:\ns_endpgm")
    a(".fill 512, 4, 0xbf810000")
    return vmax, (102 if opt("dbgclk", 0) else S.hi)

def gen_main(a, G):
    g = lambda n: G[n]
    pf, sW, sRB, sCB, sH, sR8, sT0, sT1, sT2, sT3, sIt = [g(n) for n in "pf sW sRB sCB sH sR8 sT0 sT1 sT2 sT3 sIt".split()]
    rWS, rA, rB, rC, sU, sMask, sK, END = [g(n) for n in "rWS rA rB rC sU sMask sK END".split()]
    V = Regs("v", 3, 168)
    vL = 2
    vm = Cnt(a, "vmcnt", 63); lg = Cnt(a, "lgkmcnt", 15)
    vT = [V.alloc() for _ in range(8)]
    vBias = [V.alloc(4, 4), V.alloc(4, 4)]
    vOneB = V.alloc(4, 4)
    XA = [V.alloc() for _ in range(8)]; WA = [V.alloc(), V.alloc()]
    F = [V.alloc(12, 4) for _ in range(4)]
    ACC1 = [V.alloc(16, 4), V.alloc(16, 4)]; ACC2 = [V.alloc(16, 4), V.alloc(16, 4)]
    P = V.alloc(16, 4)
    vDum = V.alloc(4, 4)
    X = ACC1[0]
    sMT, sNH, sHI = sU[0], sU[1], sU[2]
    a.c("---------------- main waves: x rows -> LayerNorm -> xn in LDS")
    a(f"""
    v_lshrrev_b32 {v(vT[0])}, 3, {v(vL)}
    v_and_b32 {v(vT[1])}, 7, {v(vL)}
    s_lshl_b32 {s(sT0)}, {s(sRB)}, 6
    s_lshl_b32 {s(sT1)}, {s(sW)}, 3
    s_add_u32 {s(sT0)}, {s(sT0)}, {s(sT1)}
    s_lshl_b32 {s(sT0)}, {s(sT0)}, 10
    v_lshlrev_b32 {v(vT[2])}, 10, {v(vT[0])}
    v_lshl_add_u32 {v(vT[2])}, {v(vT[1])}, 4, {v(vT[2])}
    s_and_b32 {s(sMT)}, {s(sW)}, 1
    s_lshr_b32 {s(sNH)}, {s(sW)}, 1
    s_and_b32 {s(sNH)}, {s(sNH)}, 1
    s_lshr_b32 {s(sHI)}, {s(sW)}, 2
    s_mov_b32 {s(rA+2)}, {2048*1024}
    s_mov_b32 {s(rA+3)}, 0x00020000
    s_mov_b32 {s(rB+2)}, 2752
    s_mov_b32 {s(rB+3)}, 0x00020000
    """)
    pf.stamp(1, "early")
    a(f"""
    s_waitcnt lgkmcnt(0)
    s_mov_b32 {s(rA)}, s4
    s_mov_b32 {s(rA+1)}, s5
    s_mov_b32 {s(rB)}, s14
    s_mov_b32 {s(rB+1)}, s15
    """)
    if opt("tlb", 0):
        a.c("one gather that touches every buffer, so that all address translations are fetched together (speed only)")
        TA = P + 12
        a(f"v_mov_b64 {v(TA,2)}, s[4:5]")
        for i, pr in enumerate(["s[6:7]", "s[12:13]", "s[14:15]", s(rWS,2), "s[22:23]", "s[16:17]", "s[8:9]", "s[18:19]", "s[20:21]"]):
            a(f"s_mov_b64 exec, {2 << i}\nv_mov_b64 {v(TA,2)}, {pr}")
        a(f"s_mov_b64 exec, 0x3ff\nglobal_load_dword {v(vDum)}, {v(TA,2)}, off\ns_mov_b64 exec, -1"); vm.op("tlb")
    pf.stamp(2, "early")
    for i in range(8):
        a(f"buffer_load_dwordx4 {v(X+4*i,4)}, {v(vT[2])}, {s(rA,4)}, {s(sT0)} offen offset:{128*i}{XNT}"); vm.op(f"x{i}")
    pf.stamp(3, "early")
    a.c("bias fragments: column = 192cb + 64g + 32nh + l%32 (g = 0,1 for waves 0-3, g = 2 for waves 4-7); upper half-wave reads out of range -> 0")
    a(f"""
    s_mul_i32 {s(sT1)}, {s(sCB)}, 192
    s_lshl_b32 {s(sT2)}, {s(sHI)}, 7
    s_add_u32 {s(sT1)}, {s(sT1)}, {s(sT2)}
    s_lshl_b32 {s(sT2)}, {s(sNH)}, 5
    s_add_u32 {s(sU[3])}, {s(sT1)}, {s(sT2)}
    v_and_b32 {v(vT[3])}, 31, {v(vL)}
    v_and_b32 {v(vT[4])}, 32, {v(vL)}
    v_lshl_add_u32 {v(vT[4])}, {v(vT[4])}, 16, {v(vT[3])}
    v_add_u32 {v(vT[4])}, {s(sU[3])}, {v(vT[4])}
    v_lshlrev_b32 {v(vT[4])}, 1, {v(vT[4])}
    buffer_load_ushort {v(vBias[0])}, {v(vT[4])}, {s(rB,4)}, 0 offen
    buffer_load_ushort {v(vBias[1])}, {v(vT[4])}, {s(rB,4)}, 0 offen offset:128
    """)
    vm.op("b", 2)
    pf.stamp(4, "early")
    if opt("bx", 1): a("s_barrier")
    pf.stamp(5, "early")
    sColF = sU[3]
    a.c("LDS addresses for the GEMM phases")
    a(f"""
    v_lshrrev_b32 {v(vT[4])}, 5, {v(vL)}
    v_and_b32 {v(vT[5])}, 15, {v(vL)}
    v_xor_b32 {v(vT[6])}, {v(vT[5])}, {v(vT[4])}
    s_lshl_b32 {s(sT1)}, {s(sMT)}, 15
    v_lshl_add_u32 {v(vT[7])}, {v(vT[3])}, 10, {s(sT1)}
    v_lshl_add_u32 {v(XA[0])}, {v(vT[6])}, 4, {v(vT[7])}
    """)
    for q in range(1, 4 if ROT else 8):
        a(f"v_xor_b32 {v(XA[q])}, {32*q}, {v(XA[0])}")
    sKc = sU[9]
    if ROT:
        a.c("k-chunks are visited in an order rotated by workgroup, so that neighbours fetch different weight rows first")
        a(f"s_and_b32 {s(sKc)}, {s(sRB)}, 7\ns_lshl_b32 {s(sKc)}, {s(sKc)}, 7")
    a(f"""
    v_lshrrev_b32 {v(vT[5])}, 2, {v(vT[5])}
    v_lshl_add_u32 {v(vT[5])}, {v(vT[4])}, 3, {v(vT[5])}
    v_lshlrev_b32 {v(vT[5])}, 7, {v(vT[5])}
    v_and_b32 {v(vT[6])}, 1, {v(vT[0])}
    v_xor_b32 {v(vT[6])}, {s(sNH)}, {v(vT[6])}
    v_lshl_add_u32 {v(vT[5])}, {v(vT[6])}, 6, {v(vT[5])}
    v_bfe_u32 {v(vT[6])}, {v(vL)}, 4, 1
    v_lshl_add_u32 {v(vT[5])}, {v(vT[6])}, 5, {v(vT[5])}
    v_and_b32 {v(vT[6])}, 3, {v(vL)}
    v_lshl_add_u32 {v(vT[5])}, {v(vT[6])}, 3, {v(vT[5])}
    s_lshl_b32 {s(sT1)}, {s(sHI)}, 14
    s_add_u32 {s(sT1)}, {s(sT1)}, {RING}
    v_add_u32 {v(WA[0])}, {s(sT1)}, {v(vT[5])}
    v_add_u32 {v(WA[1])}, {2*SLOT}, {v(WA[0])}
    v_mov_b32 {v(vOneB)}, 0x3f80
    """)
    for r in (vBias[0], vBias[1], vOneB):
        for i in range(1, 4): a(f"v_mov_b32 {v(r+i)}, 0")
    a.c("xn write addresses: row = 8w + l/8")
    vWr = [vT[3], vT[4]]; vS = [F[0], F[0]+1, F[0]+2, F[0]+3]; vOnes = vT[5]; RN = F[0] + 4
    a(f"""
    s_lshl_b32 {s(sT1)}, {s(sW)}, 3
    v_add_u32 {v(vT[6])}, {s(sT1)}, {v(vT[0])}
    v_and_b32 {v(vT[7])}, 15, {v(vT[6])}
    v_xor_b32 {v(vT[7])}, {v(vT[7])}, {v(vT[1])}
    v_lshlrev_b32 {v(vT[7])}, 4, {v(vT[7])}
    v_lshl_add_u32 {v(vWr[0])}, {v(vT[6])}, 10, {v(vT[7])}
    v_xor_b32 {v(vWr[1])}, 128, {v(vWr[0])}
    v_mov_b32 {v(vOnes)}, 0x3f803f80
    """)
    for i in range(4): a(f"v_mov_b32 {v(vS[i])}, 0")
    pf.stamp(1); pf.stamp(6, "early")
    for i in range(8):
        vm.wait(f"x{i}")
        if i == 0: pf.stamp(7, "early")
        if i == 7: pf.stamp(8, "early")
        for d in range(4):
            r = X + 4*i + d
            a(f"v_dot2_f32_bf16 {v(vS[d%2])}, {v(r)}, {v(vOnes)}, {v(vS[d%2])}")
            a(f"v_dot2_f32_bf16 {v(vS[2+d%2])}, {v(r)}, {v(r)}, {v(vS[2+d%2])}")
    pf.stamp(2)
    a(f"""
    s_nop 2
    v_add_f32 {v(vS[0])}, {v(vS[0])}, {v(vS[1])}
    v_add_f32 {v(vS[2])}, {v(vS[2])}, {v(vS[3])}
    """)
    for m in ("quad_perm:[1,0,3,2]", "quad_perm:[2,3,0,1]", "row_half_mirror"):
        a(f"""
        s_nop 1
        v_add_f32_dpp {v(vS[0])}, {v(vS[0])}, {v(vS[0])} {m} row_mask:0xf bank_mask:0xf
        v_add_f32_dpp {v(vS[2])}, {v(vS[2])}, {v(vS[2])} {m} row_mask:0xf bank_mask:0xf
        """)
    vMean, vVar = vS[0], vS[2]
    a(f"""
    v_mul_f32 {v(vMean)}, {f32(1/512)}, {v(vMean)}
    v_mul_f32 {v(vVar)}, {f32(1/512)}, {v(vVar)}
    v_fma_f32 {v(vVar)}, -{v(vMean)}, {v(vMean)}, {v(vVar)}
    v_max_f32 {v(vVar)}, 0, {v(vVar)}
    v_cvt_pk_bf16_f32 {v(vMean)}, -{v(vMean)}, {v(vVar)}
    v_and_b32 {v(vVar)}, 0xffff0000, {v(vMean)}
    v_add_f32 {v(vVar)}, {f32(1e-5)}, {v(vVar)}
    v_cvt_pk_bf16_f32 {v(vVar)}, {v(vVar)}, {v(vVar)}
    v_and_b32 {v(vVar)}, 0xffff0000, {v(vVar)}
    v_sqrt_f32 {v(vVar)}, {v(vVar)}
    v_lshlrev_b32 {v(vMean)}, 16, {v(vMean)}
    v_cvt_pk_bf16_f32 {v(vVar)}, {v(vVar)}, {v(vVar)}
    v_and_b32 {v(vVar)}, 0xffff0000, {v(vVar)}
    v_rcp_f32 {v(RN)}, {v(vVar)}
    s_nop 0
    v_mul_f32 {v(RN+1)}, {v(vMean)}, {v(RN)}
    """)
    TT = F[1]
    for i in range(8):
        for d in range(4):
            r = X + 4*i + d
            a(f"v_lshlrev_b32 {v(TT+2*d)}, 16, {v(r)}\nv_and_b32 {v(TT+2*d+1)}, 0xffff0000, {v(r)}")
        for d in range(4):
            a(f"v_pk_fma_f32 {v(TT+2*d,2)}, {v(TT+2*d,2)}, {v(RN,2)}, {v(RN,2)} op_sel:[0,0,1] op_sel_hi:[1,0,1]")
        for d in range(4):
            a(f"v_cvt_pk_bf16_f32 {v(X+4*i+d)}, {v(TT+2*d)}, {v(TT+2*d+1)}")
        a(f"ds_write_b128 {v(vWr[i%2])}, {v(X+4*i,4)} offset:{(i//2)*256}"); lg.op("w")
    vm.wait("b")
    lg.all()
    pf.stamp(3); pf.stamp(9, "early")
    WFq = [XA[0], XA[4], WA[0]] + list(range(F[0] + 16, ACC1[0], 4)) + [P, P + 4, P + 8, P + 12, vDum]
    assert len(WFq) == 16 and WA[0] % 4 == 0 and vDum % 4 == 0, WFq
    vXr, vB2 = vBias[0], vBias[1]
    vOa, vWa, vWp, vRp, vLp = vOneB, vOneB + 1, vOneB + 2, vOneB + 3, 1
    aK, aV1, aVb = ACC1[0] + 4, ACC1[0] + 8, ACC1[0] + 12
    sMf, sKq, sOsrc, sOsrc2, sOdst = G["sX"]
    tA, tB = vT[6], vT[7]
    SETUP = f"""
    s_mov_b32 {s(rB)}, s18
    s_mov_b32 {s(rB+1)}, s19
    s_mov_b32 {s(rB+2)}, 1024
    v_lshrrev_b32 {v(tA)}, 3, v0
    s_lshl_b32 {s(sT0)}, {s(sRB)}, 6
    v_add_u32 {v(vOa)}, {s(sT0)}, {v(tA)}
    v_and_b32 {v(tB)}, 7, v0
    s_lshl_b32 {s(sT0)}, {s(sCB)}, 7
    v_lshl_add_u32 {v(vRp)}, {v(tB)}, 4, {s(sT0)}
    v_lshl_add_u32 {v(vOa)}, {v(vOa)}, 10, {v(vRp)}
    v_mov_b32 {v(vB2)}, {v(vRp)}
    v_lshlrev_b32 {v(vRp)}, 1, {v(tB)}
    v_and_b32 {v(tB)}, 15, {v(tA)}
    v_xor_b32 {v(vRp)}, {v(vRp)}, {v(tB)}
    v_lshlrev_b32 {v(vRp)}, 4, {v(vRp)}
    v_lshl_add_u32 {v(vRp)}, {v(tA)}, 8, {v(vRp)}
    s_and_b32 {s(sMf)}, {s(sW)}, 1
    s_lshr_b32 {s(sKq)}, {s(sW)}, 1
    s_lshl_b32 {s(sT0)}, {s(sRB)}, 1
    s_add_u32 {s(sT0)}, {s(sT0)}, {s(sMf)}
    s_mul_i32 {s(sOsrc)}, {s(sT0)}, {A3_TSTRIDE}
    s_lshl_b32 {s(sT0)}, {s(sKq)}, 13
    s_add_u32 {s(sOsrc)}, {s(sOsrc)}, {s(sT0)}
    s_add_u32 {s(sOsrc)}, {s(sOsrc)}, {WS_A3}
    s_add_u32 {s(sOsrc2)}, {s(sOsrc)}, 4096
    s_lshl_b32 {s(sT0)}, {s(sR8)}, 3
    s_add_u32 {s(sT0)}, {s(sT0)}, {s(sW)}
    s_mul_i32 {s(sT0)}, {s(sT0)}, {A3_TSTRIDE}
    s_lshl_b32 {s(sT1)}, {s(sH)}, 10
    s_add_u32 {s(sT0)}, {s(sT0)}, {s(sT1)}
    s_add_u32 {s(sOdst)}, {s(sT0)}, {WS_A3}
    v_lshlrev_b32 {v(vLp)}, 10, {v(vL)}
    v_add_u32 {v(vLp)}, 1020, {v(vLp)}
    v_lshrrev_b32 {v(tA)}, 5, {v(vL)}
    v_bfe_u32 {v(vWa)}, {v(vL)}, 2, 2
    v_lshl_add_u32 {v(vWa)}, {v(tA)}, 2, {v(vWa)}
    v_lshlrev_b32 {v(vWa)}, 7, {v(vWa)}
    v_bfe_u32 {v(tB)}, {v(vL)}, 3, 1
    v_lshl_add_u32 {v(vWa)}, {v(tB)}, 6, {v(vWa)}
    v_bfe_u32 {v(tB)}, {v(vL)}, 4, 1
    v_lshl_add_u32 {v(vWa)}, {v(tB)}, 5, {v(vWa)}
    v_and_b32 {v(tB)}, 3, {v(vL)}
    v_lshl_add_u32 {v(vWa)}, {v(tB)}, 3, {v(vWa)}
    s_and_b32 {s(sT1)}, {s(sKq)}, 1
    s_lshl_b32 {s(sT1)}, {s(sT1)}, 14
    s_add_u32 {s(sT0)}, {s(sT1)}, {STG}
    s_cmp_lt_u32 {s(sKq)}, 2
    s_cselect_b32 {s(sT1)}, {s(sT0)}, {s(sT1)}
    v_add_u32 {v(vWa)}, {s(sT1)}, {v(vWa)}
    v_and_b32 {v(vWp)}, 31, {v(vL)}
    s_lshl_b32 {s(sT0)}, {s(sMf)}, 5
    v_add_u32 {v(vWp)}, {s(sT0)}, {v(vWp)}
    v_and_b32 {v(tB)}, 15, {v(vWp)}
    v_xor_b32 {v(tB)}, {v(tA)}, {v(tB)}
    v_lshlrev_b32 {v(tB)}, 4, {v(tB)}
    v_lshl_add_u32 {v(vWp)}, {v(vWp)}, 8, {v(tB)}
    v_add_u32 {v(vWp)}, {s(sT1)}, {v(vWp)}
    s_mov_b32 {s(rC)}, s20
    s_mov_b32 {s(rC+1)}, s21
    s_mov_b32 {s(rC+2)}, {2048*1024}
    s_mov_b32 {s(rC+3)}, 0x00020000
    v_mov_b32 {v(vT[3])}, 0xdddddddd
    s_mov_b32 {s(sMask)}, 0x0000ffff
    s_mov_b32 {s(sMask+1)}, 0x0000ffff
    v_and_b32 {v(tB)}, 15, {v(vL)}
    v_lshlrev_b32 {v(tA)}, 8, {v(tA)}
    v_lshl_add_u32 {v(tA)}, {v(tB)}, 4, {v(tA)}
    v_add_u32 {v(vT[4])}, 65536, {v(tA)}
    v_and_b32 {v(tB)}, 27, {v(vL)}
    v_cmp_eq_u32 vcc, 16, {v(tB)}
    v_mov_b32 {v(tA)}, 0x3f803f80
    s_lshl_b32 {s(sT0)}, {s(sW)}, 10
    s_add_u32 {s(sT0)}, {s(sT0)}, {STG}
    v_cndmask_b32 {v(tA)}, 0, {v(tA)}, vcc
    v_add_u32 {v(vT[5])}, {s(sT0)}, {v(vT[0])}
    """.strip().split("\n")
    for i in range(4): SETUP += [f"v_mov_b32 {v(aV1+i)}, {v(tA)}", f"v_mov_b32 {v(aVb+i)}, {v(tA)}", f"v_mov_b32 {v(aK+i)}, 0"]
    HI = a.label("M_HI"); JOIN = a.label("M_JOIN")
    a(f"s_cmp_eq_u32 {s(sHI)}, 1\ns_cbranch_scc1 {HI}")
    state = (list(vm.q), list(lg.q))
    def gemm(hi):
        vm.q, lg.q = list(state[0]), list(state[1])
        ng = 1 if hi else 2
        def xread(c, st):
            sx = sT3 if c % 2 else sT2
            if st == 0: a(f"s_add_u32 {s(sx)}, {s(sKc)}, {SEQ[c][1] << 7}\ns_and_b32 {s(sx)}, {s(sx)}, 0x380")
            a(f"v_xor_b32 {v(XA[4+st])}, {s(sx)}, {v(XA[st])}")
            if hi and opt("noxhi", 0): return
            a(f"ds_read_b128 {v(F[st],4)}, {v(XA[4+st])}"); lg.op(("x", c, st))
        def wread(c, st):
            sl = SLOTOF[c]
            for gi in range(ng):
                for j in range(2):
                    off = (sl & 1) * SLOT + gi * 8192 + st * 2048 + j * 512
                    a(f"ds_read_b64_tr_b16 {v(F[st]+4+4*gi+2*j,2)}, {v(WA[sl >> 1])} offset:{off}"); lg.op(("w", c, st))
        def mf(c, st):
            lg.wait(("x", c, st), ("w", c, st))
            isq = SEQ[c][0] == "c"
            acc = ACC1 if isq else ACC2
            for gi in range(ng):
                w, x = v(F[st]+4+4*gi,4), v(F[st],4)
                cin = "0" if (c == 0 and st == 0) else v(acc[gi],16)
                if hi and isq: a(f"{MFMA} {v(acc[gi],16)}, {x}, {w}, {cin}")
                else: a(f"{MFMA} {v(acc[gi],16)}, {w}, {x}, {cin}")
        def qkv_epilogue(part):
            sTT, sO = sU[4], sU[5]
            if part == 0:
                a(f"""
                s_lshl_b32 {s(sTT)}, {s(sRB)}, 1
                s_add_u32 {s(sTT)}, {s(sTT)}, {s(sMT)}
                s_lshl_b32 {s(sO)}, {s(sCB)}, 1
                s_add_u32 {s(sO)}, {s(sO)}, {s(sNH)}
                s_lshl_b32 {s(sO)}, {s(sO)}, 17
                s_lshl_b32 {s(sT0)}, {s(sTT)}, 10
                s_add_u32 {s(sO)}, {s(sO)}, {s(sT0)}
                s_add_u32 {s(sO)}, {s(sO)}, {WS_Q}
                """)
                if not hi:
                    a(f"""
                    v_lshlrev_b32 {v(vT[0])}, 4, {v(vL)}
                    v_lshrrev_b32 {v(vT[1])}, 1, {v(vL)}
                    v_xor_b32 {v(vT[1])}, {v(vT[1])}, {v(vL)}
                    v_and_b32 {v(vT[1])}, 4, {v(vT[1])}
                    v_mul_u32_u24 {v(vT[1])}, 3, {v(vT[1])}
                    v_xor_b32 {v(vT[1])}, {v(vT[1])}, {v(vL)}
                    v_lshlrev_b32 {v(vT[1])}, 4, {v(vT[1])}
                    s_add_u32 {s(sU[6])}, {s(sO)}, 65536
                    s_add_u32 {s(sU[7])}, {s(sO)}, {WS_K - WS_Q}
                    s_add_u32 {s(sU[8])}, {s(sO)}, {WS_K - WS_Q + 65536}
                    """)
                else:
                    a(f"""
                    v_lshlrev_b32 {v(vT[0])}, 4, {v(vL)}
                    v_bfe_u32 {v(vT[1])}, {v(vL)}, 4, 1
                    v_lshlrev_b32 {v(vT[1])}, 16, {v(vT[1])}
                    v_and_b32 {v(vT[2])}, 15, {v(vL)}
                    v_lshl_add_u32 {v(vT[1])}, {v(vT[2])}, 4, {v(vT[1])}
                    v_lshrrev_b32 {v(vT[2])}, 5, {v(vL)}
                    v_lshl_add_u32 {v(vT[1])}, {v(vT[2])}, 8, {v(vT[1])}
                    s_add_u32 {s(sU[7])}, {s(sO)}, {WS_V - WS_Q}
                    """)
            elif hi:
                if part == 1:
                    for i in range(8): a(f"v_cvt_pk_bf16_f32 {v(P+i)}, {v(ACC1[0]+2*i)}, {v(ACC1[0]+2*i+1)}")
            elif part == 1:
                for i in range(8): a(f"v_cvt_pk_bf16_f32 {v(P+8+i)}, {v(ACC1[1]+2*i)}, {v(ACC1[1]+2*i+1)}")
            else:
                for i in range(16): a(f"v_mul_f32 {v(ACC1[0]+i)}, {f32(0.25*LOG2E)}, {v(ACC1[0]+i)}")
                for i in range(8): a(f"v_cvt_pk_bf16_f32 {v(P+i)}, {v(ACC1[0]+2*i)}, {v(ACC1[0]+2*i+1)}")
        def qkv_store(k):
            sO = sU[5]
            if hi:
                t = {0: f"buffer_store_dwordx4 {v(P,4)}, {v(vT[1])}, {s(rWS,4)}, {s(sU[7])} offen{SCQ}",
                     1: f"buffer_store_dwordx4 {v(P+4,4)}, {v(vT[1])}, {s(rWS,4)}, {s(sU[7])} offen offset:512{SCQ}"}[k]
            else:
                t = {0: f"buffer_store_dwordx4 {v(P+8,4)}, {v(vT[1])}, {s(rWS,4)}, {s(sU[7])} offen{SCQ}",
                     1: f"buffer_store_dwordx4 {v(P+12,4)}, {v(vT[1])}, {s(rWS,4)}, {s(sU[8])} offen{SCQ}",
                     2: f"buffer_store_dwordx4 {v(P,4)}, {v(vT[0])}, {s(rWS,4)}, {s(sO)} offen{SCQ}",
                     3: f"buffer_store_dwordx4 {v(P+4,4)}, {v(vT[0])}, {s(rWS,4)}, {s(sU[6])} offen{SCQ}"}[k]
            a(t); vm.op("st")
        ss = opt("ssched", 3)
        E = LASTC + 1
        todo = list(SETUP)
        def filler(c):
            if c <= E: return
            n = 7; hold = False
            while todo and (n > 0 or hold):
                l = todo.pop(0); a(l)
                if "v_cmp" in l: hold = True
                if "v_cndmask" in l: hold = False
                if "buffer_load" in l: vm.op("xb")
                if l.strip().startswith("v_") or l.strip().startswith("buffer"): n -= 1
        if ss == 0: stsched = {E: [0, 1]} if hi else {E: [0, 1, 2, 3]}
        if ss == 1: stsched = {E+2: [0], E+3: [1]} if hi else {E: [0], E+1: [1], E+4: [2], E+5: [3]}
        if ss == 2: stsched = {E+1: [0], E+3: [1]} if hi else {E: [0], E+1: [1], E+2: [2], E+3: [3]}
        if ss == 3: stsched = {E: [0], E+1: [1]} if hi else {E: [0, 1], E+1: [2, 3]}
        if ss == 4: stsched = {E+1: [0], E+2: [1]} if hi else {E: [0], E+1: [1], E+2: [2], E+3: [3]}
        for c in range(16):
            if c == QFLAG_CHUNK: vm.all()
            a("s_barrier")
            if c == QFLAG_CHUNK and not hi:
                nf, ok, pl = a.label("M_noflag"), a.label("M_tokok"), a.label("M_tokpoll")
                a.c("wave 0 publishes Q/K/V: this launch's tag into each of the 32 consumers' flag rows")
                a(f"""
                s_cmp_lg_u32 {s(sW)}, 0
                s_cbranch_scc1 {nf}
                s_mov_b32 {s(sIt)}, 0
                {pl}:
                v_cmp_eq_u32 vcc, 0, {v(vDum)}
                s_cbranch_vccz {ok}
                s_sleep 2
                v_mov_b32 {v(vDum+2)}, 0
                global_load_dwordx2 {v(vDum,2)}, {v(vDum+2)}, s[22:23]{SC}
                s_add_u32 {s(sIt)}, {s(sIt)}, 1
                s_waitcnt vmcnt(0)
                s_cmp_lt_u32 {s(sIt)}, 0x20000
                s_cbranch_scc1 {pl}
                {ok}:
                s_lshl_b32 {s(sU[6])}, {s(sCB)}, 13
                s_lshl_b32 {s(sU[7])}, {s(sRB)}, 3
                s_add_u32 {s(sU[6])}, {s(sU[6])}, {s(sU[7])}
                s_add_u32 {s(sU[6])}, {s(sU[6])}, {FLAG_Q}
                v_lshlrev_b32 {v(vDum+2)}, 8, {v(vL)}
                s_mov_b32 exec_hi, 0
                buffer_store_dwordx2 {v(vDum,2)}, {v(vDum+2)}, {s(rWS,4)}, {s(sU[6])} offen{SC}
                s_mov_b64 exec, -1
                {nf}:
                """)
            if c == 8 and not hi:
                nf = a.label("M_notokld")
                a(f"""
                s_cmp_lg_u32 {s(sW)}, 0
                s_cbranch_scc1 {nf}
                v_mov_b32 {v(vDum+2)}, 0
                global_load_dwordx2 {v(vDum,2)}, {v(vDum+2)}, s[22:23]{SC}
                {nf}:
                """)
            if c == 0:
                pf.stamp(4); pf.stamp(10, "early")
                xread(0, 0); xread(0, 1)
            if c == E: pf.stamp(5)
            if c >= 5: pf.stamp(c - 4, "fine")
            wread(c, 0); wread(c, 1)
            if c > 0: mf(c - 1, 3)
            if c == E - 1: qkv_epilogue(0)
            if c == FIRSTD:
                for gi in range(ng):
                    a(f"{MFMA} {v(ACC2[gi],16)}, {v(vBias[gi],4)}, {v(vOneB,4)}, 0")
            mf(c, 0)
            xread(c, 2); wread(c, 2)
            filler(c)
            mf(c, 1)
            xread(c, 3); wread(c, 3)
            filler(c)
            if c == E:
                if hi: a("s_nop 3")
                qkv_epilogue(1)
            if c < 15: xread(c + 1, 0); xread(c + 1, 1)
            mf(c, 2)
            if c == E: qkv_epilogue(2)
            for k in stsched.get(c, []): qkv_store(k)
            lg.wait(("w", c, 3))
        assert not todo, len(todo)
        a("s_barrier")
        pf.stamp(6); pf.stamp(12, "fine")
        mf(15, 3)
        c1 = -2 * 0.7978845608028654 * LOG2E
        c2 = c1 * 0.044715
        CC = F[0]; T = F[1]
        a(f"""
        v_mov_b32 {v(CC)}, {f32(c2)}
        v_mov_b32 {v(CC+1)}, {f32(c1)}
        s_mul_i32 {s(sT1)}, {s(sMT)}, 12288
        s_lshl_b32 {s(sT0)}, {s(sNH)}, 11
        s_add_u32 {s(sT0)}, {s(sT0)}, {s(sT1)}
        s_add_u32 {s(sT0)}, {s(sT0)}, {STG + 8192 + (8192 if hi else 0)}
        v_add_u32 {v(vT[2])}, {s(sT0)}, {v(vT[0])}
        s_nop 6
        """)
        for gi in range(ng):
            skip = a.label("M_skip")
            A_ = ACC2[gi]; Pg = P + 8*gi
            a(f"s_add_u32 {s(sT1)}, {s(sColF)}, {64*gi}\ns_cmp_ge_u32 {s(sT1)}, 1376\ns_cbranch_scc1 {skip}")
            for i in range(0, 16, 2): a(f"v_pk_mul_f32 {v(T+i,2)}, {v(A_+i,2)}, {v(A_+i,2)}")
            for i in range(0, 16, 2): a(f"v_pk_fma_f32 {v(T+i,2)}, {v(T+i,2)}, {v(CC,2)}, {v(CC,2)} op_sel:[0,0,1] op_sel_hi:[1,0,1]")
            for i in range(0, 16, 2): a(f"v_pk_mul_f32 {v(T+i,2)}, {v(T+i,2)}, {v(A_+i,2)}")
            for i in range(16): a(f"v_exp_f32 {v(T+i)}, {v(T+i)}")
            for i in range(0, 16, 2): a(f"v_pk_add_f32 {v(T+i,2)}, {v(T+i,2)}, 1.0 op_sel_hi:[1,0]")
            for i in range(16): a(f"v_rcp_f32 {v(T+i)}, {v(T+i)}")
            for i in range(0, 16, 2): a(f"v_pk_mul_f32 {v(T+i,2)}, {v(T+i,2)}, {v(A_+i,2)}")
            for i in range(8): a(f"v_cvt_pk_bf16_f32 {v(Pg+i)}, {v(T+2*i)}, {v(T+2*i+1)}")
            a(f"ds_write_b128 {v(vT[2])}, {v(Pg,4)} offset:{4096*gi}")
            a(f"ds_write_b128 {v(vT[2])}, {v(Pg+4,4)} offset:{4096*gi + 1024}")
            a(f"{skip}:")
    gemm(False)
    a(f"s_branch {JOIN}\n{HI}:")
    gemm(True)
    a(f"{JOIN}:")
    vm.q = []; lg.q = []
    pf.stamp(7)
    a("s_waitcnt lgkmcnt(0)")
    V2 = Regs("v", 3, 168)
    vL16 = V2.alloc(); vKa = V2.alloc(); vVa = V2.alloc(); vIdx = V2.alloc(); vVb = V2.alloc(); t = [V2.alloc() for _ in range(3)]
    assert vL16 == vT[0]
    V2.n = P + 16
    V2.n = ACC1[0]
    Q = V2.alloc(4, 4); K = V2.alloc(4, 4); V1 = V2.alloc(4, 4); Vb = V2.alloc(4, 4)
    C = V2.alloc(16, 4)
    SB = [ACC2[0], ACC2[1]]; O = F[0]
    assert V2.n <= ACC2[0] and F[0] + 16 <= ACC1[0]
    sBar, sPass, sTT = sU[0], sU[1], sU[2]
    a.c("---------------- attention: head h, q tile 8*r8 + w")
    assert (K, V1, Vb, vIdx, vVb, t[0]) == (aK, aV1, aVb, vT[3], vT[4], vT[5])
    a(f"""
    {MFMA} {v(O,16)}, {v(K,4)}, {v(K,4)}, 0
    {MFMA} {v(SB[1],16)}, {v(K,4)}, {v(K,4)}, 0
    v_mov_b32 {v(vKa)}, {v(vL16)}
    v_mov_b32 {v(vVa)}, {v(vVb)}
    s_mov_b32 {s(sIt)}, 0
    s_mov_b32 {s(sBar)}, 3
    """)
    a("s_waitcnt lgkmcnt(0)\ns_barrier")
    pf.stamp(8); pf.stamp(1, "loop")
    a(f"""
    ds_read_b128 {v(Q,4)}, {v(t[0])}
    ds_read_b128 {v(K,4)}, {v(vL16)}
    s_mov_b64 exec, {s(sMask,2)}
    ds_read_b128 {v(Vb,4)}, {v(vVa)}
    s_mov_b64 exec, -1
    s_waitcnt lgkmcnt(1)
    {MFMA} {v(SB[0],16)}, {v(K,4)}, {v(Q,4)}, 0
    s_nop 11
    """)
    def rowmax(src, dst, first):
        k = 0
        if first:
            a(f"v_max3_f32 {v(dst)}, {v(src)}, {v(src+1)}, {v(src+2)}"); k = 3
        while k < 16:
            if k + 1 < 16:
                a(f"v_max3_f32 {v(dst)}, {v(dst)}, {v(src+k)}, {v(src+k+1)}"); k += 2
            else:
                a(f"v_max_f32 {v(dst)}, {v(dst)}, {v(src+k)}"); k += 1
    LOOP = a.label("AT_LOOP"); nob = a.label("AT_nob"); DONE = a.label("AT_DONE")
    a(f"v_max3_f32 {v(t[0])}, {v(SB[0])}, {v(SB[0]+1)}, {v(SB[0]+2)}\nv_max3_f32 {v(t[1])}, {v(SB[0]+3)}, {v(SB[0]+4)}, {v(SB[0]+5)}")
    for k in range(6, 14, 4):
        a(f"v_max3_f32 {v(t[0])}, {v(t[0])}, {v(SB[0]+k)}, {v(SB[0]+k+1)}\nv_max3_f32 {v(t[1])}, {v(t[1])}, {v(SB[0]+k+2)}, {v(SB[0]+k+3)}")
    a(f"""
    v_max3_f32 {v(t[0])}, {v(t[0])}, {v(SB[0]+14)}, {v(SB[0]+15)}
    v_max_f32 {v(t[0])}, {v(t[0])}, {v(t[1])}
    v_mov_b32 {v(t[1])}, {v(t[0])}
    s_nop 1
    v_permlane32_swap_b32 {v(t[0])}, {v(t[1])}
    s_nop 0
    v_max_f32 {v(C)}, -{v(t[0])}, -{v(t[1])}
    """.replace("v_max_f32 " + v(C), "v_min_f32 " + v(C)))
    a(f"v_mov_b32 {v(C+1)}, {v(C)}")
    for i in range(2, 16, 2): a(f"v_pk_mov_b32 {v(C+i,2)}, {v(C,2)}, {v(C,2)}")
    a(f"""
    s_nop 1
    {MFMA} {v(SB[0],16)}, {v(K,4)}, {v(Q,4)}, {v(C,16)}
    ds_read_b128 {v(K,4)}, {v(vKa)} offset:1024
    s_mov_b64 exec, {s(sMask,2)}
    ds_read_b128 {v(V1,4)}, {v(vVa)}
    s_mov_b64 exec, -1
    s_nop 4
    """)
    pf.stamp(2, "loop")
    a(f"""
    .p2align 3
    {LOOP}:
    s_cmp_eq_u32 {s(sIt)}, {s(sBar)}
    s_cbranch_scc1 {nob}B
    {nob}:
    """)
    U = opt("U", 4)
    for k in range(U):
        cur, oth = SB[k % 2], SB[(k + 1) % 2]
        e = lambda i: a(f"v_exp_f32 {v(cur+i)}, {v(cur+i)}")
        a(f"s_setprio {3 - k % 4}")
        e(0); e(1)
        a(f"s_waitcnt lgkmcnt(2)\n{SMF} {v(O,16)}, {v(Vb,4)}, {v(oth+8,8)}, {v(vIdx)}")
        a(f"s_mov_b64 exec, {s(sMask,2)}\nds_read_b128 {v(Vb,4)}, {v(vVa)} offset:{k*1024 + 512}\ns_mov_b64 exec, -1")
        e(2); e(3); e(4); e(5)
        a(f"s_waitcnt lgkmcnt(2)\n{MFMA} {v(oth,16)}, {v(K,4)}, {v(Q,4)}, {v(C,16)}")
        a(f"ds_read_b128 {v(K,4)}, {v(vKa)} offset:{(k+2)*1024}")
        e(6); e(7); e(8); e(9); e(10)
        a(f"s_waitcnt lgkmcnt(2)\n{SMF} {v(O,16)}, {v(V1,4)}, {v(cur,8)}, {v(vIdx)}")
        a(f"s_mov_b64 exec, {s(sMask,2)}\nds_read_b128 {v(V1,4)}, {v(vVa)} offset:{(k+1)*1024}\ns_mov_b64 exec, -1")
        e(11); e(12); e(13)
        if k == U - 1 and PROF and "loop" in sys.argv:
            for it, sl in ((0, 5), (5, 6), (8, 7), (11, 8), (14, 9)):
                lb = a.label("PL")
                a(f"s_cmp_lg_u32 {s(sIt)}, {it}\ns_cbranch_scc1 {lb}")
                pf.stamp(sl, "loop")
                a(f"{lb}:")
        if k == U - 1:
            a(f"v_add_u32 {v(vKa)}, {U*1024}, {v(vKa)}\nv_add_u32 {v(vVa)}, {U*1024}, {v(vVa)}")
            a(f"s_add_u32 {s(sIt)}, {s(sIt)}, 1\ns_cmp_lt_u32 {s(sIt)}, {64//U}")
        e(14); e(15)
    a(f"""
    s_cbranch_scc1 {LOOP}
    M_TAIL:
    """)
    pf.stamp(10, "loop")
    a(f"""
    s_waitcnt lgkmcnt(0)
    s_setprio 3
    {SMF} {v(O,16)}, {v(Vb,4)}, {v(SB[1]+8,8)}, {v(vIdx)}
    s_mov_b32 {s(sT0)}, {f32(2.0**60)}
    s_mov_b32 {s(sT1)}, {f32(2.0**120)}
    s_barrier
    s_nop 8
    """)
    a.c("the stand-in max was the max over the first key tile: check nothing overflowed, otherwise redo with the true row max")
    a(f"""
    v_max3_f32 {v(t[0])}, |{v(O)}|, |{v(O+1)}|, |{v(O+2)}|
    v_add_f32 {v(t[1])}, {v(O)}, {v(O+1)}
    v_add_f32 {v(t[2])}, {v(O+2)}, {v(O+3)}
    v_max3_f32 {v(t[0])}, {v(t[0])}, |{v(O+3)}|, |{v(O+4)}|
    v_add_f32 {v(t[1])}, {v(t[1])}, {v(O+4)}
    v_add_f32 {v(t[2])}, {v(t[2])}, {v(O+5)}
    v_max3_f32 {v(t[0])}, {v(t[0])}, |{v(O+5)}|, |{v(O+6)}|
    v_add_f32 {v(t[1])}, {v(t[1])}, {v(O+6)}
    v_add_f32 {v(t[2])}, {v(t[2])}, {v(O+7)}
    v_max_f32 {v(t[0])}, {v(t[0])}, |{v(O+7)}|
    v_add_f32 {v(t[1])}, {v(t[1])}, {v(t[2])}
    v_cmp_nlt_f32 vcc, {v(O+8)}, {s(sT0)}
    v_cmp_nlt_f32 {s(sK,2)}, {v(t[0])}, {s(sT1)}
    s_or_b64 vcc, vcc, {s(sK,2)}
    v_cmp_u_f32 {s(sK,2)}, {v(t[1])}, {v(t[1])}
    s_or_b64 vcc, vcc, {s(sK,2)}
    s_cbranch_vccz {DONE}
    """)
    a(f"s_branch {nob}F\n{nob}B:")
    a(f"s_cmp_lg_u32 {s(sIt)}, 3\ns_cbranch_scc1 {nob}X\ns_mov_b32 {s(sBar)}, {opt('xbit', 13)}")
    pf.stamp(3, "loop")
    a("s_barrier")
    pf.stamp(4, "loop")
    a(f"""
    s_branch {nob}
    {nob}X:
    buffer_load_dwordx4 {v(vXr,4)}, {v(vOa)}, {s(rA,4)}, 0 offen
    buffer_load_dwordx4 {v(vB2,4)}, {v(vB2)}, {s(rB,4)}, 0 offen
    s_branch {nob}
    {nob}F:
    """)
    ML, ML2 = a.label("AT_MAXLOOP"), a.label("AT_REDO")
    a.c("rare path: true row max, then the whole row block again, K/V straight from global memory")
    a(f"""
    s_lshl_b32 {s(sT0)}, {s(sH)}, 16
    s_add_u32 {s(sT0)}, {s(sT0)}, {WS_K}
    v_mov_b32 {v(t[0])}, 0xff800000
    s_mov_b32 {s(sIt)}, 0
    {ML}:
    buffer_load_dwordx4 {v(K,4)}, {v(vL16)}, {s(rWS,4)}, {s(sT0)} offen{SC}
    s_add_u32 {s(sT0)}, {s(sT0)}, 1024
    s_waitcnt vmcnt(0)
    {MFMA} {v(SB[0],16)}, {v(K,4)}, {v(Q,4)}, 0
    s_nop 15
    """)
    rowmax(SB[0], t[0], False)
    a(f"""
    s_add_u32 {s(sIt)}, {s(sIt)}, 1
    s_cmp_lt_u32 {s(sIt)}, 64
    s_cbranch_scc1 {ML}
    v_mov_b32 {v(t[1])}, {v(t[0])}
    v_subrev_u32 {v(vVa)}, 65536, {v(vVb)}
    s_sub_u32 {s(sT0)}, {s(sT0)}, 65536
    v_permlane32_swap_b32 {v(t[0])}, {v(t[1])}
    s_add_u32 {s(sT1)}, {s(sT0)}, {WS_V - WS_K}
    s_mov_b32 {s(sIt)}, 0
    v_max_f32 {v(t[0])}, {v(t[0])}, {v(t[1])}
    """)
    for i in range(16): a(f"v_sub_f32 {v(C+i)}, 0, {v(t[0])}\nv_mov_b32 {v(O+i)}, 0")
    a(f"""
    {ML2}:
    buffer_load_dwordx4 {v(K,4)}, {v(vL16)}, {s(rWS,4)}, {s(sT0)} offen{SC}
    s_mov_b64 exec, {s(sMask,2)}
    buffer_load_dwordx4 {v(V1,4)}, {v(vVa)}, {s(rWS,4)}, {s(sT1)} offen{SC}
    buffer_load_dwordx4 {v(Vb,4)}, {v(vVa)}, {s(rWS,4)}, {s(sT1)} offen offset:512{SC}
    s_mov_b64 exec, -1
    s_add_u32 {s(sT0)}, {s(sT0)}, 1024
    s_add_u32 {s(sT1)}, {s(sT1)}, 1024
    s_waitcnt vmcnt(0)
    {MFMA} {v(SB[0],16)}, {v(K,4)}, {v(Q,4)}, {v(C,16)}
    s_nop 15
    """)
    for i in range(16): a(f"v_exp_f32 {v(SB[0]+i)}, {v(SB[0]+i)}")
    a(f"""
    s_nop 1
    {SMF} {v(O,16)}, {v(V1,4)}, {v(SB[0],8)}, {v(vIdx)}
    {SMF} {v(O,16)}, {v(Vb,4)}, {v(SB[0]+8,8)}, {v(vIdx)}
    s_add_u32 {s(sIt)}, {s(sIt)}, 1
    s_nop 15
    s_cmp_lt_u32 {s(sIt)}, 64
    s_cbranch_scc1 {ML2}
    {DONE}:
    """)
    pf.stamp(1, "tail")
    a(f"""
    v_rcp_f32 {v(t[0])}, {v(O+8)}
    s_nop 0
    """)
    for i in range(8): a(f"v_mul_f32 {v(O+i)}, {v(O+i)}, {v(t[0])}")
    for i in range(4): a(f"v_cvt_pk_bf16_f32 {v(K+i)}, {v(O+2*i)}, {v(O+2*i+1)}")
    a(f"buffer_store_dwordx4 {v(K,4)}, {v(vL16)}, {s(rWS,4)}, {s(sOdst)} offen{SC}")
    pf.stamp(9)
    pf.stamp(2, "tail")
    a.c("---------------- final: out tile (tm = rb, tn = cb), wave (mt = w&1, kq = w>>1): heads 8kq..8kq+7, 32 tokens x 64 cols")
    vBa = vVb
    OF = [ACC2[0] + 4*i for i in range(8)]
    ACC = [ACC1[0], ACC1[1]]
    sP, sRdy, sOo = sU[3], sU[4], sOsrc
    PART = 65536
    def oload(f):
        a(f"buffer_load_dwordx4 {v(OF[f],4)}, {v(vL16)}, {s(rWS,4)}, {s(sOo if f < 4 else sOsrc2)} offen offset:{(f%4)*1024}{SC}")
    vHint = t[2]; vWb = vVa
    def cinit():
        pf.stamp(5, "tail")
        a(f"v_xor_b32 {v(vWb)}, 64, {v(vWa)}\ns_barrier")
        for f in range(8):
            for n, va in enumerate((vWa, vWb)):
                for j in range(2):
                    a(f"ds_read_b64_tr_b16 {v(WFq[2*f+n]+2*j,2)}, {v(va)} offset:{f*2048 + j*1024}")
            if f % 2 == 1 and f < 7:
                for i in range(8): a(f"v_mov_b32 {v(ACC[0] + 8*(f//2) + i)}, 0")
                a("s_waitcnt lgkmcnt(6)")
        for i in range(8): a(f"v_mov_b32 {v(ACC[0] + 24 + i)}, 0")
        a("s_waitcnt lgkmcnt(0)\ns_barrier")
        pf.stamp(6, "tail")
    def tree(body, mask_s):
        for h in range(2):
            skh = a.label("F_skh")
            a(f"s_and_b32 {s(sT0)}, {s(mask_s)}, {0xf << (4*h)}\ns_cbranch_scc0 {skh}")
            for f in range(4*h, 4*h + 4):
                sk = a.label("F_sk")
                a(f"s_bitcmp1_b32 {s(mask_s)}, {f}\ns_cbranch_scc0 {sk}")
                body(f, sk)
                a(f"{sk}:")
            a(f"{skh}:")
    def consume(f, sk):
        tt_ = t[f % 2]
        a(f"""
        v_max3_u32 {v(tt_)}, {v(OF[f])}, {v(OF[f]+1)}, {v(OF[f]+2)}
        v_max_u32 {v(tt_)}, {v(tt_)}, {v(OF[f]+3)}
        v_cmp_eq_u32 vcc, -1, {v(tt_)}
        s_and_b64 vcc, vcc, {s(sK,2)}
        s_cbranch_vccnz {sk}
        """)
        for n in range(2):
            a(f"{MFMA} {v(ACC[n],16)}, {v(WFq[2*f+n],4)}, {v(OF[f],4)}, {v(ACC[n],16)}")
        a(f"s_bitset0_b32 {s(sP)}, {f}")
    a.c("O fragments arrive from 32 other workgroups; a slot still holding the all-ones marker has not been written yet")
    SLOW, PH2, PH2B, RD = a.label("F_SLOW"), a.label("F_PH2"), a.label("F_PH2B"), a.label("F_DONE")
    a(f"""
    s_mov_b32 {s(sP)}, 255
    s_mov_b32 {s(sIt)}, 0
    s_mov_b64 {s(sK,2)}, -1
    """)
    cinit()
    a("s_waitcnt vmcnt(0)")
    if opt("d1", 0): a(f"s_sleep {opt('d1', 0)}")
    pf.stamp(4, "tail")
    if opt("first", 0) == 1:
        a(f"""
        s_mov_b64 exec, 255
        buffer_load_dword {v(vHint)}, {v(vLp)}, {s(rWS,4)}, {s(sOo)} offen{SC}
        s_mov_b64 exec, -1
        s_waitcnt vmcnt(0)
        v_cmp_ne_u32 vcc, -1, {v(vHint)}
        s_and_b32 {s(sRdy)}, vcc_lo, 255
        s_cmp_lg_u32 {s(sRdy)}, 255
        s_cbranch_scc1 {SLOW}
        """)
    for f in range(8): oload(f)
    for f in range(8):
        sk = a.label("F_sk")
        a(f"s_waitcnt vmcnt({7 - f})")
        consume(f, sk)
        a(f"{sk}:")
    a(f"s_branch {PH2}\n{SLOW}:")
    tree(lambda f, sk: oload(f), sRdy)
    a(f"{PH2B}:\ns_waitcnt vmcnt(0)")
    pf.stamp(8, "tail")
    tree(consume, sRdy)
    PL = a.label("F_PL"); GO = a.label("F_GO")
    a(f"""
    {PH2}:
    s_cmp_eq_u32 {s(sP)}, 0
    s_cbranch_scc1 {RD}
    s_mov_b32 {s(sRdy)}, {s(sP)}
    s_add_u32 {s(sIt)}, {s(sIt)}, 1
    s_bcnt1_i32_b32 {s(sT0)}, {s(sP)}
    s_cmp_le_u32 {s(sT0)}, {opt("few", 8)}
    s_cbranch_scc1 {GO}S
    s_mov_b64 exec, 255
    {PL}:
    s_sleep {opt("psleep", 6)}
    buffer_load_dword {v(vHint)}, {v(vLp)}, {s(rWS,4)}, {s(sOo)} offen{SC}
    s_add_u32 {s(sIt)}, {s(sIt)}, 1
    s_waitcnt vmcnt(0)
    v_cmp_eq_u32 vcc, -1, {v(vHint)}
    s_and_b32 {s(sT0)}, vcc_lo, {s(sP)}
    s_cbranch_scc0 {GO}
    s_cmp_lt_u32 {s(sIt)}, 0x8000
    s_cbranch_scc1 {PL}
    s_branch {GO}
    {GO}S:
    s_sleep {opt("psleep", 6)}
    {GO}:
    """)
    pf.stamp(7, "tail")
    a(f"""
    s_mov_b64 exec, -1
    s_cmp_lt_u32 {s(sIt)}, 0x8000
    s_cselect_b64 {s(sK,2)}, -1, 0
    """)
    tree(lambda f, sk: oload(f), sRdy)
    a(f"s_branch {PH2B}\n{RD}:")
    a("s_nop 3")
    pf.stamp(11); pf.stamp(9, "tail")
    if PROF and "tail" in sys.argv:
        a(f"s_waitcnt lgkmcnt(0)\ns_add_u32 {s(pf.t[12])}, {s(pf.t[0])}, {s(sIt)}\ns_add_u32 {s(pf.t[12])}, {s(pf.t[12])}, 1")
    XS = F[0] + 16; R = ACC2[0]
    for i in range(4):
        a(f"v_lshlrev_b32 {v(XS+2*i)}, 16, {v(vXr+i)}\nv_and_b32 {v(XS+2*i+1)}, 0xffff0000, {v(vXr+i)}")
    for i in range(4):
        a(f"v_lshlrev_b32 {v(XS+8+2*i)}, 16, {v(vB2+i)}\nv_and_b32 {v(XS+8+2*i+1)}, 0xffff0000, {v(vB2+i)}")
    for n in range(2):
        for gq in range(4):
            a(f"v_xor_b32 {v(t[gq%2])}, {128*n + 32*gq}, {v(vWp)}\nds_write_b128 {v(t[gq%2])}, {v(ACC[n]+4*gq,4)}")
    for i in range(8): a(f"v_add_f32 {v(XS+i)}, {v(XS+i)}, {v(XS+8+i)}")
    a(f"""
    v_xor_b32 {v(t[1])}, 16, {v(vRp)}
    v_add_u32 {v(vBa)}, {STG}, {v(vRp)}
    v_add_u32 {v(t[0])}, {STG}, {v(t[1])}
    s_waitcnt lgkmcnt(0)
    """)
    pf.stamp(10, "tail")
    a("s_barrier")
    pf.stamp(11, "tail")
    R2 = ACC1[0]
    for k, (a0_, a1_, off) in enumerate([(vRp, t[1], 0), (vRp, t[1], 16384), (vRp, t[1], BASE), (vBa, t[0], 0), (vBa, t[0], 16384)]):
        d = R + 8*k if k < 4 else R2
        a(f"ds_read_b128 {v(d,4)}, {v(a0_)} offset:{off}\nds_read_b128 {v(d+4,4)}, {v(a1_)} offset:{off}")
    a("s_waitcnt lgkmcnt(6)")
    for i in range(8): a(f"v_add_f32 {v(XS+i)}, {v(XS+i)}, {v(R+i)}")
    for i in range(8): a(f"v_add_f32 {v(XS+i)}, {v(XS+i)}, {v(R+8+i)}")
    a("s_waitcnt lgkmcnt(2)")
    for i in range(8): a(f"v_add_f32 {v(R+16+i)}, {v(R+16+i)}, {v(R+24+i)}")
    for i in range(8): a(f"v_add_f32 {v(XS+i)}, {v(XS+i)}, {v(R+16+i)}")
    a("s_waitcnt lgkmcnt(0)")
    for i in range(8): a(f"v_add_f32 {v(XS+i)}, {v(XS+i)}, {v(R2+i)}")
    for i in range(4): a(f"v_cvt_pk_bf16_f32 {v(R+i)}, {v(XS+2*i)}, {v(XS+2*i+1)}")
    a(f"buffer_store_dwordx4 {v(R,4)}, {v(vOa)}, {s(rC,4)}, 0 offen")
    if opt("dbgclk", 0):
        a(f"""
        s_memtime {s(sMask,2)}
        s_memrealtime {s(sK,2)}
        s_waitcnt lgkmcnt(0)
        s_sub_u32 {s(sMask)}, {s(sMask)}, s96
        s_sub_u32 {s(sK)}, {s(sK)}, s98
        s_cmp_lg_u32 {s(sW)}, 0
        s_cbranch_scc1 {END}
        s_and_b32 {s(sT0)}, s2, 63
        s_cmp_lg_u32 {s(sT0)}, 5
        s_cbranch_scc1 {END}
        s_lshr_b32 {s(sT0)}, s2, 6
        s_lshl_b32 {s(sT0)}, {s(sT0)}, 3
        s_add_u32 {s(sT0)}, {s(sT0)}, 16
        v_mov_b32 {v(t[0])}, {s(sT0)}
        v_mov_b32 {v(R+4)}, {s(sMask)}
        v_mov_b32 {v(R+5)}, {s(sK)}
        s_mov_b64 exec, 1
        global_store_dwordx2 {v(t[0])}, {v(R+4,2)}, s[22:23]
        """)
    pf.finish(t[0], t[1], sW)
    a("s_endpgm")
    return V.hi

def gen_aux(a, G):
    g = lambda n: G[n]
    pf, sW, sRB, sCB, sH, sR8, sT0, sT1, sT2, sT3, sIt = [g(n) for n in "pf sW sRB sCB sH sR8 sT0 sT1 sT2 sT3 sIt".split()]
    rWS, rA, rB, rC, sU, sMask, sK, END = [g(n) for n in "rWS rA rB rC sU sMask sK END".split()]
    V = Regs("v", 3, 168)
    vL = 2
    vm = Cnt(a, "vmcnt", 63); lg = Cnt(a, "lgkmcnt", 15)
    vL16 = V.alloc(); vT = [V.alloc() for _ in range(6)]
    vWq = [V.alloc(), V.alloc()]; vW1 = [V.alloc(), V.alloc()]
    vD = V.alloc(4, 4)
    sA = sU[0]; sOff = [sU[1], sU[2], sU[3]]; sM = [sU[4], sU[5], sU[6]]; sI8 = sU[7]
    a.c("---------------- aux waves: weight streaming for the two GEMMs")
    a(f"""
    s_setprio {opt("auxprio", 1)}
    s_sub_u32 {s(sA)}, {s(sW)}, 8
    v_lshlrev_b32 {v(vL16)}, 4, {v(vL)}
    v_lshrrev_b32 {v(vT[0])}, 3, {v(vL)}
    v_bfe_u32 {v(vT[1])}, {v(vL)}, 4, 1
    v_lshlrev_b32 {v(vT[1])}, 2, {v(vT[1])}
    v_and_b32 {v(vT[2])}, 7, {v(vL)}
    v_xor_b32 {v(vT[1])}, {v(vT[1])}, {v(vT[2])}
    v_lshlrev_b32 {v(vT[1])}, 4, {v(vT[1])}
    v_mul_u32_u24 {v(vT[2])}, 3072, {v(vT[0])}
    v_add_u32 {v(vWq[0])}, {v(vT[2])}, {v(vT[1])}
    v_add_u32 {v(vWq[1])}, {8*3072 - 1024}, {v(vWq[0])}
    v_mul_u32_u24 {v(vT[2])}, 2752, {v(vT[0])}
    v_add_u32 {v(vW1[0])}, {v(vT[2])}, {v(vT[1])}
    v_add_u32 {v(vW1[1])}, {8*2752 - 1024}, {v(vW1[0])}
    s_lshl_b32 {s(sOff[0])}, {s(sCB)}, 7
    s_lshl_b32 {s(sT0)}, {s(sA)}, 10
    s_add_u32 {s(sOff[0])}, {s(sOff[0])}, {s(sT0)}
    s_mul_i32 {s(sOff[1])}, {s(sCB)}, 384
    s_lshl_b32 {s(sT0)}, {s(sA)}, 7
    s_add_u32 {s(sOff[2])}, {s(sOff[1])}, {s(sT0)}
    s_lshl_b32 {s(sM[0])}, {s(sA)}, 13
    s_add_u32 {s(sM[0])}, {s(sM[0])}, {RING}
    s_and_b32 {s(sI8)}, {s(sRB)}, 7
    s_mov_b32 {s(rA+2)}, {512*3072}
    s_mov_b32 {s(rA+3)}, 0x00020000
    s_mov_b32 {s(rB+2)}, {512*2752}
    s_mov_b32 {s(rB+3)}, 0x00020000
    s_cmp_eq_u32 {s(sCB)}, 7
    s_cselect_b32 {s(sT0)}, 0, {512*2752}
    s_cmp_eq_u32 {s(sA)}, 0
    s_cselect_b32 {s(rC+2)}, {512*2752}, {s(sT0)}
    s_mov_b32 {s(sM[1])}, {s(sT0)}
    s_mov_b32 {s(rC+3)}, 0x00020000
    s_waitcnt lgkmcnt(0)
    s_mov_b32 {s(rA)}, s6
    s_mov_b32 {s(rA+1)}, s7
    s_mov_b32 {s(rB)}, s12
    s_mov_b32 {s(rB+1)}, s13
    s_mov_b32 {s(rC)}, s12
    s_mov_b32 {s(rC+1)}, s13
    """)
    sLQ, sLH = sU[8], sU[9]
    sN = sK
    nn = a.label("X_nonce")
    a(f"""
    s_lshl_b32 {s(sLQ)}, {s(sH)}, 3
    s_add_u32 {s(sLQ)}, {s(sLQ)}, {s(sR8)}
    s_lshl_b32 {s(sLQ)}, {s(sLQ)}, 8
    s_add_u32 {s(sLQ)}, {s(sLQ)}, {FLAG_Q}
    s_lshl_b32 {s(sLH)}, {s(sRB)}, 3
    s_add_u32 {s(sLH)}, {s(sLH)}, {s(sCB)}
    s_lshl_b32 {s(sLH)}, {s(sLH)}, 8
    s_add_u32 {s(sLH)}, {s(sLH)}, {FLAG_H}
    """)
    a.c("workgroup 0, wave 11 picks this launch's tag (previous tag + 1, low word never 0) and publishes it through d_debug")
    a(f"""
    s_cmp_lg_u32 s2, 0
    s_cbranch_scc1 {nn}
    s_cmp_lg_u32 {s(sA)}, 3
    s_cbranch_scc1 {nn}
    v_mov_b32 {v(vT[4])}, 0
    s_mov_b32 {s(sT0)}, {WS_EPOCH}
    s_mov_b64 exec, 1
    buffer_load_dwordx2 {v(vD,2)}, {v(vT[4])}, {s(rWS,4)}, {s(sT0)} offen{SC}
    s_waitcnt vmcnt(0)
    v_add_co_u32 {v(vD)}, vcc, 1, {v(vD)}
    s_nop 1
    v_addc_co_u32 {v(vD+1)}, vcc, 0, {v(vD+1)}, vcc
    v_max_u32 {v(vD)}, 1, {v(vD)}
    buffer_store_dwordx2 {v(vD,2)}, {v(vT[4])}, {s(rWS,4)}, {s(sT0)} offen{SC}
    global_store_dwordx2 {v(vT[4])}, {v(vD,2)}, s[22:23]{SC}
    s_mov_b64 exec, -1
    {nn}:
    """)
    ACC = [[V.alloc(16, 4), V.alloc(16, 4)], [V.alloc(16, 4), V.alloc(16, 4)]]
    HB = [V.alloc(8, 4) for _ in range(4)]; HS = V.alloc(24, 4); WB = [HS, HS + 8]
    vRa, vRb, vWo0, vWo1, vQa = [V.alloc() for _ in range(5)]
    a.c("lane addresses for later phases, while the first loads are in flight")
    a(f"""
    v_lshrrev_b32 {v(vT[0])}, 5, {v(vL)}
    v_bfe_u32 {v(vT[1])}, {v(vL)}, 2, 2
    v_lshl_add_u32 {v(vT[1])}, {v(vT[0])}, 2, {v(vT[1])}
    v_lshlrev_b32 {v(vT[1])}, 7, {v(vT[1])}
    v_bfe_u32 {v(vT[0])}, {v(vL)}, 3, 1
    v_lshl_add_u32 {v(vT[1])}, {v(vT[0])}, 6, {v(vT[1])}
    v_bfe_u32 {v(vT[0])}, {v(vL)}, 4, 1
    v_lshl_add_u32 {v(vT[1])}, {v(vT[0])}, 5, {v(vT[1])}
    v_and_b32 {v(vT[0])}, 3, {v(vL)}
    v_lshl_add_u32 {v(vT[1])}, {v(vT[0])}, 3, {v(vT[1])}
    s_lshl_b32 {s(sT0)}, {s(sA)}, 13
    s_add_u32 {s(sT0)}, {s(sT0)}, {STG}
    v_add_u32 {v(vRa)}, {s(sT0)}, {v(vT[1])}
    v_xor_b32 {v(vRb)}, 64, {v(vRa)}
    v_lshrrev_b32 {v(vT[4])}, 3, {v(vL)}
    v_bfe_u32 {v(vT[1])}, {v(vL)}, 4, 1
    v_lshlrev_b32 {v(vT[1])}, 2, {v(vT[1])}
    v_and_b32 {v(vT[2])}, 7, {v(vL)}
    v_xor_b32 {v(vT[1])}, {v(vT[1])}, {v(vT[2])}
    v_lshlrev_b32 {v(vT[1])}, 4, {v(vT[1])}
    v_lshl_add_u32 {v(vWo0)}, {v(vT[4])}, 10, {v(vT[1])}
    v_add_u32 {v(vWo1)}, {8*1024 - 1024}, {v(vWo0)}
    v_and_b32 {v(vQa)}, 31, {v(vL)}
    v_lshlrev_b32 {v(vQa)}, 3, {v(vQa)}
    """)
    for m in range(2):
        for n in range(2):
            for i in range(16): a(f"v_mov_b32 {v(ACC[m][n]+i)}, 0")
    sKr = sMask
    a(f"s_and_b32 {s(sKr)}, {s(sRB)}, 7")
    def group(r, vo, stride, scol, m0base, m0imm):
        for q in range(4):
            a(f"""
            s_add_u32 m0, {m0base}, {m0imm + q*2048}
            s_add_u32 {s(sIt)}, {s(scol)}, {q*16*stride}
            buffer_load_dwordx4 {v(vo[0])}, {s(r,4)}, {s(sIt)} offen{WNT} lds
            buffer_load_dwordx4 {v(vo[1])}, {s(r,4)}, {s(sIt)} offen offset:1024{WNT} lds
            """)
    def dma(c):
        sl = SLOTOF[c]; isq = SEQ[c][0] == "c"
        st = 3072 if isq else 2752
        a(f"""
        s_add_u32 {s(sT3)}, {s(sKr)}, {SEQ[c][1]}
        s_and_b32 {s(sT3)}, {s(sT3)}, 7
        s_mul_i32 {s(sT3)}, {s(sT3)}, {64*st}
        s_add_u32 {s(sT3)}, {s(sT3)}, {s(sOff[0] if isq else sOff[2])}
        """)
        group(rA if isq else rC, vWq if isq else vW1, st, sT3, s(sM[0]), sl*SLOT)
        vm.op(("c", c), 8)
    def dma_lone(c):
        sl = SLOTOF[c]
        a(f"s_mul_i32 {s(sT3)}, {s(sKr)}, {64*2752}\ns_add_u32 {s(sT3)}, {s(sT3)}, {s(sOff[1])}\ns_mov_b32 {s(sT2)}, {RING}")
        for gi in range(3):
            group(rB, vW1, 2752, sT3, s(sT2), sl*SLOT + gi*8192)
            if gi == 0: a(f"s_mov_b32 {s(rB+2)}, {s(sM[1])}")
            a(f"s_add_u32 {s(sT3)}, {s(sT3)}, 128")
    W11, WJ = a.label("X_W11"), a.label("X_WJ")
    if opt("bx", 1): a("s_barrier")
    elif opt("bxs", 0): a(f"s_sleep {opt('bxs', 0)}")
    a(f"s_cmp_eq_u32 {s(sA)}, 3\ns_cbranch_scc1 {W11}")
    LONE = FIRSTD if (DPOS < 8 or opt("dearly", 0)) else -1
    for p in IORDER:
        if ISSUE[p] == -2 and p != LONE: dma(p)
    def poll(setup, load, nl):
        L = a.label("X_poll"); D = a.label("X_polld")
        a(setup)
        a(f"s_mov_b32 {s(sIt)}, 0\ns_mov_b64 exec, 255")
        if nl == 32: a("s_mov_b32 exec_lo, -1")
        a(f"""
        {L}:
        {load}
        s_add_u32 {s(sIt)}, {s(sIt)}, 1
        s_waitcnt vmcnt(0)
        v_cmp_ne_u64 vcc, {s(sN,2)}, {v(vD,2)}
        s_cbranch_vccz {D}
        s_sleep {opt("pollsleep", 2)}
        s_cmp_lt_u32 {s(sIt)}, 0x20000
        s_cbranch_scc1 {L}
        {D}:
        s_mov_b64 exec, -1
        """)
        vm.q = []
    def setflag(base, sline, lineshift, sslot, nl, allw=False):
        nf = a.label("X_noflag")
        if not allw: a(f"s_cmp_lg_u32 {s(sA)}, 0\ns_cbranch_scc1 {nf}")
        a(f"""
        s_lshl_b32 {s(sT0)}, {s(sline)}, {lineshift + 8}
        s_lshl_b32 {s(sT1)}, {s(sslot)}, 3
        s_add_u32 {s(sT0)}, {s(sT0)}, {s(sT1)}
        s_add_u32 {s(sT0)}, {s(sT0)}, {base}
        v_lshlrev_b32 {v(vT[0])}, 8, {v(vL)}
        v_mov_b64 {v(vD+2,2)}, {s(sN,2)}
        s_mov_b64 exec, 255
        """)
        if nl == 32: a("s_mov_b32 exec_lo, -1")
        a(f"""
        buffer_store_dwordx2 {v(vD+2,2)}, {v(vT[0])}, {s(rWS,4)}, {s(sT0)} offen{SC}
        s_mov_b64 exec, -1
        {nf}:
        """)
    def tokwait():
        tk, tl = a.label("X_tok"), a.label("X_tokl")
        a(f"""
        s_waitcnt lgkmcnt(0)
        s_cmp_lg_u32 {s(sN)}, 0
        s_cbranch_scc1 {tk}
        s_mov_b32 {s(sIt)}, 0
        v_mov_b32 {v(vT[4])}, 0
        {tl}:
        global_load_dwordx2 {v(vD,2)}, {v(vT[4])}, s[22:23]{SC}
        s_add_u32 {s(sIt)}, {s(sIt)}, 1
        s_waitcnt vmcnt(0)
        v_readfirstlane_b32 {s(sN)}, {v(vD)}
        v_readfirstlane_b32 {s(sN+1)}, {v(vD+1)}
        s_cmp_lg_u32 {s(sN)}, 0
        s_cbranch_scc1 {tk}
        s_sleep 2
        s_cmp_lt_u32 {s(sIt)}, 0x20000
        s_cbranch_scc1 {tl}
        {tk}:
        """)
    for c in range(16):
        vm.wait(("c", c))
        if c >= 5: pf.stamp(c - 4, "fine")
        a("s_barrier")
        if c == 0: pf.stamp(4)
        if c == LASTC + 1: pf.stamp(5)
        for p in IORDER:
            if ISSUE[p] == c and p != LONE: dma(p)
        if c == 10: a(f"s_load_dwordx2 {s(sN,2)}, s[22:23], 0")
    a(f"s_branch {WJ}\n{W11}:")
    LAT = opt("loneat", ISSUE[8] if opt("dearly", 0) else -1)
    if LONE >= 0 and LAT < 0: dma_lone(LONE)
    if opt("pf11", 99) == -1:
        if opt("pf11s", 0): a(f"s_sleep {opt('pf11s', 0)}")
        a(f"""
        s_lshl_b32 {s(sT0)}, {s(sKr)}, 6
        v_add_u32 {v(vT[0])}, {s(sT0)}, {v(vL)}
        v_mul_u32_u24 {v(vT[0])}, 2752, {v(vT[0])}
        """)
        for i in range(4):
            a(f"buffer_load_dword {v(vD + i)}, {v(vT[0])}, {s(rB,4)}, {s(sOff[1])} offen offset:{[0,128,256,380][i]}")
    for c in range(16):
        if c == LONE: a("s_waitcnt vmcnt(0)")
        a("s_barrier")
        if LONE >= 0 and c == LAT: dma_lone(LONE)
        P11 = opt("pf11", 99)
        if P11 < 0: P11 = 99
        if c == P11:
            a.c("warm-up of this workgroup's first W1 chunk, one line column per step")
            a(f"""
            s_lshl_b32 {s(sT0)}, {s(sKr)}, 6
            v_add_u32 {v(vT[0])}, {s(sT0)}, {v(vL)}
            v_mul_u32_u24 {v(vT[0])}, 2752, {v(vT[0])}
            """)
        if 0 <= c - P11 < 4:
            a(f"buffer_load_dword {v(vD + c - P11)}, {v(vT[0])}, {s(rB,4)}, {s(sOff[1])} offen offset:{[0,128,256,380][c - P11]}")
        if c == 10: a(f"s_load_dwordx2 {s(sN,2)}, s[22:23], 0")
    a(f"{WJ}:")
    tokwait()
    pf.stamp(1)
    qld = f"buffer_load_dwordx2 {v(vD,2)}, {v(vQa)}, {s(rWS,4)}, {s(sLQ)} offen{SC}"
    vWo = [vWo0, vWo1]
    a.c("K/V key blocks may be taken in any order: wave a owns producers 8a..8a+7; the first two that are ready fill its four early slots")
    sKV, sPend, sNeed = sU[1], sU[2], sU[5]
    a(f"""
    s_lshl_b32 {s(sKV)}, {s(sH)}, 16
    s_lshl_b32 {s(sU[3])}, {s(sR8)}, 13
    s_add_u32 {s(sU[3])}, {s(sU[3])}, {s(sKV)}
    s_lshl_b32 {s(sU[4])}, {s(sA)}, 11
    s_add_u32 {s(sU[3])}, {s(sU[3])}, {s(sU[4])}
    s_add_u32 {s(sU[3])}, {s(sU[3])}, {WS_Q}
    s_add_u32 {s(sKV)}, {s(sKV)}, {WS_K}
    s_lshl_b32 {s(sT2)}, {s(sA)}, 3
    s_lshl_b32 {s(sPend)}, 255, {s(sT2)}
    s_lshl_b32 {s(sT2)}, {s(sR8)}, 2
    s_add_u32 {s(sT2)}, {s(sT2)}, {s(sA)}
    s_lshl_b32 {s(sNeed)}, 1, {s(sT2)}
    s_lshl_b32 {s(sU[6])}, {s(sA)}, 12
    """)
    def take(smask):
        a(f"""
        s_ff1_i32_b32 {s(sT2)}, {s(smask)}
        s_bitset0_b32 {s(smask)}, {s(sT2)}
        s_bitset0_b32 {s(sPend)}, {s(sT2)}
        s_lshl_b32 {s(sT2)}, {s(sT2)}, 11
        s_add_u32 {s(sT2)}, {s(sT2)}, {s(sKV)}
        s_mov_b32 m0, {s(sU[6])}
        s_add_u32 {s(sT3)}, {s(sT2)}, {WS_V - WS_K}
        buffer_load_dwordx4 {v(vL16)}, {s(rWS,4)}, {s(sT2)} offen{SCL} lds
        buffer_load_dwordx4 {v(vL16)}, {s(rWS,4)}, {s(sT2)} offen offset:1024{SCL} lds
        s_add_u32 m0, {s(sU[6])}, 65536
        s_add_u32 {s(sU[6])}, {s(sU[6])}, 2048
        buffer_load_dwordx4 {v(vL16)}, {s(rWS,4)}, {s(sT3)} offen{SCL} lds
        buffer_load_dwordx4 {v(vL16)}, {s(rWS,4)}, {s(sT3)} offen offset:1024{SCL} lds
        """)
    a(qld)
    a("s_barrier")
    pf.stamp(6)
    QL, QC, QG = a.label("X_ql"), a.label("X_qc"), a.label("X_qg")
    a(f"""
    s_mov_b32 {s(sIt)}, 0
    s_branch {QC}
    {QL}:
    s_sleep {opt("pollsleep", 2)}
    {qld}
    {QC}:
    s_add_u32 {s(sIt)}, {s(sIt)}, 1
    s_waitcnt vmcnt(0)
    v_cmp_eq_u64 vcc, {s(sN,2)}, {v(vD,2)}
    s_cmp_ge_u32 {s(sIt)}, 0x20000
    s_cselect_b32 {s(sT0)}, -1, vcc_lo
    s_and_b32 {s(sT1)}, {s(sT0)}, {s(sNeed)}
    s_cbranch_scc0 {QL}
    s_and_b32 {s(sT0)}, {s(sT0)}, {s(sPend)}
    s_bcnt1_i32_b32 {s(sT1)}, {s(sT0)}
    s_cmp_lt_u32 {s(sT1)}, 2
    s_cbranch_scc1 {QL}
    s_add_u32 m0, {s(sU[4])}, {STG}
    s_nop 0
    buffer_load_dwordx4 {v(vL16)}, {s(rWS,4)}, {s(sU[3])} offen{SCL} lds
    buffer_load_dwordx4 {v(vL16)}, {s(rWS,4)}, {s(sU[3])} offen offset:1024{SCL} lds
    """)
    take(sT0); take(sT0)
    vm.q = []
    sHo, sWo, sSt, sNI = sMask, sMask + 1, sU[3], sU[4]
    a.c("---------------- FFN2 in the shadow of attention")
    a(f"""
    s_mul_i32 {s(sHo)}, {s(sA)}, {24*1024}
    s_mul_i32 {s(sWo)}, {s(sA)}, {24*16*1024}
    s_lshl_b32 {s(sT2)}, {s(sCB)}, 7
    s_add_u32 {s(sWo)}, {s(sWo)}, {s(sT2)}
    s_lshl_b32 {s(sSt)}, {s(sA)}, 13
    s_add_u32 {s(sSt)}, {s(sSt)}, {STG}
    s_cmp_eq_u32 {s(sA)}, 3
    s_cselect_b32 {s(sNI)}, {min(4, opt("ffnit", 6))}, {opt("ffnit", 6)}
    """)
    pf.stamp(2)
    a("s_waitcnt vmcnt(0)\ns_barrier")
    pf.stamp(8)
    Q2, Q2G, Q2T = a.label("X_q2"), a.label("X_q2g"), a.label("X_q2t")
    a(f"""
    s_mul_i32 {s(sU[6])}, {s(sA)}, 12288
    s_add_u32 {s(sU[6])}, {s(sU[6])}, 16384
    s_mov_b32 {s(sIt)}, 0
    {Q2}:
    v_cmp_ne_u64 vcc, {s(sN,2)}, {v(vD,2)}
    s_and_b32 {s(sT0)}, vcc_lo, {s(sPend)}
    s_cbranch_scc0 {Q2G}
    s_sleep {opt("pollsleep", 2)}
    {qld}
    s_add_u32 {s(sIt)}, {s(sIt)}, 1
    s_waitcnt vmcnt(0)
    s_cmp_lt_u32 {s(sIt)}, 0x20000
    s_cbranch_scc1 {Q2}
    {Q2G}:
    s_mov_b32 {s(sT0)}, {s(sPend)}
    {Q2T}:
    """)
    take(sT0)
    a(f"s_cmp_lg_u32 {s(sT0)}, 0\ns_cbranch_scc1 {Q2T}")
    vm.op("s2", 24)
    rL = G["rL"]
    a.c("all-ones marker into this workgroup's own O slots; H tile SRDs")
    a(f"""
    s_lshl_b32 {s(sT0)}, {s(sR8)}, 3
    s_lshl_b32 {s(sT1)}, {s(sA)}, 1
    s_add_u32 {s(sT0)}, {s(sT0)}, {s(sT1)}
    s_mul_i32 {s(sT0)}, {s(sT0)}, {A3_TSTRIDE}
    s_lshl_b32 {s(sT1)}, {s(sH)}, 10
    s_add_u32 {s(sT0)}, {s(sT0)}, {s(sT1)}
    s_add_u32 {s(sU[5])}, {s(sT0)}, {WS_A3}
    s_add_u32 {s(sU[6])}, {s(sU[5])}, {A3_TSTRIDE}
    """)
    for i in range(4): a(f"v_mov_b32 {v(vD+i)}, -1")
    a(f"""
    buffer_store_dwordx4 {v(vD,4)}, {v(vL16)}, {s(rWS,4)}, {s(sU[5])} offen{SC}
    buffer_store_dwordx4 {v(vD,4)}, {v(vL16)}, {s(rWS,4)}, {s(sU[6])} offen{SC}
    s_mul_i32 {s(sT1)}, {s(sRB)}, {2*A3_TSTRIDE}
    s_add_u32 {s(sT1)}, {s(sT1)}, {WS_A3 + 32*1024}
    s_add_u32 {s(rC)}, {s(rWS)}, {s(sT1)}
    s_addc_u32 {s(rC+1)}, {s(rWS+1)}, 0
    s_mov_b32 {s(rC+2)}, {86*1024}
    s_add_u32 {s(rL)}, {s(rC)}, {A3_TSTRIDE}
    s_addc_u32 {s(rL+1)}, {s(rC+1)}, 0
    s_mov_b32 {s(rL+2)}, {86*1024}
    s_mov_b32 {s(rL+3)}, 0x00020000
    """)
    vm.op("sent", 2)
    a.c("H tiles: staging -> global; wave a: token tile a&1, column steps 6*(a>>1)..")
    a(f"""
    s_and_b32 {s(sT0)}, {s(sA)}, 1
    s_mul_i32 {s(sT1)}, {s(sT0)}, 12288
    s_lshr_b32 {s(sT2)}, {s(sA)}, 1
    s_mul_i32 {s(sT2)}, {s(sT2)}, 6144
    s_add_u32 {s(sT1)}, {s(sT1)}, {s(sT2)}
    s_add_u32 {s(sT1)}, {s(sT1)}, {STG + 8192}
    v_add_u32 {v(vT[0])}, {s(sT1)}, {v(vL16)}
    """)
    for i in range(6): a(f"ds_read_b128 {v(HS+4*i,4)}, {v(vT[0])} offset:{1024*i}")
    a(f"""
    s_mul_i32 {s(sT1)}, {s(sCB)}, 12288
    s_add_u32 {s(sT2)}, {s(sT2)}, {s(sT1)}
    s_mul_i32 {s(sT1)}, {s(sT0)}, {A3_TSTRIDE}
    s_add_u32 {s(rB)}, {s(rC)}, {s(sT1)}
    s_addc_u32 {s(rB+1)}, {s(rC+1)}, 0
    s_mov_b32 {s(rB+2)}, {86*1024}
    s_add_u32 {s(sT1)}, {s(sT2)}, 4096
    s_waitcnt lgkmcnt(0)
    """)
    def hst():
        for i in range(6):
            a(f"buffer_store_dwordx4 {v(HS+4*i,4)}, {v(vL16)}, {s(rB,4)}, {s(sT3 if i < 4 else sT0)} offen offset:{1024*(i%4)}{SC}")
        vm.op("hst", 6)
    a(f"s_mov_b32 {s(sT0)}, {s(sT1)}\ns_mov_b32 {s(sT3)}, {s(sT2)}")
    hst()
    a.c("L2 warm-up of W2 / Wo column block (1/8 share)")
    a(f"""
    s_mov_b32 {s(rA)}, s16
    s_mov_b32 {s(rA+1)}, s17
    s_mov_b32 {s(rA+2)}, {1376*1024}
    s_mul_i32 {s(sT0)}, {s(sI8)}, 172
    s_mul_i32 {s(sT1)}, {s(sA)}, 43
    s_add_u32 {s(sT0)}, {s(sT0)}, {s(sT1)}
    v_min_u32 {v(vT[0])}, 42, {v(vL)}
    v_add_u32 {v(vT[0])}, {s(sT0)}, {v(vT[0])}
    v_lshlrev_b32 {v(vT[0])}, 10, {v(vT[0])}
    s_lshl_b32 {s(sT1)}, {s(sCB)}, 7
    buffer_load_dword {v(vT[3])}, {v(vT[0])}, {s(rA,4)}, {s(sT1)} offen
    """)
    vm.op("pf", 1)
    vm.wait("s2", "sent")
    pf.stamp(12)
    a("s_barrier")
    vm.wait("hst")
    a(f"s_lshl_b32 {s(sT3)}, {s(sCB)}, 2\ns_add_u32 {s(sT3)}, {s(sT3)}, {s(sA)}")
    setflag(FLAG_H, sRB, 3, sT3, 8, allw=True)
    setflag(FLAG_O, sR8, 5, sH, 32)
    pf.stamp(3)
    poll("", f"buffer_load_dwordx2 {v(vD,2)}, {v(vQa)}, {s(rWS,4)}, {s(sLH)} offen{SC}", 32)
    pf.stamp(7)
    def f_issue(sl):
        a(f"""
        s_add_u32 m0, {s(sSt)}, {sl*2048}
        buffer_load_dwordx4 {v(HB[sl],4)}, {v(vL16)}, {s(rC,4)}, {s(sHo)} offen{SCL}
        buffer_load_dwordx4 {v(HB[sl]+4,4)}, {v(vL16)}, {s(rL,4)}, {s(sHo)} offen{SCL}
        buffer_load_dwordx4 {v(vWo[0])}, {s(rA,4)}, {s(sWo)} offen lds
        buffer_load_dwordx4 {v(vWo[1])}, {s(rA,4)}, {s(sWo)} offen offset:1024 lds
        s_add_u32 {s(sHo)}, {s(sHo)}, 1024
        s_add_u32 {s(sWo)}, {s(sWo)}, 16384
        """)
    for sl in range(3): f_issue(sl)
    FL = a.label("X_FFN2")
    a(f"s_mov_b32 {s(sIt)}, 0\n{FL}:")
    for sl in range(4):
        a("s_waitcnt vmcnt(8)")
        w = WB[sl % 2]
        for n, va in enumerate((vRa, vRb)):
            for j in range(2):
                a(f"ds_read_b64_tr_b16 {v(w+4*n+2*j,2)}, {v(va)} offset:{sl*2048 + j*1024}")
        f_issue((sl + 3) % 4)
        a("s_waitcnt lgkmcnt(0)")
        for m in range(2):
            for n in range(2):
                a(f"{MFMA} {v(ACC[m][n],16)}, {v(w+4*n,4)}, {v(HB[sl]+4*m,4)}, {v(ACC[m][n],16)}")
                g_ = opt("mgap", 1)
                if g_ >= 100: a(f"s_nop {g_ - 100}")
                elif g_ and not (m == 1 and n == 1): a(f"s_sleep {g_}")
    a(f"""
    s_add_u32 {s(sIt)}, {s(sIt)}, 1
    s_cmp_lt_u32 {s(sIt)}, {s(sNI)}
    s_cbranch_scc1 {FL}
    """)
    if opt("tpf", 1):
        a.c("refresh the closing code in L2 (speed only)")
        a(f"""
        s_getpc_b64 s[10:11]
        X_here:
        s_add_u32 s10, s10, M_TAIL-X_here
        s_addc_u32 s11, s11, -1
        v_lshlrev_b32 {v(vT[0])}, 7, {v(vL)}
        s_mov_b64 exec, {(1 << opt("tpfl", 28)) - 1}
        global_load_dword {v(vT[1])}, {v(vT[0])}, s[10:11]
        s_mov_b64 exec, -1
        """)
    a.c("every producer of this tile's O slots has put its markers in place")
    poll(f"s_add_u32 {s(sT0)}, {s(sLH)}, 65536", f"buffer_load_dwordx2 {v(vD,2)}, {v(vQa)}, {s(rWS,4)}, {s(sT0)} offen{SC}", 32)
    a.c("FFN2 partial a lives at 40K (a = 0) or 48K + 16K*a, as [row][chunk ^ (row&15)] fp32")
    a(f"""
    s_lshl_b32 {s(sT1)}, {s(sA)}, 14
    s_add_u32 {s(sT2)}, {s(sT1)}, 49152
    s_cmp_eq_u32 {s(sA)}, 0
    s_cselect_b32 {s(sT2)}, {BASE}, {s(sT2)}
    v_and_b32 {v(vT[0])}, 31, {v(vL)}
    v_lshrrev_b32 {v(vT[2])}, 5, {v(vL)}
    v_and_b32 {v(vT[3])}, 15, {v(vL)}
    v_xor_b32 {v(vT[2])}, {v(vT[2])}, {v(vT[3])}
    v_lshlrev_b32 {v(vT[2])}, 4, {v(vT[2])}
    v_lshl_add_u32 {v(vT[0])}, {v(vT[0])}, 8, {v(vT[2])}
    v_add_u32 {v(vT[0])}, {s(sT2)}, {v(vT[0])}
    s_mov_b32 {s(rB)}, s8
    s_mov_b32 {s(rB+1)}, s9
    s_mov_b32 {s(rB+2)}, {512*1024}
    s_lshl_b32 {s(sT0)}, {s(sA)}, 16
    s_lshl_b32 {s(sT2)}, {s(sCB)}, 7
    s_add_u32 {s(sT0)}, {s(sT0)}, {s(sT2)}
    s_lshl_b32 {s(sT1)}, {s(sA)}, 13
    v_add_u32 {v(vT[1])}, {s(sT1)}, {v(vL16)}
    """)
    a.c("Wo column block: rows 0..255 -> staging now, rows 256..511 wait in registers until the K area is free")
    for i in range(4):
        a(f"""
        s_add_u32 m0, {s(sSt)}, {i*2048}
        s_add_u32 {s(sT2)}, {s(sT0)}, {i*16384}
        buffer_load_dwordx4 {v(vWo[0])}, {s(rB,4)}, {s(sT2)} offen lds
        buffer_load_dwordx4 {v(vWo[1])}, {s(rB,4)}, {s(sT2)} offen offset:1024 lds
        s_add_u32 {s(sT2)}, {s(sT2)}, {256*1024}
        buffer_load_dwordx4 {v(HB[i],4)}, {v(vWo[0])}, {s(rB,4)}, {s(sT2)} offen
        buffer_load_dwordx4 {v(HB[i]+4,4)}, {v(vWo[1])}, {s(rB,4)}, {s(sT2)} offen offset:1024
        """)
    a("s_waitcnt vmcnt(0)")
    pf.stamp(9)
    CTR = 32768
    a(f"v_mov_b32 {v(vT[4])}, {CTR}\nv_mov_b32 {v(vT[5])}, 0\ns_setprio 3\ns_barrier")
    pf.stamp(5, "tail")
    a(f"ds_write_b32 {v(vT[4])}, {v(vT[5])}")
    for i in range(8):
        a(f"ds_write_b128 {v(vT[1])}, {v(HB[i//2]+4*(i%2),4)} offset:{i*1024}")
    a("s_waitcnt lgkmcnt(0)\ns_barrier\ns_setprio 1")
    if opt("prw", 1): a("s_barrier")
    for n in range(2):
        for gq in range(4):
            a(f"v_xor_b32 {v(vT[2 + gq%2])}, {128*n + 32*gq}, {v(vT[0])}")
            for m in range(2):
                a(f"ds_write_b128 {v(vT[2 + gq%2])}, {v(ACC[m][n]+4*gq,4)} offset:{m*8192}")
    a.c("sum of the four partials: wave a rows 16a..16a+15, lane -> row l/4, chunks 4*(l&3)..")
    a(f"""
    v_lshrrev_b32 {v(vT[0])}, 2, {v(vL)}
    v_and_b32 {v(vT[1])}, 3, {v(vL)}
    v_lshlrev_b32 {v(vT[1])}, 2, {v(vT[1])}
    v_xor_b32 {v(vT[1])}, {v(vT[1])}, {v(vT[0])}
    v_lshlrev_b32 {v(vT[1])}, 4, {v(vT[1])}
    v_lshl_add_u32 {v(vT[0])}, {v(vT[0])}, 8, {v(vT[1])}
    s_lshl_b32 {s(sT1)}, {s(sA)}, 12
    s_add_u32 {s(sT1)}, {s(sT1)}, {BASE}
    v_add_u32 {v(vT[0])}, {s(sT1)}, {v(vT[0])}
    v_xor_b32 {v(vT[1])}, 16, {v(vT[0])}
    v_xor_b32 {v(vT[2])}, 32, {v(vT[0])}
    v_xor_b32 {v(vT[3])}, 48, {v(vT[0])}
    s_waitcnt lgkmcnt(0)
    """)
    pf.stamp(6, "tail")
    SP = a.label("X_sp")
    a(f"""
    v_mov_b32 {v(vT[5])}, 1
    s_mov_b64 exec, 1
    ds_add_u32 {v(vT[4])}, {v(vT[5])}
    {SP}:
    ds_read_b32 {v(vT[5])}, {v(vT[4])}
    s_waitcnt lgkmcnt(0)
    v_cmp_ne_u32 vcc, 4, {v(vT[5])}
    s_cbranch_vccnz {SP}
    s_mov_b64 exec, -1
    """)
    Z = ACC[0][0]
    for p, off in enumerate((0, 65536 - BASE, 81920 - BASE, 98304 - BASE)):
        for i in range(4):
            a(f"ds_read_b128 {v(Z + 16*p + 4*i,4)}, {v(vT[i])} offset:{off}")
        if p == 2: a("s_waitcnt lgkmcnt(4)")
    for i in range(16): a(f"v_add_f32 {v(Z+i)}, {v(Z+i)}, {v(Z+16+i)}")
    a("s_waitcnt lgkmcnt(0)")
    for i in range(16): a(f"v_add_f32 {v(Z+32+i)}, {v(Z+32+i)}, {v(Z+48+i)}")
    for i in range(16): a(f"v_add_f32 {v(Z+i)}, {v(Z+i)}, {v(Z+32+i)}")
    for i in range(4): a(f"ds_write_b128 {v(vT[i])}, {v(Z+4*i,4)}")
    a("s_waitcnt lgkmcnt(0)\ns_barrier")
    pf.finish(vT[0], vT[1], sW)
    return V.hi

def main():
    head = open("cdna_kernels/" + NAME + ".s.ref").read().split("\n")
    hdr = [l for l in head if l.startswith(";") and "@launch" not in l and "Override launch" not in l and "grid=ceil" not in l]
    a = Asm()
    out = "\n".join(hdr) + "\n; @launch grid=(256,1,1) block=(768,1,1) lds=163840\n"
    out += '.amdgcn_target "amdgcn-amd-amdhsa--gfx950"\n.text\n'
    vh, sh = gen(a)
    print("vgpr", vh, "sgpr", sh, file=sys.stderr)
    out += a.text() + '.section .rodata,"a"\n.p2align 6\n' + kernel_desc(KNAME, vh, sh)
    args = [x for x in sys.argv[1:] if x.endswith(".s")]
    dst = args[0] if args else "cdna_kernels/" + NAME + ".s"
    open(dst, "w").write(out)

main()
```

```python
import sys, struct
from asmlib import *

NAME = "parallel_sum__softmax_full_mha__dense_activation_gelu__prompt"
KNAME = NAME + "_kernel"
def opt(name, default):
    for x in sys.argv:
        if x.startswith(name + "="): return int(x.split("=")[1], 0)
    return default
WS_BASE = opt("wsbase", 0)
WS_Q, WS_K, WS_V, WS_A3 = WS_BASE, WS_BASE + 0x200000, WS_BASE + 0x400000, WS_BASE + 0x600000
A3_STEPS = 118
A3_TSTRIDE = A3_STEPS * 1024
WS_FLAG = WS_A3 + 64 * A3_TSTRIDE
FLAG_Q, FLAG_H, FLAG_O = WS_FLAG, WS_FLAG + 65536, WS_FLAG + 131072
WS_EPOCH = WS_FLAG + 196608
WS_END = WS_EPOCH + 256
LOG2E = 1.4426950408889634
PROF = "prof" in sys.argv
WS_PROF = 0x2000000
def f32(x): return "0x%08x" % struct.unpack("<I", struct.pack("<f", x))[0]
SC = " sc1"
SCQ = {0: " sc1", 1: "", 2: " nt", 3: " sc0 sc1", 4: " sc1 nt"}[opt("scq", 0)]
SCL = " sc1" if opt("scl", 1) else ""
XNT = " nt" if opt("xnt",0) else ""
WNT = " nt" if opt("wnt",0) else ""

class Cnt:
    def __init__(self, a, name, maxv):
        self.a, self.name, self.maxv, self.q = a, name, maxv, []
    def op(self, tag, n=1):
        self.q += [tag] * n
    def wait(self, *tags):
        idx = max((i for i, t in enumerate(self.q) if t in tags), default=-1)
        if idx < 0: return
        n = len(self.q) - 1 - idx
        self.a(f"s_waitcnt {self.name}({min(n, self.maxv)})")
        self.q = self.q[idx + 1:] if n <= self.maxv else self.q[len(self.q) - self.maxv:]
    def all(self):
        self.a(f"s_waitcnt {self.name}(0)")
        self.q = []

class Prof:
    def __init__(self, a, S, n):
        self.a, self.n = a, n
        if PROF:
            self.t = [S.alloc(2, 2) for _ in range(n)]
            self.rt = [S.alloc(2, 2) for _ in range(2)]
            self.r = S.alloc(4, 4)
    def start(self):
        if PROF:
            self.a(f"s_memrealtime {s(self.rt[0],2)}")
            for t in self.t: self.a(f"s_mov_b64 {s(t,2)}, 0")
            self.stamp(0)
    def stamp(self, i, kind="std"):
        mode = "fine" if "fine" in sys.argv else ("early" if "early" in sys.argv else ("tail" if "tail" in sys.argv else ("loop" if "loop" in sys.argv else "std")))
        if PROF and "clk" in sys.argv and kind == "std" and i in (4, 6, 8, 9, 11):
            j = {4: 1, 6: 3, 8: 5, 9: 7, 11: 9}[i]
            self.a(f"s_memtime {s(self.t[j],2)}\ns_memrealtime {s(self.t[j+1],2)}")
            return
        if PROF and "clk" in sys.argv and i not in (0, self.n - 1): return
        if PROF and (kind == mode or i in (0, self.n - 1)):
            self.a(f"s_memtime {s(self.t[i],2)}")
    def finish(self, vt, vt2, wave_s):
        if not PROF: return
        a = self.a
        a("s_waitcnt vmcnt(0)")
        self.stamp(self.n - 1)
        a(f"s_memrealtime {s(self.rt[1],2)}\ns_waitcnt lgkmcnt(0)")
        a(f"s_load_dwordx2 {s(self.r,2)}, s[0:1], 80\ns_waitcnt lgkmcnt(0)")
        a(f"s_mov_b32 {s(self.r+2)}, 0x4000000\ns_mov_b32 {s(self.r+3)}, 0x00020000")
        o = self.rt[0] + 1
        a(f"s_lshl_b32 {s(o)}, s2, 4\ns_add_u32 {s(o)}, {s(o)}, {s(wave_s)}\ns_lshl_b32 {s(o)}, {s(o)}, 6\ns_add_u32 {s(o)}, {s(o)}, {WS_PROF}")
        a(f"s_mov_b64 exec, 1\nv_mov_b32 {v(vt)}, {s(o)}")
        for j, r in enumerate([self.rt[0], self.rt[1]] + self.t):
            a(f"v_mov_b32 {v(vt2)}, {s(r)}\nbuffer_store_dword {v(vt2)}, {v(vt)}, {s(self.r,4)}, 0 offen offset:{4*j}\ns_nop 1")

def srd(a, d, lo, hi, size):
    a(f"s_mov_b32 {s(d)}, {lo}\ns_mov_b32 {s(d+1)}, {hi}\ns_mov_b32 {s(d+2)}, {size}\ns_mov_b32 {s(d+3)}, 0x00020000")

MFMA = "v_mfma_f32_32x32x16_bf16"
SMF = "v_smfmac_f32_32x32x32_bf16"
RING = 65536; SLOT = 24576
ROT = 2
DPOS = opt("dpos", 8)
SEQ = [("c", k) for k in range(8)]
SEQ = SEQ[:DPOS] + [("d", 0)] + SEQ[DPOS:] + [("d", k) for k in range(1, 8)]
if DPOS >= 8: SEQ = [("c", k) for k in range(8)] + [("d", k) for k in range(8)]
LASTC = max(p for p, it in enumerate(SEQ) if it[0] == "c")
FIRSTD = min(p for p, it in enumerate(SEQ) if it[0] == "d")
def plan():
    slot, issue = {}, {}
    free = {0: -1, 1: -1, 2: -1, 3: -1}
    order = list(range(16))
    if DPOS < 8:
        order = [0, 1, 2, FIRSTD] + [p for p in range(3, 16) if p != FIRSTD]
    DE = opt("dearly", 0)
    if DPOS >= 8 and DE:
        order = list(range(8 - DE)) + [8] + list(range(8 - DE, 8)) + list(range(9, 16))
    for n, p in enumerate(order):
        sl = min(free, key=lambda k: (free[k], k))
        slot[p] = sl
        issue[p] = free[sl] if n >= opt("ninit", 2) else -2
        if issue[p] == -1: issue[p] = 0
        assert issue[p] < p, (p, issue[p])
        free[sl] = p + 1
    return slot, issue, order
SLOTOF, ISSUE, IORDER = plan()
BASE = 40960
STG = 131072
QFLAG_CHUNK = opt("qflag", 13)

def gen(a):
    S = Regs("s", 24, 102)
    kernel_header(a, KNAME)
    END = a.label("END"); AUX = a.label("AUX")
    pf = Prof(a, S, 14 if not opt("lin", 0) else 14)
    sW, sRB, sCB, sH, sR8, sT0, sT1, sT2, sT3, sIt = [S.alloc() for _ in range(10)]
    rWS = S.alloc(4, 4); rA = S.alloc(4, 4); rB = S.alloc(4, 4); rC = S.alloc(4, 4)
    rL = pf.r if PROF else S.alloc(4, 4)
    sU = [S.alloc() for _ in range(10)]
    sMask = S.alloc(2, 2); sK = S.alloc(2, 2)
    sX = [4, 5, 10, 11, 3]
    a(f"""
    s_cmp_ge_u32 s2, 256
    s_cbranch_scc1 {END}
    """)
    pf.start()
    if opt("dbgclk", 0): a("s_memtime s[96:97]\ns_memrealtime s[98:99]")
    a(f"""
    s_load_dwordx4 s[4:7], s[0:1], 0
    s_load_dwordx2 s[8:9], s[0:1], 16
    s_load_dwordx8 s[12:19], s[0:1], 32
    s_load_dwordx4 s[20:23], s[0:1], 64
    s_load_dwordx2 {s(rWS,2)}, s[0:1], 80
    v_lshrrev_b32 v1, 6, v0
    v_and_b32 v2, 63, v0
    v_readfirstlane_b32 {s(sW)}, v1
    s_and_b32 {s(sT0)}, s2, 7
    s_lshr_b32 {s(sT1)}, s2, 3
    s_and_b32 {s(sRB)}, {s(sT0)}, 3
    s_lshl_b32 {s(sRB)}, {s(sRB)}, 3
    s_and_b32 {s(sT2)}, {s(sT1)}, 7
    s_add_u32 {s(sRB)}, {s(sRB)}, {s(sT2)}
    s_and_b32 {s(sCB)}, {s(sT0)}, 4
    s_lshr_b32 {s(sT2)}, {s(sT1)}, 3
    s_add_u32 {s(sCB)}, {s(sCB)}, {s(sT2)}
    s_lshl_b32 {s(sH)}, {s(sT0)}, 2
    s_and_b32 {s(sT2)}, {s(sT1)}, 3
    s_add_u32 {s(sH)}, {s(sH)}, {s(sT2)}
    s_lshr_b32 {s(sR8)}, {s(sT1)}, 2
    s_mov_b32 {s(rWS+2)}, {WS_END}
    s_mov_b32 {s(rWS+3)}, 0x00020000
    """)
    if opt("cpf", 1):
        a.c("pull this kernel's code into L2 (speed only): every wave touches a few lines")
        NL = opt("cpfl", 160)
        a(f"""
        s_getpc_b64 s[10:11]
        s_mul_i32 {s(sT2)}, {s(sT1)}, 12
        s_add_u32 {s(sT2)}, {s(sT2)}, {s(sW)}
        s_mul_i32 {s(sT3)}, {s(sT2)}, {(65536 + NL - 1) // NL}
        s_lshr_b32 {s(sT3)}, {s(sT3)}, 16
        s_mul_i32 {s(sT3)}, {s(sT3)}, {NL}
        s_sub_u32 {s(sT2)}, {s(sT2)}, {s(sT3)}
        s_lshl_b32 {s(sT2)}, {s(sT2)}, 7
        v_mov_b32 v1, {s(sT2)}
        s_mov_b64 exec, 1
        global_load_dword v1, v1, s[10:11]
        s_mov_b64 exec, -1
        """)
    a(f"""
    s_cmp_ge_u32 {s(sW)}, 8
    s_cbranch_scc1 {AUX}
    """)
    vmax = 0
    vmax = max(vmax, gen_main(a, locals()))
    a(f"{AUX}:")
    vmax = max(vmax, gen_aux(a, locals()))
    a(f"{END}:\ns_endpgm")
    a(".fill 512, 4, 0xbf810000")
    return vmax, (102 if opt("dbgclk", 0) else S.hi)

def gen_main(a, G):
    g = lambda n: G[n]
    pf, sW, sRB, sCB, sH, sR8, sT0, sT1, sT2, sT3, sIt = [g(n) for n in "pf sW sRB sCB sH sR8 sT0 sT1 sT2 sT3 sIt".split()]
    rWS, rA, rB, rC, sU, sMask, sK, END = [g(n) for n in "rWS rA rB rC sU sMask sK END".split()]
    V = Regs("v", 3, 168)
    vL = 2
    vm = Cnt(a, "vmcnt", 63); lg = Cnt(a, "lgkmcnt", 15)
    vT = [V.alloc() for _ in range(8)]
    vBias = [V.alloc(4, 4), V.alloc(4, 4)]
    vOneB = V.alloc(4, 4)
    XA = [V.alloc() for _ in range(8)]; WA = [V.alloc(), V.alloc()]
    F = [V.alloc(12, 4) for _ in range(4)]
    ACC1 = [V.alloc(16, 4), V.alloc(16, 4)]; ACC2 = [V.alloc(16, 4), V.alloc(16, 4)]
    P = V.alloc(16, 4)
    vDum = V.alloc(4, 4)
    X = ACC1[0]
    sMT, sNH, sHI = sU[0], sU[1], sU[2]
    a.c("---------------- main waves: x rows -> LayerNorm -> xn in LDS")
    a(f"""
    v_lshrrev_b32 {v(vT[0])}, 3, {v(vL)}
    v_and_b32 {v(vT[1])}, 7, {v(vL)}
    s_lshl_b32 {s(sT0)}, {s(sRB)}, 6
    s_lshl_b32 {s(sT1)}, {s(sW)}, 3
    s_add_u32 {s(sT0)}, {s(sT0)}, {s(sT1)}
    s_lshl_b32 {s(sT0)}, {s(sT0)}, 10
    v_lshlrev_b32 {v(vT[2])}, 10, {v(vT[0])}
    v_lshl_add_u32 {v(vT[2])}, {v(vT[1])}, 4, {v(vT[2])}
    s_and_b32 {s(sMT)}, {s(sW)}, 1
    s_lshr_b32 {s(sNH)}, {s(sW)}, 1
    s_and_b32 {s(sNH)}, {s(sNH)}, 1
    s_lshr_b32 {s(sHI)}, {s(sW)}, 2
    s_mov_b32 {s(rA+2)}, {2048*1024}
    s_mov_b32 {s(rA+3)}, 0x00020000
    s_mov_b32 {s(rB+2)}, 2752
    s_mov_b32 {s(rB+3)}, 0x00020000
    """)
    pf.stamp(1, "early")
    a(f"""
    s_waitcnt lgkmcnt(0)
    s_mov_b32 {s(rA)}, s4
    s_mov_b32 {s(rA+1)}, s5
    s_mov_b32 {s(rB)}, s14
    s_mov_b32 {s(rB+1)}, s15
    """)
    if opt("tlb", 0):
        a.c("one gather that touches every buffer, so that all address translations are fetched together (speed only)")
        TA = P + 12
        a(f"v_mov_b64 {v(TA,2)}, s[4:5]")
        for i, pr in enumerate(["s[6:7]", "s[12:13]", "s[14:15]", s(rWS,2), "s[22:23]", "s[16:17]", "s[8:9]", "s[18:19]", "s[20:21]"]):
            a(f"s_mov_b64 exec, {2 << i}\nv_mov_b64 {v(TA,2)}, {pr}")
        a(f"s_mov_b64 exec, 0x3ff\nglobal_load_dword {v(vDum)}, {v(TA,2)}, off\ns_mov_b64 exec, -1"); vm.op("tlb")
    pf.stamp(2, "early")
    for i in range(8):
        a(f"buffer_load_dwordx4 {v(X+4*i,4)}, {v(vT[2])}, {s(rA,4)}, {s(sT0)} offen offset:{128*i}{XNT}"); vm.op(f"x{i}")
    pf.stamp(3, "early")
    a.c("bias fragments: column = 192cb + 64g + 32nh + l%32 (g = 0,1 for waves 0-3, g = 2 for waves 4-7); upper half-wave reads out of range -> 0")
    a(f"""
    s_mul_i32 {s(sT1)}, {s(sCB)}, 192
    s_lshl_b32 {s(sT2)}, {s(sHI)}, 7
    s_add_u32 {s(sT1)}, {s(sT1)}, {s(sT2)}
    s_lshl_b32 {s(sT2)}, {s(sNH)}, 5
    s_add_u32 {s(sU[3])}, {s(sT1)}, {s(sT2)}
    v_and_b32 {v(vT[3])}, 31, {v(vL)}
    v_and_b32 {v(vT[4])}, 32, {v(vL)}
    v_lshl_add_u32 {v(vT[4])}, {v(vT[4])}, 16, {v(vT[3])}
    v_add_u32 {v(vT[4])}, {s(sU[3])}, {v(vT[4])}
    v_lshlrev_b32 {v(vT[4])}, 1, {v(vT[4])}
    buffer_load_ushort {v(vBias[0])}, {v(vT[4])}, {s(rB,4)}, 0 offen
    buffer_load_ushort {v(vBias[1])}, {v(vT[4])}, {s(rB,4)}, 0 offen offset:128
    """)
    vm.op("b", 2)
    pf.stamp(4, "early")
    if opt("bx", 1): a("s_barrier")
    pf.stamp(5, "early")
    sColF = sU[3]
    a.c("LDS addresses for the GEMM phases")
    a(f"""
    v_lshrrev_b32 {v(vT[4])}, 5, {v(vL)}
    v_and_b32 {v(vT[5])}, 15, {v(vL)}
    v_xor_b32 {v(vT[6])}, {v(vT[5])}, {v(vT[4])}
    s_lshl_b32 {s(sT1)}, {s(sMT)}, 15
    v_lshl_add_u32 {v(vT[7])}, {v(vT[3])}, 10, {s(sT1)}
    v_lshl_add_u32 {v(XA[0])}, {v(vT[6])}, 4, {v(vT[7])}
    """)
    for q in range(1, 4 if ROT else 8):
        a(f"v_xor_b32 {v(XA[q])}, {32*q}, {v(XA[0])}")
    sKc = sU[9]
    if ROT:
        a.c("k-chunks are visited in an order rotated by workgroup, so that neighbours fetch different weight rows first")
        a(f"s_and_b32 {s(sKc)}, {s(sRB)}, 7\ns_lshl_b32 {s(sKc)}, {s(sKc)}, 7")
    a(f"""
    v_lshrrev_b32 {v(vT[5])}, 2, {v(vT[5])}
    v_lshl_add_u32 {v(vT[5])}, {v(vT[4])}, 3, {v(vT[5])}
    v_lshlrev_b32 {v(vT[5])}, 7, {v(vT[5])}
    v_and_b32 {v(vT[6])}, 1, {v(vT[0])}
    v_xor_b32 {v(vT[6])}, {s(sNH)}, {v(vT[6])}
    v_lshl_add_u32 {v(vT[5])}, {v(vT[6])}, 6, {v(vT[5])}
    v_bfe_u32 {v(vT[6])}, {v(vL)}, 4, 1
    v_lshl_add_u32 {v(vT[5])}, {v(vT[6])}, 5, {v(vT[5])}
    v_and_b32 {v(vT[6])}, 3, {v(vL)}
    v_lshl_add_u32 {v(vT[5])}, {v(vT[6])}, 3, {v(vT[5])}
    s_lshl_b32 {s(sT1)}, {s(sHI)}, 14
    s_add_u32 {s(sT1)}, {s(sT1)}, {RING}
    v_add_u32 {v(WA[0])}, {s(sT1)}, {v(vT[5])}
    v_add_u32 {v(WA[1])}, {2*SLOT}, {v(WA[0])}
    v_mov_b32 {v(vOneB)}, 0x3f80
    """)
    for r in (vBias[0], vBias[1], vOneB):
        for i in range(1, 4): a(f"v_mov_b32 {v(r+i)}, 0")
    a.c("xn write addresses: row = 8w + l/8")
    vWr = [vT[3], vT[4]]; vS = [F[0], F[0]+1, F[0]+2, F[0]+3]; vOnes = vT[5]; RN = F[0] + 4
    a(f"""
    s_lshl_b32 {s(sT1)}, {s(sW)}, 3
    v_add_u32 {v(vT[6])}, {s(sT1)}, {v(vT[0])}
    v_and_b32 {v(vT[7])}, 15, {v(vT[6])}
    v_xor_b32 {v(vT[7])}, {v(vT[7])}, {v(vT[1])}
    v_lshlrev_b32 {v(vT[7])}, 4, {v(vT[7])}
    v_lshl_add_u32 {v(vWr[0])}, {v(vT[6])}, 10, {v(vT[7])}
    v_xor_b32 {v(vWr[1])}, 128, {v(vWr[0])}
    v_mov_b32 {v(vOnes)}, 0x3f803f80
    """)
    for i in range(4): a(f"v_mov_b32 {v(vS[i])}, 0")
    pf.stamp(1); pf.stamp(6, "early")
    for i in range(8):
        vm.wait(f"x{i}")
        if i == 0: pf.stamp(7, "early")
        if i == 7: pf.stamp(8, "early")
        for d in range(4):
            r = X + 4*i + d
            a(f"v_dot2_f32_bf16 {v(vS[d%2])}, {v(r)}, {v(vOnes)}, {v(vS[d%2])}")
            a(f"v_dot2_f32_bf16 {v(vS[2+d%2])}, {v(r)}, {v(r)}, {v(vS[2+d%2])}")
    pf.stamp(2)
    a(f"""
    s_nop 2
    v_add_f32 {v(vS[0])}, {v(vS[0])}, {v(vS[1])}
    v_add_f32 {v(vS[2])}, {v(vS[2])}, {v(vS[3])}
    """)
    for m in ("quad_perm:[1,0,3,2]", "quad_perm:[2,3,0,1]", "row_half_mirror"):
        a(f"""
        s_nop 1
        v_add_f32_dpp {v(vS[0])}, {v(vS[0])}, {v(vS[0])} {m} row_mask:0xf bank_mask:0xf
        v_add_f32_dpp {v(vS[2])}, {v(vS[2])}, {v(vS[2])} {m} row_mask:0xf bank_mask:0xf
        """)
    vMean, vVar = vS[0], vS[2]
    a(f"""
    v_mul_f32 {v(vMean)}, {f32(1/512)}, {v(vMean)}
    v_mul_f32 {v(vVar)}, {f32(1/512)}, {v(vVar)}
    v_fma_f32 {v(vVar)}, -{v(vMean)}, {v(vMean)}, {v(vVar)}
    v_max_f32 {v(vVar)}, 0, {v(vVar)}
    v_cvt_pk_bf16_f32 {v(vMean)}, -{v(vMean)}, {v(vVar)}
    v_and_b32 {v(vVar)}, 0xffff0000, {v(vMean)}
    v_add_f32 {v(vVar)}, {f32(1e-5)}, {v(vVar)}
    v_cvt_pk_bf16_f32 {v(vVar)}, {v(vVar)}, {v(vVar)}
    v_and_b32 {v(vVar)}, 0xffff0000, {v(vVar)}
    v_sqrt_f32 {v(vVar)}, {v(vVar)}
    v_lshlrev_b32 {v(vMean)}, 16, {v(vMean)}
    v_cvt_pk_bf16_f32 {v(vVar)}, {v(vVar)}, {v(vVar)}
    v_and_b32 {v(vVar)}, 0xffff0000, {v(vVar)}
    v_rcp_f32 {v(RN)}, {v(vVar)}
    s_nop 0
    v_mul_f32 {v(RN+1)}, {v(vMean)}, {v(RN)}
    """)
    TT = F[1]
    for i in range(8):
        for d in range(4):
            r = X + 4*i + d
            a(f"v_lshlrev_b32 {v(TT+2*d)}, 16, {v(r)}\nv_and_b32 {v(TT+2*d+1)}, 0xffff0000, {v(r)}")
        for d in range(4):
            a(f"v_pk_fma_f32 {v(TT+2*d,2)}, {v(TT+2*d,2)}, {v(RN,2)}, {v(RN,2)} op_sel:[0,0,1] op_sel_hi:[1,0,1]")
        for d in range(4):
            a(f"v_cvt_pk_bf16_f32 {v(X+4*i+d)}, {v(TT+2*d)}, {v(TT+2*d+1)}")
        a(f"ds_write_b128 {v(vWr[i%2])}, {v(X+4*i,4)} offset:{(i//2)*256}"); lg.op("w")
    vm.wait("b")
    lg.all()
    pf.stamp(3); pf.stamp(9, "early")
    WFq = [XA[0], XA[4], WA[0]] + list(range(F[0] + 16, ACC1[0], 4)) + [P, P + 4, P + 8, P + 12, vDum]
    assert len(WFq) == 16 and WA[0] % 4 == 0 and vDum % 4 == 0, WFq
    vXr, vB2 = vBias[0], vBias[1]
    vOa, vWa, vWp, vRp, vLp = vOneB, vOneB + 1, vOneB + 2, vOneB + 3, 1
    aK, aV1, aVb = ACC1[0] + 4, ACC1[0] + 8, ACC1[0] + 12
    sMf, sKq, sOsrc, sOsrc2, sOdst = G["sX"]
    tA, tB = vT[6], vT[7]
    SETUP = f"""
    s_mov_b32 {s(rB)}, s18
    s_mov_b32 {s(rB+1)}, s19
    s_mov_b32 {s(rB+2)}, 1024
    v_lshrrev_b32 {v(tA)}, 3, v0
    s_lshl_b32 {s(sT0)}, {s(sRB)}, 6
    v_add_u32 {v(vOa)}, {s(sT0)}, {v(tA)}
    v_and_b32 {v(tB)}, 7, v0
    s_lshl_b32 {s(sT0)}, {s(sCB)}, 7
    v_lshl_add_u32 {v(vRp)}, {v(tB)}, 4, {s(sT0)}
    v_lshl_add_u32 {v(vOa)}, {v(vOa)}, 10, {v(vRp)}
    v_mov_b32 {v(vB2)}, {v(vRp)}
    v_lshlrev_b32 {v(vRp)}, 1, {v(tB)}
    v_and_b32 {v(tB)}, 15, {v(tA)}
    v_xor_b32 {v(vRp)}, {v(vRp)}, {v(tB)}
    v_lshlrev_b32 {v(vRp)}, 4, {v(vRp)}
    v_lshl_add_u32 {v(vRp)}, {v(tA)}, 8, {v(vRp)}
    s_and_b32 {s(sMf)}, {s(sW)}, 1
    s_lshr_b32 {s(sKq)}, {s(sW)}, 1
    s_lshl_b32 {s(sT0)}, {s(sRB)}, 1
    s_add_u32 {s(sT0)}, {s(sT0)}, {s(sMf)}
    s_mul_i32 {s(sOsrc)}, {s(sT0)}, {A3_TSTRIDE}
    s_lshl_b32 {s(sT0)}, {s(sKq)}, 13
    s_add_u32 {s(sOsrc)}, {s(sOsrc)}, {s(sT0)}
    s_add_u32 {s(sOsrc)}, {s(sOsrc)}, {WS_A3}
    s_add_u32 {s(sOsrc2)}, {s(sOsrc)}, 4096
    s_lshl_b32 {s(sT0)}, {s(sR8)}, 3
    s_add_u32 {s(sT0)}, {s(sT0)}, {s(sW)}
    s_mul_i32 {s(sT0)}, {s(sT0)}, {A3_TSTRIDE}
    s_lshl_b32 {s(sT1)}, {s(sH)}, 10
    s_add_u32 {s(sT0)}, {s(sT0)}, {s(sT1)}
    s_add_u32 {s(sOdst)}, {s(sT0)}, {WS_A3}
    v_lshlrev_b32 {v(vLp)}, 10, {v(vL)}
    v_add_u32 {v(vLp)}, 1020, {v(vLp)}
    v_lshrrev_b32 {v(tA)}, 5, {v(vL)}
    v_bfe_u32 {v(vWa)}, {v(vL)}, 2, 2
    v_lshl_add_u32 {v(vWa)}, {v(tA)}, 2, {v(vWa)}
    v_lshlrev_b32 {v(vWa)}, 7, {v(vWa)}
    v_bfe_u32 {v(tB)}, {v(vL)}, 3, 1
    v_lshl_add_u32 {v(vWa)}, {v(tB)}, 6, {v(vWa)}
    v_bfe_u32 {v(tB)}, {v(vL)}, 4, 1
    v_lshl_add_u32 {v(vWa)}, {v(tB)}, 5, {v(vWa)}
    v_and_b32 {v(tB)}, 3, {v(vL)}
    v_lshl_add_u32 {v(vWa)}, {v(tB)}, 3, {v(vWa)}
    s_and_b32 {s(sT1)}, {s(sKq)}, 1
    s_lshl_b32 {s(sT1)}, {s(sT1)}, 14
    s_add_u32 {s(sT0)}, {s(sT1)}, {STG}
    s_cmp_lt_u32 {s(sKq)}, 2
    s_cselect_b32 {s(sT1)}, {s(sT0)}, {s(sT1)}
    v_add_u32 {v(vWa)}, {s(sT1)}, {v(vWa)}
    v_and_b32 {v(vWp)}, 31, {v(vL)}
    s_lshl_b32 {s(sT0)}, {s(sMf)}, 5
    v_add_u32 {v(vWp)}, {s(sT0)}, {v(vWp)}
    v_and_b32 {v(tB)}, 15, {v(vWp)}
    v_xor_b32 {v(tB)}, {v(tA)}, {v(tB)}
    v_lshlrev_b32 {v(tB)}, 4, {v(tB)}
    v_lshl_add_u32 {v(vWp)}, {v(vWp)}, 8, {v(tB)}
    v_add_u32 {v(vWp)}, {s(sT1)}, {v(vWp)}
    s_mov_b32 {s(rC)}, s20
    s_mov_b32 {s(rC+1)}, s21
    s_mov_b32 {s(rC+2)}, {2048*1024}
    s_mov_b32 {s(rC+3)}, 0x00020000
    v_mov_b32 {v(vT[3])}, 0xdddddddd
    s_mov_b32 {s(sMask)}, 0x0000ffff
    s_mov_b32 {s(sMask+1)}, 0x0000ffff
    v_and_b32 {v(tB)}, 15, {v(vL)}
    v_lshlrev_b32 {v(tA)}, 8, {v(tA)}
    v_lshl_add_u32 {v(tA)}, {v(tB)}, 4, {v(tA)}
    v_add_u32 {v(vT[4])}, 65536, {v(tA)}
    v_and_b32 {v(tB)}, 27, {v(vL)}
    v_cmp_eq_u32 vcc, 16, {v(tB)}
    v_mov_b32 {v(tA)}, 0x3f803f80
    s_lshl_b32 {s(sT0)}, {s(sW)}, 10
    s_add_u32 {s(sT0)}, {s(sT0)}, {STG}
    v_cndmask_b32 {v(tA)}, 0, {v(tA)}, vcc
    v_add_u32 {v(vT[5])}, {s(sT0)}, {v(vT[0])}
    """.strip().split("\n")
    for i in range(4): SETUP += [f"v_mov_b32 {v(aV1+i)}, {v(tA)}", f"v_mov_b32 {v(aVb+i)}, {v(tA)}", f"v_mov_b32 {v(aK+i)}, 0"]
    HI = a.label("M_HI"); JOIN = a.label("M_JOIN")
    a(f"s_cmp_eq_u32 {s(sHI)}, 1\ns_cbranch_scc1 {HI}")
    state = (list(vm.q), list(lg.q))
    def gemm(hi):
        vm.q, lg.q = list(state[0]), list(state[1])
        ng = 1 if hi else 2
        def xread(c, st):
            sx = sT3 if c % 2 else sT2
            if st == 0: a(f"s_add_u32 {s(sx)}, {s(sKc)}, {SEQ[c][1] << 7}\ns_and_b32 {s(sx)}, {s(sx)}, 0x380")
            a(f"v_xor_b32 {v(XA[4+st])}, {s(sx)}, {v(XA[st])}")
            if hi and opt("noxhi", 0): return
            a(f"ds_read_b128 {v(F[st],4)}, {v(XA[4+st])}"); lg.op(("x", c, st))
        def wread(c, st):
            sl = SLOTOF[c]
            for gi in range(ng):
                for j in range(2):
                    off = (sl & 1) * SLOT + gi * 8192 + st * 2048 + j * 512
                    a(f"ds_read_b64_tr_b16 {v(F[st]+4+4*gi+2*j,2)}, {v(WA[sl >> 1])} offset:{off}"); lg.op(("w", c, st))
        def mf(c, st):
            lg.wait(("x", c, st), ("w", c, st))
            isq = SEQ[c][0] == "c"
            acc = ACC1 if isq else ACC2
            for gi in range(ng):
                w, x = v(F[st]+4+4*gi,4), v(F[st],4)
                cin = "0" if (c == 0 and st == 0) else v(acc[gi],16)
                if hi and isq: a(f"{MFMA} {v(acc[gi],16)}, {x}, {w}, {cin}")
                else: a(f"{MFMA} {v(acc[gi],16)}, {w}, {x}, {cin}")
        def qkv_epilogue(part):
            sTT, sO = sU[4], sU[5]
            if part == 0:
                a(f"""
                s_lshl_b32 {s(sTT)}, {s(sRB)}, 1
                s_add_u32 {s(sTT)}, {s(sTT)}, {s(sMT)}
                s_lshl_b32 {s(sO)}, {s(sCB)}, 1
                s_add_u32 {s(sO)}, {s(sO)}, {s(sNH)}
                s_lshl_b32 {s(sO)}, {s(sO)}, 17
                s_lshl_b32 {s(sT0)}, {s(sTT)}, 10
                s_add_u32 {s(sO)}, {s(sO)}, {s(sT0)}
                s_add_u32 {s(sO)}, {s(sO)}, {WS_Q}
                """)
                if not hi:
                    a(f"""
                    v_lshlrev_b32 {v(vT[0])}, 4, {v(vL)}
                    v_lshrrev_b32 {v(vT[1])}, 1, {v(vL)}
                    v_xor_b32 {v(vT[1])}, {v(vT[1])}, {v(vL)}
                    v_and_b32 {v(vT[1])}, 4, {v(vT[1])}
                    v_mul_u32_u24 {v(vT[1])}, 3, {v(vT[1])}
                    v_xor_b32 {v(vT[1])}, {v(vT[1])}, {v(vL)}
                    v_lshlrev_b32 {v(vT[1])}, 4, {v(vT[1])}
                    s_add_u32 {s(sU[6])}, {s(sO)}, 65536
                    s_add_u32 {s(sU[7])}, {s(sO)}, {WS_K - WS_Q}
                    s_add_u32 {s(sU[8])}, {s(sO)}, {WS_K - WS_Q + 65536}
                    """)
                else:
                    a(f"""
                    v_lshlrev_b32 {v(vT[0])}, 4, {v(vL)}
                    v_bfe_u32 {v(vT[1])}, {v(vL)}, 4, 1
                    v_lshlrev_b32 {v(vT[1])}, 16, {v(vT[1])}
                    v_and_b32 {v(vT[2])}, 15, {v(vL)}
                    v_lshl_add_u32 {v(vT[1])}, {v(vT[2])}, 4, {v(vT[1])}
                    v_lshrrev_b32 {v(vT[2])}, 5, {v(vL)}
                    v_lshl_add_u32 {v(vT[1])}, {v(vT[2])}, 8, {v(vT[1])}
                    s_add_u32 {s(sU[7])}, {s(sO)}, {WS_V - WS_Q}
                    """)
            elif hi:
                if part == 1:
                    for i in range(8): a(f"v_cvt_pk_bf16_f32 {v(P+i)}, {v(ACC1[0]+2*i)}, {v(ACC1[0]+2*i+1)}")
            elif part == 1:
                for i in range(8): a(f"v_cvt_pk_bf16_f32 {v(P+8+i)}, {v(ACC1[1]+2*i)}, {v(ACC1[1]+2*i+1)}")
            else:
                for i in range(16): a(f"v_mul_f32 {v(ACC1[0]+i)}, {f32(0.25*LOG2E)}, {v(ACC1[0]+i)}")
                for i in range(8): a(f"v_cvt_pk_bf16_f32 {v(P+i)}, {v(ACC1[0]+2*i)}, {v(ACC1[0]+2*i+1)}")
        def qkv_store(k):
            sO = sU[5]
            if hi:
                t = {0: f"buffer_store_dwordx4 {v(P,4)}, {v(vT[1])}, {s(rWS,4)}, {s(sU[7])} offen{SCQ}",
                     1: f"buffer_store_dwordx4 {v(P+4,4)}, {v(vT[1])}, {s(rWS,4)}, {s(sU[7])} offen offset:512{SCQ}"}[k]
            else:
                t = {0: f"buffer_store_dwordx4 {v(P+8,4)}, {v(vT[1])}, {s(rWS,4)}, {s(sU[7])} offen{SCQ}",
                     1: f"buffer_store_dwordx4 {v(P+12,4)}, {v(vT[1])}, {s(rWS,4)}, {s(sU[8])} offen{SCQ}",
                     2: f"buffer_store_dwordx4 {v(P,4)}, {v(vT[0])}, {s(rWS,4)}, {s(sO)} offen{SCQ}",
                     3: f"buffer_store_dwordx4 {v(P+4,4)}, {v(vT[0])}, {s(rWS,4)}, {s(sU[6])} offen{SCQ}"}[k]
            a(t); vm.op("st")
        ss = opt("ssched", 3)
        E = LASTC + 1
        todo = list(SETUP)
        def filler(c):
            if c <= E: return
            n = 7; hold = False
            while todo and (n > 0 or hold):
                l = todo.pop(0); a(l)
                if "v_cmp" in l: hold = True
                if "v_cndmask" in l: hold = False
                if "buffer_load" in l: vm.op("xb")
                if l.strip().startswith("v_") or l.strip().startswith("buffer"): n -= 1
        if ss == 0: stsched = {E: [0, 1]} if hi else {E: [0, 1, 2, 3]}
        if ss == 1: stsched = {E+2: [0], E+3: [1]} if hi else {E: [0], E+1: [1], E+4: [2], E+5: [3]}
        if ss == 2: stsched = {E+1: [0], E+3: [1]} if hi else {E: [0], E+1: [1], E+2: [2], E+3: [3]}
        if ss == 3: stsched = {E: [0], E+1: [1]} if hi else {E: [0, 1], E+1: [2, 3]}
        if ss == 4: stsched = {E+1: [0], E+2: [1]} if hi else {E: [0], E+1: [1], E+2: [2], E+3: [3]}
        for c in range(16):
            if c == QFLAG_CHUNK: vm.all()
            a("s_barrier")
            if c == QFLAG_CHUNK and not hi:
                nf, ok, pl = a.label("M_noflag"), a.label("M_tokok"), a.label("M_tokpoll")
                a.c("wave 0 publishes Q/K/V: this launch's tag into each of the 32 consumers' flag rows")
                a(f"""
                s_cmp_lg_u32 {s(sW)}, 0
                s_cbranch_scc1 {nf}
                s_mov_b32 {s(sIt)}, 0
                {pl}:
                v_cmp_eq_u32 vcc, 0, {v(vDum)}
                s_cbranch_vccz {ok}
                s_sleep 2
                v_mov_b32 {v(vDum+2)}, 0
                global_load_dwordx2 {v(vDum,2)}, {v(vDum+2)}, s[22:23]{SC}
                s_add_u32 {s(sIt)}, {s(sIt)}, 1
                s_waitcnt vmcnt(0)
                s_cmp_lt_u32 {s(sIt)}, 0x20000
                s_cbranch_scc1 {pl}
                {ok}:
                s_lshl_b32 {s(sU[6])}, {s(sCB)}, 13
                s_lshl_b32 {s(sU[7])}, {s(sRB)}, 3
                s_add_u32 {s(sU[6])}, {s(sU[6])}, {s(sU[7])}
                s_add_u32 {s(sU[6])}, {s(sU[6])}, {FLAG_Q}
                v_lshlrev_b32 {v(vDum+2)}, 8, {v(vL)}
                s_mov_b32 exec_hi, 0
                buffer_store_dwordx2 {v(vDum,2)}, {v(vDum+2)}, {s(rWS,4)}, {s(sU[6])} offen{SC}
                s_mov_b64 exec, -1
                {nf}:
                """)
            if c == 8 and not hi:
                nf = a.label("M_notokld")
                a(f"""
                s_cmp_lg_u32 {s(sW)}, 0
                s_cbranch_scc1 {nf}
                v_mov_b32 {v(vDum+2)}, 0
                global_load_dwordx2 {v(vDum,2)}, {v(vDum+2)}, s[22:23]{SC}
                {nf}:
                """)
            if c == 0:
                pf.stamp(4); pf.stamp(10, "early")
                xread(0, 0); xread(0, 1)
            if c == E: pf.stamp(5)
            if c >= 5: pf.stamp(c - 4, "fine")
            wread(c, 0); wread(c, 1)
            if c > 0: mf(c - 1, 3)
            if c == E - 1: qkv_epilogue(0)
            if c == FIRSTD:
                for gi in range(ng):
                    a(f"{MFMA} {v(ACC2[gi],16)}, {v(vBias[gi],4)}, {v(vOneB,4)}, 0")
            mf(c, 0)
            xread(c, 2); wread(c, 2)
            filler(c)
            mf(c, 1)
            xread(c, 3); wread(c, 3)
            filler(c)
            if c == E:
                if hi: a("s_nop 3")
                qkv_epilogue(1)
            if c < 15: xread(c + 1, 0); xread(c + 1, 1)
            mf(c, 2)
            if c == E: qkv_epilogue(2)
            for k in stsched.get(c, []): qkv_store(k)
            lg.wait(("w", c, 3))
        assert not todo, len(todo)
        a("s_barrier")
        pf.stamp(6); pf.stamp(12, "fine")
        mf(15, 3)
        c1 = -2 * 0.7978845608028654 * LOG2E
        c2 = c1 * 0.044715
        CC = F[0]; T = F[1]
        a(f"""
        v_mov_b32 {v(CC)}, {f32(c2)}
        v_mov_b32 {v(CC+1)}, {f32(c1)}
        s_mul_i32 {s(sT1)}, {s(sMT)}, 12288
        s_lshl_b32 {s(sT0)}, {s(sNH)}, 11
        s_add_u32 {s(sT0)}, {s(sT0)}, {s(sT1)}
        s_add_u32 {s(sT0)}, {s(sT0)}, {STG + 8192 + (8192 if hi else 0)}
        v_add_u32 {v(vT[2])}, {s(sT0)}, {v(vT[0])}
        s_nop 6
        """)
        for gi in range(ng):
            skip = a.label("M_skip")
            A_ = ACC2[gi]; Pg = P + 8*gi
            a(f"s_add_u32 {s(sT1)}, {s(sColF)}, {64*gi}\ns_cmp_ge_u32 {s(sT1)}, 1376\ns_cbranch_scc1 {skip}")
            for i in range(0, 16, 2): a(f"v_pk_mul_f32 {v(T+i,2)}, {v(A_+i,2)}, {v(A_+i,2)}")
            for i in range(0, 16, 2): a(f"v_pk_fma_f32 {v(T+i,2)}, {v(T+i,2)}, {v(CC,2)}, {v(CC,2)} op_sel:[0,0,1] op_sel_hi:[1,0,1]")
            for i in range(0, 16, 2): a(f"v_pk_mul_f32 {v(T+i,2)}, {v(T+i,2)}, {v(A_+i,2)}")
            for i in range(16): a(f"v_exp_f32 {v(T+i)}, {v(T+i)}")
            for i in range(0, 16, 2): a(f"v_pk_add_f32 {v(T+i,2)}, {v(T+i,2)}, 1.0 op_sel_hi:[1,0]")
            for i in range(16): a(f"v_rcp_f32 {v(T+i)}, {v(T+i)}")
            for i in range(0, 16, 2): a(f"v_pk_mul_f32 {v(T+i,2)}, {v(T+i,2)}, {v(A_+i,2)}")
            for i in range(8): a(f"v_cvt_pk_bf16_f32 {v(Pg+i)}, {v(T+2*i)}, {v(T+2*i+1)}")
            a(f"ds_write_b128 {v(vT[2])}, {v(Pg,4)} offset:{4096*gi}")
            a(f"ds_write_b128 {v(vT[2])}, {v(Pg+4,4)} offset:{4096*gi + 1024}")
            a(f"{skip}:")
    gemm(False)
    a(f"s_branch {JOIN}\n{HI}:")
    gemm(True)
    a(f"{JOIN}:")
    vm.q = []; lg.q = []
    pf.stamp(7)
    a("s_waitcnt lgkmcnt(0)")
    V2 = Regs("v", 3, 168)
    vL16 = V2.alloc(); vKa = V2.alloc(); vVa = V2.alloc(); vIdx = V2.alloc(); vVb = V2.alloc(); t = [V2.alloc() for _ in range(3)]
    assert vL16 == vT[0]
    V2.n = P + 16
    V2.n = ACC1[0]
    Q = V2.alloc(4, 4); K = V2.alloc(4, 4); V1 = V2.alloc(4, 4); Vb = V2.alloc(4, 4)
    C = V2.alloc(16, 4)
    SB = [ACC2[0], ACC2[1]]; O = F[0]
    assert V2.n <= ACC2[0] and F[0] + 16 <= ACC1[0]
    sBar, sPass, sTT = sU[0], sU[1], sU[2]
    a.c("---------------- attention: head h, q tile 8*r8 + w")
    assert (K, V1, Vb, vIdx, vVb, t[0]) == (aK, aV1, aVb, vT[3], vT[4], vT[5])
    a(f"""
    {MFMA} {v(O,16)}, {v(K,4)}, {v(K,4)}, 0
    {MFMA} {v(SB[1],16)}, {v(K,4)}, {v(K,4)}, 0
    v_mov_b32 {v(vKa)}, {v(vL16)}
    v_mov_b32 {v(vVa)}, {v(vVb)}
    s_mov_b32 {s(sIt)}, 0
    s_mov_b32 {s(sBar)}, 3
    """)
    a("s_waitcnt lgkmcnt(0)\ns_barrier")
    pf.stamp(8); pf.stamp(1, "loop")
    a(f"""
    ds_read_b128 {v(Q,4)}, {v(t[0])}
    ds_read_b128 {v(K,4)}, {v(vL16)}
    s_mov_b64 exec, {s(sMask,2)}
    ds_read_b128 {v(Vb,4)}, {v(vVa)}
    s_mov_b64 exec, -1
    s_waitcnt lgkmcnt(1)
    {MFMA} {v(SB[0],16)}, {v(K,4)}, {v(Q,4)}, 0
    s_nop 11
    """)
    def rowmax(src, dst, first):
        k = 0
        if first:
            a(f"v_max3_f32 {v(dst)}, {v(src)}, {v(src+1)}, {v(src+2)}"); k = 3
        while k < 16:
            if k + 1 < 16:
                a(f"v_max3_f32 {v(dst)}, {v(dst)}, {v(src+k)}, {v(src+k+1)}"); k += 2
            else:
                a(f"v_max_f32 {v(dst)}, {v(dst)}, {v(src+k)}"); k += 1
    LOOP = a.label("AT_LOOP"); nob = a.label("AT_nob"); DONE = a.label("AT_DONE")
    a(f"v_max3_f32 {v(t[0])}, {v(SB[0])}, {v(SB[0]+1)}, {v(SB[0]+2)}\nv_max3_f32 {v(t[1])}, {v(SB[0]+3)}, {v(SB[0]+4)}, {v(SB[0]+5)}")
    for k in range(6, 14, 4):
        a(f"v_max3_f32 {v(t[0])}, {v(t[0])}, {v(SB[0]+k)}, {v(SB[0]+k+1)}\nv_max3_f32 {v(t[1])}, {v(t[1])}, {v(SB[0]+k+2)}, {v(SB[0]+k+3)}")
    a(f"""
    v_max3_f32 {v(t[0])}, {v(t[0])}, {v(SB[0]+14)}, {v(SB[0]+15)}
    v_max_f32 {v(t[0])}, {v(t[0])}, {v(t[1])}
    v_mov_b32 {v(t[1])}, {v(t[0])}
    s_nop 1
    v_permlane32_swap_b32 {v(t[0])}, {v(t[1])}
    s_nop 0
    v_max_f32 {v(C)}, -{v(t[0])}, -{v(t[1])}
    """.replace("v_max_f32 " + v(C), "v_min_f32 " + v(C)))
    a(f"v_mov_b32 {v(C+1)}, {v(C)}")
    for i in range(2, 16, 2): a(f"v_pk_mov_b32 {v(C+i,2)}, {v(C,2)}, {v(C,2)}")
    a(f"""
    s_nop 1
    {MFMA} {v(SB[0],16)}, {v(K,4)}, {v(Q,4)}, {v(C,16)}
    ds_read_b128 {v(K,4)}, {v(vKa)} offset:1024
    s_mov_b64 exec, {s(sMask,2)}
    ds_read_b128 {v(V1,4)}, {v(vVa)}
    s_mov_b64 exec, -1
    s_nop 4
    """)
    pf.stamp(2, "loop")
    a(f"""
    .p2align 3
    {LOOP}:
    s_cmp_eq_u32 {s(sIt)}, {s(sBar)}
    s_cbranch_scc1 {nob}B
    {nob}:
    """)
    U = opt("U", 4)
    for k in range(U):
        cur, oth = SB[k % 2], SB[(k + 1) % 2]
        e = lambda i: a(f"v_exp_f32 {v(cur+i)}, {v(cur+i)}")
        a(f"s_setprio {3 - k % 4}")
        e(0); e(1)
        a(f"s_waitcnt lgkmcnt(2)\n{SMF} {v(O,16)}, {v(Vb,4)}, {v(oth+8,8)}, {v(vIdx)}")
        a(f"s_mov_b64 exec, {s(sMask,2)}\nds_read_b128 {v(Vb,4)}, {v(vVa)} offset:{k*1024 + 512}\ns_mov_b64 exec, -1")
        e(2); e(3); e(4); e(5)
        a(f"s_waitcnt lgkmcnt(2)\n{MFMA} {v(oth,16)}, {v(K,4)}, {v(Q,4)}, {v(C,16)}")
        a(f"ds_read_b128 {v(K,4)}, {v(vKa)} offset:{(k+2)*1024}")
        e(6); e(7); e(8); e(9); e(10)
        a(f"s_waitcnt lgkmcnt(2)\n{SMF} {v(O,16)}, {v(V1,4)}, {v(cur,8)}, {v(vIdx)}")
        a(f"s_mov_b64 exec, {s(sMask,2)}\nds_read_b128 {v(V1,4)}, {v(vVa)} offset:{(k+1)*1024}\ns_mov_b64 exec, -1")
        e(11); e(12); e(13)
        if k == U - 1 and PROF and "loop" in sys.argv:
            for it, sl in ((0, 5), (5, 6), (8, 7), (11, 8), (14, 9)):
                lb = a.label("PL")
                a(f"s_cmp_lg_u32 {s(sIt)}, {it}\ns_cbranch_scc1 {lb}")
                pf.stamp(sl, "loop")
                a(f"{lb}:")
        if k == U - 1:
            a(f"v_add_u32 {v(vKa)}, {U*1024}, {v(vKa)}\nv_add_u32 {v(vVa)}, {U*1024}, {v(vVa)}")
            a(f"s_add_u32 {s(sIt)}, {s(sIt)}, 1\ns_cmp_lt_u32 {s(sIt)}, {64//U}")
        e(14); e(15)
    a(f"""
    s_cbranch_scc1 {LOOP}
    M_TAIL:
    """)
    pf.stamp(10, "loop")
    a(f"""
    s_waitcnt lgkmcnt(0)
    s_setprio 3
    {SMF} {v(O,16)}, {v(Vb,4)}, {v(SB[1]+8,8)}, {v(vIdx)}
    s_mov_b32 {s(sT0)}, {f32(2.0**60)}
    s_mov_b32 {s(sT1)}, {f32(2.0**120)}
    s_barrier
    s_nop 8
    """)
    a.c("the stand-in max was the max over the first key tile: check nothing overflowed, otherwise redo with the true row max")
    a(f"""
    v_max3_f32 {v(t[0])}, |{v(O)}|, |{v(O+1)}|, |{v(O+2)}|
    v_add_f32 {v(t[1])}, {v(O)}, {v(O+1)}
    v_add_f32 {v(t[2])}, {v(O+2)}, {v(O+3)}
    v_max3_f32 {v(t[0])}, {v(t[0])}, |{v(O+3)}|, |{v(O+4)}|
    v_add_f32 {v(t[1])}, {v(t[1])}, {v(O+4)}
    v_add_f32 {v(t[2])}, {v(t[2])}, {v(O+5)}
    v_max3_f32 {v(t[0])}, {v(t[0])}, |{v(O+5)}|, |{v(O+6)}|
    v_add_f32 {v(t[1])}, {v(t[1])}, {v(O+6)}
    v_add_f32 {v(t[2])}, {v(t[2])}, {v(O+7)}
    v_max_f32 {v(t[0])}, {v(t[0])}, |{v(O+7)}|
    v_add_f32 {v(t[1])}, {v(t[1])}, {v(t[2])}
    v_cmp_nlt_f32 vcc, {v(O+8)}, {s(sT0)}
    v_cmp_nlt_f32 {s(sK,2)}, {v(t[0])}, {s(sT1)}
    s_or_b64 vcc, vcc, {s(sK,2)}
    v_cmp_u_f32 {s(sK,2)}, {v(t[1])}, {v(t[1])}
    s_or_b64 vcc, vcc, {s(sK,2)}
    s_cbranch_vccz {DONE}
    """)
    a(f"s_branch {nob}F\n{nob}B:")
    a(f"s_cmp_lg_u32 {s(sIt)}, 3\ns_cbranch_scc1 {nob}X\ns_mov_b32 {s(sBar)}, {opt('xbit', 13)}")
    pf.stamp(3, "loop")
    a("s_barrier")
    pf.stamp(4, "loop")
    a(f"""
    s_branch {nob}
    {nob}X:
    buffer_load_dwordx4 {v(vXr,4)}, {v(vOa)}, {s(rA,4)}, 0 offen
    buffer_load_dwordx4 {v(vB2,4)}, {v(vB2)}, {s(rB,4)}, 0 offen
    s_branch {nob}
    {nob}F:
    """)
    ML, ML2 = a.label("AT_MAXLOOP"), a.label("AT_REDO")
    a.c("rare path: true row max, then the whole row block again, K/V straight from global memory")
    a(f"""
    s_lshl_b32 {s(sT0)}, {s(sH)}, 16
    s_add_u32 {s(sT0)}, {s(sT0)}, {WS_K}
    v_mov_b32 {v(t[0])}, 0xff800000
    s_mov_b32 {s(sIt)}, 0
    {ML}:
    buffer_load_dwordx4 {v(K,4)}, {v(vL16)}, {s(rWS,4)}, {s(sT0)} offen{SC}
    s_add_u32 {s(sT0)}, {s(sT0)}, 1024
    s_waitcnt vmcnt(0)
    {MFMA} {v(SB[0],16)}, {v(K,4)}, {v(Q,4)}, 0
    s_nop 15
    """)
    rowmax(SB[0], t[0], False)
    a(f"""
    s_add_u32 {s(sIt)}, {s(sIt)}, 1
    s_cmp_lt_u32 {s(sIt)}, 64
    s_cbranch_scc1 {ML}
    v_mov_b32 {v(t[1])}, {v(t[0])}
    v_subrev_u32 {v(vVa)}, 65536, {v(vVb)}
    s_sub_u32 {s(sT0)}, {s(sT0)}, 65536
    v_permlane32_swap_b32 {v(t[0])}, {v(t[1])}
    s_add_u32 {s(sT1)}, {s(sT0)}, {WS_V - WS_K}
    s_mov_b32 {s(sIt)}, 0
    v_max_f32 {v(t[0])}, {v(t[0])}, {v(t[1])}
    """)
    for i in range(16): a(f"v_sub_f32 {v(C+i)}, 0, {v(t[0])}\nv_mov_b32 {v(O+i)}, 0")
    a(f"""
    {ML2}:
    buffer_load_dwordx4 {v(K,4)}, {v(vL16)}, {s(rWS,4)}, {s(sT0)} offen{SC}
    s_mov_b64 exec, {s(sMask,2)}
    buffer_load_dwordx4 {v(V1,4)}, {v(vVa)}, {s(rWS,4)}, {s(sT1)} offen{SC}
    buffer_load_dwordx4 {v(Vb,4)}, {v(vVa)}, {s(rWS,4)}, {s(sT1)} offen offset:512{SC}
    s_mov_b64 exec, -1
    s_add_u32 {s(sT0)}, {s(sT0)}, 1024
    s_add_u32 {s(sT1)}, {s(sT1)}, 1024
    s_waitcnt vmcnt(0)
    {MFMA} {v(SB[0],16)}, {v(K,4)}, {v(Q,4)}, {v(C,16)}
    s_nop 15
    """)
    for i in range(16): a(f"v_exp_f32 {v(SB[0]+i)}, {v(SB[0]+i)}")
    a(f"""
    s_nop 1
    {SMF} {v(O,16)}, {v(V1,4)}, {v(SB[0],8)}, {v(vIdx)}
    {SMF} {v(O,16)}, {v(Vb,4)}, {v(SB[0]+8,8)}, {v(vIdx)}
    s_add_u32 {s(sIt)}, {s(sIt)}, 1
    s_nop 15
    s_cmp_lt_u32 {s(sIt)}, 64
    s_cbranch_scc1 {ML2}
    {DONE}:
    """)
    pf.stamp(1, "tail")
    a(f"""
    v_rcp_f32 {v(t[0])}, {v(O+8)}
    s_nop 0
    """)
    for i in range(8): a(f"v_mul_f32 {v(O+i)}, {v(O+i)}, {v(t[0])}")
    for i in range(4): a(f"v_cvt_pk_bf16_f32 {v(K+i)}, {v(O+2*i)}, {v(O+2*i+1)}")
    a(f"buffer_store_dwordx4 {v(K,4)}, {v(vL16)}, {s(rWS,4)}, {s(sOdst)} offen{SC}")
    pf.stamp(9)
    pf.stamp(2, "tail")
    a.c("---------------- final: out tile (tm = rb, tn = cb), wave (mt = w&1, kq = w>>1): heads 8kq..8kq+7, 32 tokens x 64 cols")
    vBa = vVb
    OF = [ACC2[0] + 4*i for i in range(8)]
    ACC = [ACC1[0], ACC1[1]]
    sP, sRdy, sOo = sU[3], sU[4], sOsrc
    PART = 65536
    def oload(f):
        a(f"buffer_load_dwordx4 {v(OF[f],4)}, {v(vL16)}, {s(rWS,4)}, {s(sOo if f < 4 else sOsrc2)} offen offset:{(f%4)*1024}{SC}")
    vHint = t[2]; vWb = vVa
    def cinit():
        pf.stamp(5, "tail")
        a(f"v_xor_b32 {v(vWb)}, 64, {v(vWa)}\ns_barrier")
        for f in range(8):
            for n, va in enumerate((vWa, vWb)):
                for j in range(2):
                    a(f"ds_read_b64_tr_b16 {v(WFq[2*f+n]+2*j,2)}, {v(va)} offset:{f*2048 + j*1024}")
            if f % 2 == 1 and f < 7:
                for i in range(8): a(f"v_mov_b32 {v(ACC[0] + 8*(f//2) + i)}, 0")
                a("s_waitcnt lgkmcnt(6)")
        for i in range(8): a(f"v_mov_b32 {v(ACC[0] + 24 + i)}, 0")
        a("s_waitcnt lgkmcnt(0)\ns_barrier")
        pf.stamp(6, "tail")
    def tree(body, mask_s):
        for h in range(2):
            skh = a.label("F_skh")
            a(f"s_and_b32 {s(sT0)}, {s(mask_s)}, {0xf << (4*h)}\ns_cbranch_scc0 {skh}")
            for f in range(4*h, 4*h + 4):
                sk = a.label("F_sk")
                a(f"s_bitcmp1_b32 {s(mask_s)}, {f}\ns_cbranch_scc0 {sk}")
                body(f, sk)
                a(f"{sk}:")
            a(f"{skh}:")
    def consume(f, sk):
        tt_ = t[f % 2]
        a(f"""
        v_max3_u32 {v(tt_)}, {v(OF[f])}, {v(OF[f]+1)}, {v(OF[f]+2)}
        v_max_u32 {v(tt_)}, {v(tt_)}, {v(OF[f]+3)}
        v_cmp_eq_u32 vcc, -1, {v(tt_)}
        s_and_b64 vcc, vcc, {s(sK,2)}
        s_cbranch_vccnz {sk}
        """)
        for n in range(2):
            a(f"{MFMA} {v(ACC[n],16)}, {v(WFq[2*f+n],4)}, {v(OF[f],4)}, {v(ACC[n],16)}")
        a(f"s_bitset0_b32 {s(sP)}, {f}")
    a.c("O fragments arrive from 32 other workgroups; a slot still holding the all-ones marker has not been written yet")
    SLOW, PH2, PH2B, RD = a.label("F_SLOW"), a.label("F_PH2"), a.label("F_PH2B"), a.label("F_DONE")
    a(f"""
    s_mov_b32 {s(sP)}, 255
    s_mov_b32 {s(sIt)}, 0
    s_mov_b64 {s(sK,2)}, -1
    """)
    cinit()
    a("s_waitcnt vmcnt(0)")
    if opt("d1", 0): a(f"s_sleep {opt('d1', 0)}")
    pf.stamp(4, "tail")
    if opt("first", 0) == 1:
        a(f"""
        s_mov_b64 exec, 255
        buffer_load_dword {v(vHint)}, {v(vLp)}, {s(rWS,4)}, {s(sOo)} offen{SC}
        s_mov_b64 exec, -1
        s_waitcnt vmcnt(0)
        v_cmp_ne_u32 vcc, -1, {v(vHint)}
        s_and_b32 {s(sRdy)}, vcc_lo, 255
        s_cmp_lg_u32 {s(sRdy)}, 255
        s_cbranch_scc1 {SLOW}
        """)
    for f in range(8): oload(f)
    for f in range(8):
        sk = a.label("F_sk")
        a(f"s_waitcnt vmcnt({7 - f})")
        consume(f, sk)
        a(f"{sk}:")
    a(f"s_branch {PH2}\n{SLOW}:")
    tree(lambda f, sk: oload(f), sRdy)
    a(f"{PH2B}:\ns_waitcnt vmcnt(0)")
    pf.stamp(8, "tail")
    tree(consume, sRdy)
    PL = a.label("F_PL"); GO = a.label("F_GO")
    a(f"""
    {PH2}:
    s_cmp_eq_u32 {s(sP)}, 0
    s_cbranch_scc1 {RD}
    s_mov_b32 {s(sRdy)}, {s(sP)}
    s_add_u32 {s(sIt)}, {s(sIt)}, 1
    s_bcnt1_i32_b32 {s(sT0)}, {s(sP)}
    s_cmp_le_u32 {s(sT0)}, {opt("few", 8)}
    s_cbranch_scc1 {GO}S
    s_mov_b64 exec, 255
    {PL}:
    s_sleep {opt("psleep", 6)}
    buffer_load_dword {v(vHint)}, {v(vLp)}, {s(rWS,4)}, {s(sOo)} offen{SC}
    s_add_u32 {s(sIt)}, {s(sIt)}, 1
    s_waitcnt vmcnt(0)
    v_cmp_eq_u32 vcc, -1, {v(vHint)}
    s_and_b32 {s(sT0)}, vcc_lo, {s(sP)}
    s_cbranch_scc0 {GO}
    s_cmp_lt_u32 {s(sIt)}, 0x8000
    s_cbranch_scc1 {PL}
    s_branch {GO}
    {GO}S:
    s_sleep {opt("psleep", 6)}
    {GO}:
    """)
    pf.stamp(7, "tail")
    a(f"""
    s_mov_b64 exec, -1
    s_cmp_lt_u32 {s(sIt)}, 0x8000
    s_cselect_b64 {s(sK,2)}, -1, 0
    """)
    tree(lambda f, sk: oload(f), sRdy)
    a(f"s_branch {PH2B}\n{RD}:")
    a("s_nop 3")
    pf.stamp(11); pf.stamp(9, "tail")
    if PROF and "tail" in sys.argv:
        a(f"s_waitcnt lgkmcnt(0)\ns_add_u32 {s(pf.t[12])}, {s(pf.t[0])}, {s(sIt)}\ns_add_u32 {s(pf.t[12])}, {s(pf.t[12])}, 1")
    XS = F[0] + 16; R = ACC2[0]
    for i in range(4):
        a(f"v_lshlrev_b32 {v(XS+2*i)}, 16, {v(vXr+i)}\nv_and_b32 {v(XS+2*i+1)}, 0xffff0000, {v(vXr+i)}")
    for i in range(4):
        a(f"v_lshlrev_b32 {v(XS+8+2*i)}, 16, {v(vB2+i)}\nv_and_b32 {v(XS+8+2*i+1)}, 0xffff0000, {v(vB2+i)}")
    for n in range(2):
        for gq in range(4):
            a(f"v_xor_b32 {v(t[gq%2])}, {128*n + 32*gq}, {v(vWp)}\nds_write_b128 {v(t[gq%2])}, {v(ACC[n]+4*gq,4)}")
    for i in range(8): a(f"v_add_f32 {v(XS+i)}, {v(XS+i)}, {v(XS+8+i)}")
    a(f"""
    v_xor_b32 {v(t[1])}, 16, {v(vRp)}
    v_add_u32 {v(vBa)}, {STG}, {v(vRp)}
    v_add_u32 {v(t[0])}, {STG}, {v(t[1])}
    s_waitcnt lgkmcnt(0)
    """)
    pf.stamp(10, "tail")
    a("s_barrier")
    pf.stamp(11, "tail")
    R2 = ACC1[0]
    for k, (a0_, a1_, off) in enumerate([(vRp, t[1], 0), (vRp, t[1], 16384), (vRp, t[1], BASE), (vBa, t[0], 0), (vBa, t[0], 16384)]):
        d = R + 8*k if k < 4 else R2
        a(f"ds_read_b128 {v(d,4)}, {v(a0_)} offset:{off}\nds_read_b128 {v(d+4,4)}, {v(a1_)} offset:{off}")
    a("s_waitcnt lgkmcnt(6)")
    for i in range(8): a(f"v_add_f32 {v(XS+i)}, {v(XS+i)}, {v(R+i)}")
    for i in range(8): a(f"v_add_f32 {v(XS+i)}, {v(XS+i)}, {v(R+8+i)}")
    a("s_waitcnt lgkmcnt(2)")
    for i in range(8): a(f"v_add_f32 {v(R+16+i)}, {v(R+16+i)}, {v(R+24+i)}")
    for i in range(8): a(f"v_add_f32 {v(XS+i)}, {v(XS+i)}, {v(R+16+i)}")
    a("s_waitcnt lgkmcnt(0)")
    for i in range(8): a(f"v_add_f32 {v(XS+i)}, {v(XS+i)}, {v(R2+i)}")
    for i in range(4): a(f"v_cvt_pk_bf16_f32 {v(R+i)}, {v(XS+2*i)}, {v(XS+2*i+1)}")
    a(f"buffer_store_dwordx4 {v(R,4)}, {v(vOa)}, {s(rC,4)}, 0 offen")
    if opt("dbgclk", 0):
        a(f"""
        s_memtime {s(sMask,2)}
        s_memrealtime {s(sK,2)}
        s_waitcnt lgkmcnt(0)
        s_sub_u32 {s(sMask)}, {s(sMask)}, s96
        s_sub_u32 {s(sK)}, {s(sK)}, s98
        s_cmp_lg_u32 {s(sW)}, 0
        s_cbranch_scc1 {END}
        s_and_b32 {s(sT0)}, s2, 63
        s_cmp_lg_u32 {s(sT0)}, 5
        s_cbranch_scc1 {END}
        s_lshr_b32 {s(sT0)}, s2, 6
        s_lshl_b32 {s(sT0)}, {s(sT0)}, 3
        s_add_u32 {s(sT0)}, {s(sT0)}, 16
        v_mov_b32 {v(t[0])}, {s(sT0)}
        v_mov_b32 {v(R+4)}, {s(sMask)}
        v_mov_b32 {v(R+5)}, {s(sK)}
        s_mov_b64 exec, 1
        global_store_dwordx2 {v(t[0])}, {v(R+4,2)}, s[22:23]
        """)
    pf.finish(t[0], t[1], sW)
    a("s_endpgm")
    return V.hi

def gen_aux(a, G):
    g = lambda n: G[n]
    pf, sW, sRB, sCB, sH, sR8, sT0, sT1, sT2, sT3, sIt = [g(n) for n in "pf sW sRB sCB sH sR8 sT0 sT1 sT2 sT3 sIt".split()]
    rWS, rA, rB, rC, sU, sMask, sK, END = [g(n) for n in "rWS rA rB rC sU sMask sK END".split()]
    V = Regs("v", 3, 168)
    vL = 2
    vm = Cnt(a, "vmcnt", 63); lg = Cnt(a, "lgkmcnt", 15)
    vL16 = V.alloc(); vT = [V.alloc() for _ in range(6)]
    vWq = [V.alloc(), V.alloc()]; vW1 = [V.alloc(), V.alloc()]
    vD = V.alloc(4, 4)
    sA = sU[0]; sOff = [sU[1], sU[2], sU[3]]; sM = [sU[4], sU[5], sU[6]]; sI8 = sU[7]
    a.c("---------------- aux waves: weight streaming for the two GEMMs")
    a(f"""
    s_setprio {opt("auxprio", 1)}
    s_sub_u32 {s(sA)}, {s(sW)}, 8
    v_lshlrev_b32 {v(vL16)}, 4, {v(vL)}
    v_lshrrev_b32 {v(vT[0])}, 3, {v(vL)}
    v_bfe_u32 {v(vT[1])}, {v(vL)}, 4, 1
    v_lshlrev_b32 {v(vT[1])}, 2, {v(vT[1])}
    v_and_b32 {v(vT[2])}, 7, {v(vL)}
    v_xor_b32 {v(vT[1])}, {v(vT[1])}, {v(vT[2])}
    v_lshlrev_b32 {v(vT[1])}, 4, {v(vT[1])}
    v_mul_u32_u24 {v(vT[2])}, 3072, {v(vT[0])}
    v_add_u32 {v(vWq[0])}, {v(vT[2])}, {v(vT[1])}
    v_add_u32 {v(vWq[1])}, {8*3072 - 1024}, {v(vWq[0])}
    v_mul_u32_u24 {v(vT[2])}, 2752, {v(vT[0])}
    v_add_u32 {v(vW1[0])}, {v(vT[2])}, {v(vT[1])}
    v_add_u32 {v(vW1[1])}, {8*2752 - 1024}, {v(vW1[0])}
    s_lshl_b32 {s(sOff[0])}, {s(sCB)}, 7
    s_lshl_b32 {s(sT0)}, {s(sA)}, 10
    s_add_u32 {s(sOff[0])}, {s(sOff[0])}, {s(sT0)}
    s_mul_i32 {s(sOff[1])}, {s(sCB)}, 384
    s_lshl_b32 {s(sT0)}, {s(sA)}, 7
    s_add_u32 {s(sOff[2])}, {s(sOff[1])}, {s(sT0)}
    s_lshl_b32 {s(sM[0])}, {s(sA)}, 13
    s_add_u32 {s(sM[0])}, {s(sM[0])}, {RING}
    s_and_b32 {s(sI8)}, {s(sRB)}, 7
    s_mov_b32 {s(rA+2)}, {512*3072}
    s_mov_b32 {s(rA+3)}, 0x00020000
    s_mov_b32 {s(rB+2)}, {512*2752}
    s_mov_b32 {s(rB+3)}, 0x00020000
    s_cmp_eq_u32 {s(sCB)}, 7
    s_cselect_b32 {s(sT0)}, 0, {512*2752}
    s_cmp_eq_u32 {s(sA)}, 0
    s_cselect_b32 {s(rC+2)}, {512*2752}, {s(sT0)}
    s_mov_b32 {s(sM[1])}, {s(sT0)}
    s_mov_b32 {s(rC+3)}, 0x00020000
    s_waitcnt lgkmcnt(0)
    s_mov_b32 {s(rA)}, s6
    s_mov_b32 {s(rA+1)}, s7
    s_mov_b32 {s(rB)}, s12
    s_mov_b32 {s(rB+1)}, s13
    s_mov_b32 {s(rC)}, s12
    s_mov_b32 {s(rC+1)}, s13
    """)
    sLQ, sLH = sU[8], sU[9]
    sN = sK
    nn = a.label("X_nonce")
    a(f"""
    s_lshl_b32 {s(sLQ)}, {s(sH)}, 3
    s_add_u32 {s(sLQ)}, {s(sLQ)}, {s(sR8)}
    s_lshl_b32 {s(sLQ)}, {s(sLQ)}, 8
    s_add_u32 {s(sLQ)}, {s(sLQ)}, {FLAG_Q}
    s_lshl_b32 {s(sLH)}, {s(sRB)}, 3
    s_add_u32 {s(sLH)}, {s(sLH)}, {s(sCB)}
    s_lshl_b32 {s(sLH)}, {s(sLH)}, 8
    s_add_u32 {s(sLH)}, {s(sLH)}, {FLAG_H}
    """)
    a.c("workgroup 0, wave 11 picks this launch's tag (previous tag + 1, low word never 0) and publishes it through d_debug")
    a(f"""
    s_cmp_lg_u32 s2, 0
    s_cbranch_scc1 {nn}
    s_cmp_lg_u32 {s(sA)}, 3
    s_cbranch_scc1 {nn}
    v_mov_b32 {v(vT[4])}, 0
    s_mov_b32 {s(sT0)}, {WS_EPOCH}
    s_mov_b64 exec, 1
    buffer_load_dwordx2 {v(vD,2)}, {v(vT[4])}, {s(rWS,4)}, {s(sT0)} offen{SC}
    s_waitcnt vmcnt(0)
    v_add_co_u32 {v(vD)}, vcc, 1, {v(vD)}
    s_nop 1
    v_addc_co_u32 {v(vD+1)}, vcc, 0, {v(vD+1)}, vcc
    v_max_u32 {v(vD)}, 1, {v(vD)}
    buffer_store_dwordx2 {v(vD,2)}, {v(vT[4])}, {s(rWS,4)}, {s(sT0)} offen{SC}
    global_store_dwordx2 {v(vT[4])}, {v(vD,2)}, s[22:23]{SC}
    s_mov_b64 exec, -1
    {nn}:
    """)
    ACC = [[V.alloc(16, 4), V.alloc(16, 4)], [V.alloc(16, 4), V.alloc(16, 4)]]
    HB = [V.alloc(8, 4) for _ in range(4)]; HS = V.alloc(24, 4); WB = [HS, HS + 8]
    vRa, vRb, vWo0, vWo1, vQa = [V.alloc() for _ in range(5)]
    a.c("lane addresses for later phases, while the first loads are in flight")
    a(f"""
    v_lshrrev_b32 {v(vT[0])}, 5, {v(vL)}
    v_bfe_u32 {v(vT[1])}, {v(vL)}, 2, 2
    v_lshl_add_u32 {v(vT[1])}, {v(vT[0])}, 2, {v(vT[1])}
    v_lshlrev_b32 {v(vT[1])}, 7, {v(vT[1])}
    v_bfe_u32 {v(vT[0])}, {v(vL)}, 3, 1
    v_lshl_add_u32 {v(vT[1])}, {v(vT[0])}, 6, {v(vT[1])}
    v_bfe_u32 {v(vT[0])}, {v(vL)}, 4, 1
    v_lshl_add_u32 {v(vT[1])}, {v(vT[0])}, 5, {v(vT[1])}
    v_and_b32 {v(vT[0])}, 3, {v(vL)}
    v_lshl_add_u32 {v(vT[1])}, {v(vT[0])}, 3, {v(vT[1])}
    s_lshl_b32 {s(sT0)}, {s(sA)}, 13
    s_add_u32 {s(sT0)}, {s(sT0)}, {STG}
    v_add_u32 {v(vRa)}, {s(sT0)}, {v(vT[1])}
    v_xor_b32 {v(vRb)}, 64, {v(vRa)}
    v_lshrrev_b32 {v(vT[4])}, 3, {v(vL)}
    v_bfe_u32 {v(vT[1])}, {v(vL)}, 4, 1
    v_lshlrev_b32 {v(vT[1])}, 2, {v(vT[1])}
    v_and_b32 {v(vT[2])}, 7, {v(vL)}
    v_xor_b32 {v(vT[1])}, {v(vT[1])}, {v(vT[2])}
    v_lshlrev_b32 {v(vT[1])}, 4, {v(vT[1])}
    v_lshl_add_u32 {v(vWo0)}, {v(vT[4])}, 10, {v(vT[1])}
    v_add_u32 {v(vWo1)}, {8*1024 - 1024}, {v(vWo0)}
    v_and_b32 {v(vQa)}, 31, {v(vL)}
    v_lshlrev_b32 {v(vQa)}, 3, {v(vQa)}
    """)
    for m in range(2):
        for n in range(2):
            for i in range(16): a(f"v_mov_b32 {v(ACC[m][n]+i)}, 0")
    sKr = sMask
    a(f"s_and_b32 {s(sKr)}, {s(sRB)}, 7")
    def group(r, vo, stride, scol, m0base, m0imm):
        for q in range(4):
            a(f"""
            s_add_u32 m0, {m0base}, {m0imm + q*2048}
            s_add_u32 {s(sIt)}, {s(scol)}, {q*16*stride}
            buffer_load_dwordx4 {v(vo[0])}, {s(r,4)}, {s(sIt)} offen{WNT} lds
            buffer_load_dwordx4 {v(vo[1])}, {s(r,4)}, {s(sIt)} offen offset:1024{WNT} lds
            """)
    def dma(c):
        sl = SLOTOF[c]; isq = SEQ[c][0] == "c"
        st = 3072 if isq else 2752
        a(f"""
        s_add_u32 {s(sT3)}, {s(sKr)}, {SEQ[c][1]}
        s_and_b32 {s(sT3)}, {s(sT3)}, 7
        s_mul_i32 {s(sT3)}, {s(sT3)}, {64*st}
        s_add_u32 {s(sT3)}, {s(sT3)}, {s(sOff[0] if isq else sOff[2])}
        """)
        group(rA if isq else rC, vWq if isq else vW1, st, sT3, s(sM[0]), sl*SLOT)
        vm.op(("c", c), 8)
    def dma_lone(c):
        sl = SLOTOF[c]
        a(f"s_mul_i32 {s(sT3)}, {s(sKr)}, {64*2752}\ns_add_u32 {s(sT3)}, {s(sT3)}, {s(sOff[1])}\ns_mov_b32 {s(sT2)}, {RING}")
        for gi in range(3):
            group(rB, vW1, 2752, sT3, s(sT2), sl*SLOT + gi*8192)
            if gi == 0: a(f"s_mov_b32 {s(rB+2)}, {s(sM[1])}")
            a(f"s_add_u32 {s(sT3)}, {s(sT3)}, 128")
    W11, WJ = a.label("X_W11"), a.label("X_WJ")
    if opt("bx", 1): a("s_barrier")
    elif opt("bxs", 0): a(f"s_sleep {opt('bxs', 0)}")
    a(f"s_cmp_eq_u32 {s(sA)}, 3\ns_cbranch_scc1 {W11}")
    LONE = FIRSTD if (DPOS < 8 or opt("dearly", 0)) else -1
    for p in IORDER:
        if ISSUE[p] == -2 and p != LONE: dma(p)
    def poll(setup, load, nl):
        L = a.label("X_poll"); D = a.label("X_polld")
        a(setup)
        a(f"s_mov_b32 {s(sIt)}, 0\ns_mov_b64 exec, 255")
        if nl == 32: a("s_mov_b32 exec_lo, -1")
        a(f"""
        {L}:
        {load}
        s_add_u32 {s(sIt)}, {s(sIt)}, 1
        s_waitcnt vmcnt(0)
        v_cmp_ne_u64 vcc, {s(sN,2)}, {v(vD,2)}
        s_cbranch_vccz {D}
        s_sleep {opt("pollsleep", 2)}
        s_cmp_lt_u32 {s(sIt)}, 0x20000
        s_cbranch_scc1 {L}
        {D}:
        s_mov_b64 exec, -1
        """)
        vm.q = []
    def setflag(base, sline, lineshift, sslot, nl, allw=False):
        nf = a.label("X_noflag")
        if not allw: a(f"s_cmp_lg_u32 {s(sA)}, 0\ns_cbranch_scc1 {nf}")
        a(f"""
        s_lshl_b32 {s(sT0)}, {s(sline)}, {lineshift + 8}
        s_lshl_b32 {s(sT1)}, {s(sslot)}, 3
        s_add_u32 {s(sT0)}, {s(sT0)}, {s(sT1)}
        s_add_u32 {s(sT0)}, {s(sT0)}, {base}
        v_lshlrev_b32 {v(vT[0])}, 8, {v(vL)}
        v_mov_b64 {v(vD+2,2)}, {s(sN,2)}
        s_mov_b64 exec, 255
        """)
        if nl == 32: a("s_mov_b32 exec_lo, -1")
        a(f"""
        buffer_store_dwordx2 {v(vD+2,2)}, {v(vT[0])}, {s(rWS,4)}, {s(sT0)} offen{SC}
        s_mov_b64 exec, -1
        {nf}:
        """)
    def tokwait():
        tk, tl = a.label("X_tok"), a.label("X_tokl")
        a(f"""
        s_waitcnt lgkmcnt(0)
        s_cmp_lg_u32 {s(sN)}, 0
        s_cbranch_scc1 {tk}
        s_mov_b32 {s(sIt)}, 0
        v_mov_b32 {v(vT[4])}, 0
        {tl}:
        global_load_dwordx2 {v(vD,2)}, {v(vT[4])}, s[22:23]{SC}
        s_add_u32 {s(sIt)}, {s(sIt)}, 1
        s_waitcnt vmcnt(0)
        v_readfirstlane_b32 {s(sN)}, {v(vD)}
        v_readfirstlane_b32 {s(sN+1)}, {v(vD+1)}
        s_cmp_lg_u32 {s(sN)}, 0
        s_cbranch_scc1 {tk}
        s_sleep 2
        s_cmp_lt_u32 {s(sIt)}, 0x20000
        s_cbranch_scc1 {tl}
        {tk}:
        """)
    for c in range(16):
        vm.wait(("c", c))
        if c >= 5: pf.stamp(c - 4, "fine")
        a("s_barrier")
        if c == 0: pf.stamp(4)
        if c == LASTC + 1: pf.stamp(5)
        for p in IORDER:
            if ISSUE[p] == c and p != LONE: dma(p)
        if c == 10: a(f"s_load_dwordx2 {s(sN,2)}, s[22:23], 0")
    a(f"s_branch {WJ}\n{W11}:")
    LAT = opt("loneat", ISSUE[8] if opt("dearly", 0) else -1)
    if LONE >= 0 and LAT < 0: dma_lone(LONE)
    if opt("pf11", 99) == -1:
        if opt("pf11s", 0): a(f"s_sleep {opt('pf11s', 0)}")
        a(f"""
        s_lshl_b32 {s(sT0)}, {s(sKr)}, 6
        v_add_u32 {v(vT[0])}, {s(sT0)}, {v(vL)}
        v_mul_u32_u24 {v(vT[0])}, 2752, {v(vT[0])}
        """)
        for i in range(4):
            a(f"buffer_load_dword {v(vD + i)}, {v(vT[0])}, {s(rB,4)}, {s(sOff[1])} offen offset:{[0,128,256,380][i]}")
    for c in range(16):
        if c == LONE: a("s_waitcnt vmcnt(0)")
        a("s_barrier")
        if LONE >= 0 and c == LAT: dma_lone(LONE)
        P11 = opt("pf11", 99)
        if P11 < 0: P11 = 99
        if c == P11:
            a.c("warm-up of this workgroup's first W1 chunk, one line column per step")
            a(f"""
            s_lshl_b32 {s(sT0)}, {s(sKr)}, 6
            v_add_u32 {v(vT[0])}, {s(sT0)}, {v(vL)}
            v_mul_u32_u24 {v(vT[0])}, 2752, {v(vT[0])}
            """)
        if 0 <= c - P11 < 4:
            a(f"buffer_load_dword {v(vD + c - P11)}, {v(vT[0])}, {s(rB,4)}, {s(sOff[1])} offen offset:{[0,128,256,380][c - P11]}")
        if c == 10: a(f"s_load_dwordx2 {s(sN,2)}, s[22:23], 0")
    a(f"{WJ}:")
    tokwait()
    pf.stamp(1)
    qld = f"buffer_load_dwordx2 {v(vD,2)}, {v(vQa)}, {s(rWS,4)}, {s(sLQ)} offen{SC}"
    vWo = [vWo0, vWo1]
    a.c("K/V key blocks may be taken in any order: wave a owns producers 8a..8a+7; the first two that are ready fill its four early slots")
    sKV, sPend, sNeed = sU[1], sU[2], sU[5]
    a(f"""
    s_lshl_b32 {s(sKV)}, {s(sH)}, 16
    s_lshl_b32 {s(sU[3])}, {s(sR8)}, 13
    s_add_u32 {s(sU[3])}, {s(sU[3])}, {s(sKV)}
    s_lshl_b32 {s(sU[4])}, {s(sA)}, 11
    s_add_u32 {s(sU[3])}, {s(sU[3])}, {s(sU[4])}
    s_add_u32 {s(sU[3])}, {s(sU[3])}, {WS_Q}
    s_add_u32 {s(sKV)}, {s(sKV)}, {WS_K}
    s_lshl_b32 {s(sT2)}, {s(sA)}, 3
    s_lshl_b32 {s(sPend)}, 255, {s(sT2)}
    s_lshl_b32 {s(sT2)}, {s(sR8)}, 2
    s_add_u32 {s(sT2)}, {s(sT2)}, {s(sA)}
    s_lshl_b32 {s(sNeed)}, 1, {s(sT2)}
    s_lshl_b32 {s(sU[6])}, {s(sA)}, 12
    """)
    def take(smask):
        a(f"""
        s_ff1_i32_b32 {s(sT2)}, {s(smask)}
        s_bitset0_b32 {s(smask)}, {s(sT2)}
        s_bitset0_b32 {s(sPend)}, {s(sT2)}
        s_lshl_b32 {s(sT2)}, {s(sT2)}, 11
        s_add_u32 {s(sT2)}, {s(sT2)}, {s(sKV)}
        s_mov_b32 m0, {s(sU[6])}
        s_add_u32 {s(sT3)}, {s(sT2)}, {WS_V - WS_K}
        buffer_load_dwordx4 {v(vL16)}, {s(rWS,4)}, {s(sT2)} offen{SCL} lds
        buffer_load_dwordx4 {v(vL16)}, {s(rWS,4)}, {s(sT2)} offen offset:1024{SCL} lds
        s_add_u32 m0, {s(sU[6])}, 65536
        s_add_u32 {s(sU[6])}, {s(sU[6])}, 2048
        buffer_load_dwordx4 {v(vL16)}, {s(rWS,4)}, {s(sT3)} offen{SCL} lds
        buffer_load_dwordx4 {v(vL16)}, {s(rWS,4)}, {s(sT3)} offen offset:1024{SCL} lds
        """)
    a(qld)
    a("s_barrier")
    pf.stamp(6)
    QL, QC, QG = a.label("X_ql"), a.label("X_qc"), a.label("X_qg")
    a(f"""
    s_mov_b32 {s(sIt)}, 0
    s_branch {QC}
    {QL}:
    s_sleep {opt("pollsleep", 2)}
    {qld}
    {QC}:
    s_add_u32 {s(sIt)}, {s(sIt)}, 1
    s_waitcnt vmcnt(0)
    v_cmp_eq_u64 vcc, {s(sN,2)}, {v(vD,2)}
    s_cmp_ge_u32 {s(sIt)}, 0x20000
    s_cselect_b32 {s(sT0)}, -1, vcc_lo
    s_and_b32 {s(sT1)}, {s(sT0)}, {s(sNeed)}
    s_cbranch_scc0 {QL}
    s_and_b32 {s(sT0)}, {s(sT0)}, {s(sPend)}
    s_bcnt1_i32_b32 {s(sT1)}, {s(sT0)}
    s_cmp_lt_u32 {s(sT1)}, 2
    s_cbranch_scc1 {QL}
    s_add_u32 m0, {s(sU[4])}, {STG}
    s_nop 0
    buffer_load_dwordx4 {v(vL16)}, {s(rWS,4)}, {s(sU[3])} offen{SCL} lds
    buffer_load_dwordx4 {v(vL16)}, {s(rWS,4)}, {s(sU[3])} offen offset:1024{SCL} lds
    """)
    take(sT0); take(sT0)
    vm.q = []
    sHo, sWo, sSt, sNI = sMask, sMask + 1, sU[3], sU[4]
    a.c("---------------- FFN2 in the shadow of attention")
    a(f"""
    s_mul_i32 {s(sHo)}, {s(sA)}, {24*1024}
    s_mul_i32 {s(sWo)}, {s(sA)}, {24*16*1024}
    s_lshl_b32 {s(sT2)}, {s(sCB)}, 7
    s_add_u32 {s(sWo)}, {s(sWo)}, {s(sT2)}
    s_lshl_b32 {s(sSt)}, {s(sA)}, 13
    s_add_u32 {s(sSt)}, {s(sSt)}, {STG}
    s_cmp_eq_u32 {s(sA)}, 3
    s_cselect_b32 {s(sNI)}, {min(4, opt("ffnit", 6))}, {opt("ffnit", 6)}
    """)
    pf.stamp(2)
    a("s_waitcnt vmcnt(0)\ns_barrier")
    pf.stamp(8)
    Q2, Q2G, Q2T = a.label("X_q2"), a.label("X_q2g"), a.label("X_q2t")
    a(f"""
    s_mul_i32 {s(sU[6])}, {s(sA)}, 12288
    s_add_u32 {s(sU[6])}, {s(sU[6])}, 16384
    s_mov_b32 {s(sIt)}, 0
    {Q2}:
    v_cmp_ne_u64 vcc, {s(sN,2)}, {v(vD,2)}
    s_and_b32 {s(sT0)}, vcc_lo, {s(sPend)}
    s_cbranch_scc0 {Q2G}
    s_sleep {opt("pollsleep", 2)}
    {qld}
    s_add_u32 {s(sIt)}, {s(sIt)}, 1
    s_waitcnt vmcnt(0)
    s_cmp_lt_u32 {s(sIt)}, 0x20000
    s_cbranch_scc1 {Q2}
    {Q2G}:
    s_mov_b32 {s(sT0)}, {s(sPend)}
    {Q2T}:
    """)
    take(sT0)
    a(f"s_cmp_lg_u32 {s(sT0)}, 0\ns_cbranch_scc1 {Q2T}")
    vm.op("s2", 24)
    rL = G["rL"]
    a.c("all-ones marker into this workgroup's own O slots; H tile SRDs")
    a(f"""
    s_lshl_b32 {s(sT0)}, {s(sR8)}, 3
    s_lshl_b32 {s(sT1)}, {s(sA)}, 1
    s_add_u32 {s(sT0)}, {s(sT0)}, {s(sT1)}
    s_mul_i32 {s(sT0)}, {s(sT0)}, {A3_TSTRIDE}
    s_lshl_b32 {s(sT1)}, {s(sH)}, 10
    s_add_u32 {s(sT0)}, {s(sT0)}, {s(sT1)}
    s_add_u32 {s(sU[5])}, {s(sT0)}, {WS_A3}
    s_add_u32 {s(sU[6])}, {s(sU[5])}, {A3_TSTRIDE}
    """)
    for i in range(4): a(f"v_mov_b32 {v(vD+i)}, -1")
    a(f"""
    buffer_store_dwordx4 {v(vD,4)}, {v(vL16)}, {s(rWS,4)}, {s(sU[5])} offen{SC}
    buffer_store_dwordx4 {v(vD,4)}, {v(vL16)}, {s(rWS,4)}, {s(sU[6])} offen{SC}
    s_mul_i32 {s(sT1)}, {s(sRB)}, {2*A3_TSTRIDE}
    s_add_u32 {s(sT1)}, {s(sT1)}, {WS_A3 + 32*1024}
    s_add_u32 {s(rC)}, {s(rWS)}, {s(sT1)}
    s_addc_u32 {s(rC+1)}, {s(rWS+1)}, 0
    s_mov_b32 {s(rC+2)}, {86*1024}
    s_add_u32 {s(rL)}, {s(rC)}, {A3_TSTRIDE}
    s_addc_u32 {s(rL+1)}, {s(rC+1)}, 0
    s_mov_b32 {s(rL+2)}, {86*1024}
    s_mov_b32 {s(rL+3)}, 0x00020000
    """)
    vm.op("sent", 2)
    a.c("H tiles: staging -> global; wave a: token tile a&1, column steps 6*(a>>1)..")
    a(f"""
    s_and_b32 {s(sT0)}, {s(sA)}, 1
    s_mul_i32 {s(sT1)}, {s(sT0)}, 12288
    s_lshr_b32 {s(sT2)}, {s(sA)}, 1
    s_mul_i32 {s(sT2)}, {s(sT2)}, 6144
    s_add_u32 {s(sT1)}, {s(sT1)}, {s(sT2)}
    s_add_u32 {s(sT1)}, {s(sT1)}, {STG + 8192}
    v_add_u32 {v(vT[0])}, {s(sT1)}, {v(vL16)}
    """)
    for i in range(6): a(f"ds_read_b128 {v(HS+4*i,4)}, {v(vT[0])} offset:{1024*i}")
    a(f"""
    s_mul_i32 {s(sT1)}, {s(sCB)}, 12288
    s_add_u32 {s(sT2)}, {s(sT2)}, {s(sT1)}
    s_mul_i32 {s(sT1)}, {s(sT0)}, {A3_TSTRIDE}
    s_add_u32 {s(rB)}, {s(rC)}, {s(sT1)}
    s_addc_u32 {s(rB+1)}, {s(rC+1)}, 0
    s_mov_b32 {s(rB+2)}, {86*1024}
    s_add_u32 {s(sT1)}, {s(sT2)}, 4096
    s_waitcnt lgkmcnt(0)
    """)
    def hst():
        for i in range(6):
            a(f"buffer_store_dwordx4 {v(HS+4*i,4)}, {v(vL16)}, {s(rB,4)}, {s(sT3 if i < 4 else sT0)} offen offset:{1024*(i%4)}{SC}")
        vm.op("hst", 6)
    a(f"s_mov_b32 {s(sT0)}, {s(sT1)}\ns_mov_b32 {s(sT3)}, {s(sT2)}")
    hst()
    a.c("L2 warm-up of W2 / Wo column block (1/8 share)")
    a(f"""
    s_mov_b32 {s(rA)}, s16
    s_mov_b32 {s(rA+1)}, s17
    s_mov_b32 {s(rA+2)}, {1376*1024}
    s_mul_i32 {s(sT0)}, {s(sI8)}, 172
    s_mul_i32 {s(sT1)}, {s(sA)}, 43
    s_add_u32 {s(sT0)}, {s(sT0)}, {s(sT1)}
    v_min_u32 {v(vT[0])}, 42, {v(vL)}
    v_add_u32 {v(vT[0])}, {s(sT0)}, {v(vT[0])}
    v_lshlrev_b32 {v(vT[0])}, 10, {v(vT[0])}
    s_lshl_b32 {s(sT1)}, {s(sCB)}, 7
    buffer_load_dword {v(vT[3])}, {v(vT[0])}, {s(rA,4)}, {s(sT1)} offen
    """)
    vm.op("pf", 1)
    vm.wait("s2", "sent")
    pf.stamp(12)
    a("s_barrier")
    vm.wait("hst")
    a(f"s_lshl_b32 {s(sT3)}, {s(sCB)}, 2\ns_add_u32 {s(sT3)}, {s(sT3)}, {s(sA)}")
    setflag(FLAG_H, sRB, 3, sT3, 8, allw=True)
    setflag(FLAG_O, sR8, 5, sH, 32)
    pf.stamp(3)
    poll("", f"buffer_load_dwordx2 {v(vD,2)}, {v(vQa)}, {s(rWS,4)}, {s(sLH)} offen{SC}", 32)
    pf.stamp(7)
    def f_issue(sl):
        a(f"""
        s_add_u32 m0, {s(sSt)}, {sl*2048}
        buffer_load_dwordx4 {v(HB[sl],4)}, {v(vL16)}, {s(rC,4)}, {s(sHo)} offen{SCL}
        buffer_load_dwordx4 {v(HB[sl]+4,4)}, {v(vL16)}, {s(rL,4)}, {s(sHo)} offen{SCL}
        buffer_load_dwordx4 {v(vWo[0])}, {s(rA,4)}, {s(sWo)} offen lds
        buffer_load_dwordx4 {v(vWo[1])}, {s(rA,4)}, {s(sWo)} offen offset:1024 lds
        s_add_u32 {s(sHo)}, {s(sHo)}, 1024
        s_add_u32 {s(sWo)}, {s(sWo)}, 16384
        """)
    for sl in range(3): f_issue(sl)
    FL = a.label("X_FFN2")
    a(f"s_mov_b32 {s(sIt)}, 0\n{FL}:")
    for sl in range(4):
        a("s_waitcnt vmcnt(8)")
        w = WB[sl % 2]
        for n, va in enumerate((vRa, vRb)):
            for j in range(2):
                a(f"ds_read_b64_tr_b16 {v(w+4*n+2*j,2)}, {v(va)} offset:{sl*2048 + j*1024}")
        f_issue((sl + 3) % 4)
        a("s_waitcnt lgkmcnt(0)")
        for m in range(2):
            for n in range(2):
                a(f"{MFMA} {v(ACC[m][n],16)}, {v(w+4*n,4)}, {v(HB[sl]+4*m,4)}, {v(ACC[m][n],16)}")
                g_ = opt("mgap", 1)
                if g_ >= 100: a(f"s_nop {g_ - 100}")
                elif g_ and not (m == 1 and n == 1): a(f"s_sleep {g_}")
    a(f"""
    s_add_u32 {s(sIt)}, {s(sIt)}, 1
    s_cmp_lt_u32 {s(sIt)}, {s(sNI)}
    s_cbranch_scc1 {FL}
    """)
    if opt("tpf", 1):
        a.c("refresh the closing code in L2 (speed only)")
        a(f"""
        s_getpc_b64 s[10:11]
        X_here:
        s_add_u32 s10, s10, M_TAIL-X_here
        s_addc_u32 s11, s11, -1
        v_lshlrev_b32 {v(vT[0])}, 7, {v(vL)}
        s_mov_b64 exec, {(1 << opt("tpfl", 28)) - 1}
        global_load_dword {v(vT[1])}, {v(vT[0])}, s[10:11]
        s_mov_b64 exec, -1
        """)
    a.c("every producer of this tile's O slots has put its markers in place")
    poll(f"s_add_u32 {s(sT0)}, {s(sLH)}, 65536", f"buffer_load_dwordx2 {v(vD,2)}, {v(vQa)}, {s(rWS,4)}, {s(sT0)} offen{SC}", 32)
    a.c("FFN2 partial a lives at 40K (a = 0) or 48K + 16K*a, as [row][chunk ^ (row&15)] fp32")
    a(f"""
    s_lshl_b32 {s(sT1)}, {s(sA)}, 14
    s_add_u32 {s(sT2)}, {s(sT1)}, 49152
    s_cmp_eq_u32 {s(sA)}, 0
    s_cselect_b32 {s(sT2)}, {BASE}, {s(sT2)}
    v_and_b32 {v(vT[0])}, 31, {v(vL)}
    v_lshrrev_b32 {v(vT[2])}, 5, {v(vL)}
    v_and_b32 {v(vT[3])}, 15, {v(vL)}
    v_xor_b32 {v(vT[2])}, {v(vT[2])}, {v(vT[3])}
    v_lshlrev_b32 {v(vT[2])}, 4, {v(vT[2])}
    v_lshl_add_u32 {v(vT[0])}, {v(vT[0])}, 8, {v(vT[2])}
    v_add_u32 {v(vT[0])}, {s(sT2)}, {v(vT[0])}
    s_mov_b32 {s(rB)}, s8
    s_mov_b32 {s(rB+1)}, s9
    s_mov_b32 {s(rB+2)}, {512*1024}
    s_lshl_b32 {s(sT0)}, {s(sA)}, 16
    s_lshl_b32 {s(sT2)}, {s(sCB)}, 7
    s_add_u32 {s(sT0)}, {s(sT0)}, {s(sT2)}
    s_lshl_b32 {s(sT1)}, {s(sA)}, 13
    v_add_u32 {v(vT[1])}, {s(sT1)}, {v(vL16)}
    """)
    a.c("Wo column block: rows 0..255 -> staging now, rows 256..511 wait in registers until the K area is free")
    for i in range(4):
        a(f"""
        s_add_u32 m0, {s(sSt)}, {i*2048}
        s_add_u32 {s(sT2)}, {s(sT0)}, {i*16384}
        buffer_load_dwordx4 {v(vWo[0])}, {s(rB,4)}, {s(sT2)} offen lds
        buffer_load_dwordx4 {v(vWo[1])}, {s(rB,4)}, {s(sT2)} offen offset:1024 lds
        s_add_u32 {s(sT2)}, {s(sT2)}, {256*1024}
        buffer_load_dwordx4 {v(HB[i],4)}, {v(vWo[0])}, {s(rB,4)}, {s(sT2)} offen
        buffer_load_dwordx4 {v(HB[i]+4,4)}, {v(vWo[1])}, {s(rB,4)}, {s(sT2)} offen offset:1024
        """)
    a("s_waitcnt vmcnt(0)")
    pf.stamp(9)
    CTR = 32768
    a(f"v_mov_b32 {v(vT[4])}, {CTR}\nv_mov_b32 {v(vT[5])}, 0\ns_setprio 3\ns_barrier")
    pf.stamp(5, "tail")
    a(f"ds_write_b32 {v(vT[4])}, {v(vT[5])}")
    for i in range(8):
        a(f"ds_write_b128 {v(vT[1])}, {v(HB[i//2]+4*(i%2),4)} offset:{i*1024}")
    a("s_waitcnt lgkmcnt(0)\ns_barrier\ns_setprio 1")
    if opt("prw", 1): a("s_barrier")
    for n in range(2):
        for gq in range(4):
            a(f"v_xor_b32 {v(vT[2 + gq%2])}, {128*n + 32*gq}, {v(vT[0])}")
            for m in range(2):
                a(f"ds_write_b128 {v(vT[2 + gq%2])}, {v(ACC[m][n]+4*gq,4)} offset:{m*8192}")
    a.c("sum of the four partials: wave a rows 16a..16a+15, lane -> row l/4, chunks 4*(l&3)..")
    a(f"""
    v_lshrrev_b32 {v(vT[0])}, 2, {v(vL)}
    v_and_b32 {v(vT[1])}, 3, {v(vL)}
    v_lshlrev_b32 {v(vT[1])}, 2, {v(vT[1])}
    v_xor_b32 {v(vT[1])}, {v(vT[1])}, {v(vT[0])}
    v_lshlrev_b32 {v(vT[1])}, 4, {v(vT[1])}
    v_lshl_add_u32 {v(vT[0])}, {v(vT[0])}, 8, {v(vT[1])}
    s_lshl_b32 {s(sT1)}, {s(sA)}, 12
    s_add_u32 {s(sT1)}, {s(sT1)}, {BASE}
    v_add_u32 {v(vT[0])}, {s(sT1)}, {v(vT[0])}
    v_xor_b32 {v(vT[1])}, 16, {v(vT[0])}
    v_xor_b32 {v(vT[2])}, 32, {v(vT[0])}
    v_xor_b32 {v(vT[3])}, 48, {v(vT[0])}
    s_waitcnt lgkmcnt(0)
    """)
    pf.stamp(6, "tail")
    SP = a.label("X_sp")
    a(f"""
    v_mov_b32 {v(vT[5])}, 1
    s_mov_b64 exec, 1
    ds_add_u32 {v(vT[4])}, {v(vT[5])}
    {SP}:
    ds_read_b32 {v(vT[5])}, {v(vT[4])}
    s_waitcnt lgkmcnt(0)
    v_cmp_ne_u32 vcc, 4, {v(vT[5])}
    s_cbranch_vccnz {SP}
    s_mov_b64 exec, -1
    """)
    Z = ACC[0][0]
    for p, off in enumerate((0, 65536 - BASE, 81920 - BASE, 98304 - BASE)):
        for i in range(4):
            a(f"ds_read_b128 {v(Z + 16*p + 4*i,4)}, {v(vT[i])} offset:{off}")
        if p == 2: a("s_waitcnt lgkmcnt(4)")
    for i in range(16): a(f"v_add_f32 {v(Z+i)}, {v(Z+i)}, {v(Z+16+i)}")
    a("s_waitcnt lgkmcnt(0)")
    for i in range(16): a(f"v_add_f32 {v(Z+32+i)}, {v(Z+32+i)}, {v(Z+48+i)}")
    for i in range(16): a(f"v_add_f32 {v(Z+i)}, {v(Z+i)}, {v(Z+32+i)}")
    for i in range(4): a(f"ds_write_b128 {v(vT[i])}, {v(Z+4*i,4)}")
    a("s_waitcnt lgkmcnt(0)\ns_barrier")
    pf.finish(vT[0], vT[1], sW)
    return V.hi

def main():
    head = open("cdna_kernels/" + NAME + ".s.ref").read().split("\n")
    hdr = [l for l in head if l.startswith(";") and "@launch" not in l and "Override launch" not in l and "grid=ceil" not in l]
    a = Asm()
    out = "\n".join(hdr) + "\n; @launch grid=(256,1,1) block=(768,1,1) lds=163840\n"
    out += '.amdgcn_target "amdgcn-amd-amdhsa--gfx950"\n.text\n'
    vh, sh = gen(a)
    print("vgpr", vh, "sgpr", sh, file=sys.stderr)
    out += a.text() + '.section .rodata,"a"\n.p2align 6\n' + kernel_desc(KNAME, vh, sh)
    args = [x for x in sys.argv[1:] if x.endswith(".s")]
    dst = args[0] if args else "cdna_kernels/" + NAME + ".s"
    open(dst, "w").write(out)

main()
```
